```python
import torch

def _softmax(x, axis=-1):
    return torch.softmax(x, dim=axis)
def _gelu(x):
    return torch.nn.functional.gelu(x, approximate="tanh")
def _silu(x):
    return torch.nn.functional.silu(x)
def _sigmoid(x):
    return torch.sigmoid(x)
def _layernorm(x, axis=-1, eps=1e-5):
    m = x.mean(dim=axis, keepdim=True)
    v = x.var(dim=axis, keepdim=True, unbiased=False)
    return (x - m) / torch.sqrt(v + eps)
def _scatter_add(tgt, idx, src, axis=0):
    return tgt.clone().index_add_(axis, idx, src)
def _segment_sum(src, seg, n):
    out = torch.zeros((n,) + src.shape[1:], dtype=src.dtype)
    return out.index_add_(0, seg, src)
def _pad(x, pw):
    flat = tuple(v for pair in reversed(pw) for v in pair)
    return torch.nn.functional.pad(x, flat)

kernel_name = 'sequential_preLN__mha_block_cached__dense_activation_squared_relu__decode'

def setup_inputs():

    _w = (lambda a: (lambda t: t.to(torch.bfloat16) if t.is_floating_point() else t)(torch.as_tensor(a)))
    def _A_setup():
        B, Sq, D = 2, 1, 640
        H, Sk, Dh = 32, 8192, 192
        return {
            "x": _w((lambda *s: torch.randn(*s, dtype=torch.bfloat16) * 0.05)(B, Sq, D)),
            "k_cache": _w((lambda *s: torch.randn(*s, dtype=torch.bfloat16) * 3.2)(B, H, Sk, Dh)),
            "v_cache": _w((lambda *s: torch.randn(*s, dtype=torch.bfloat16) * 0.4)(B, H, Sk, Dh)),
            "wq": _w((lambda *s: torch.randn(*s, dtype=torch.bfloat16) * 3.2)(D, H * Dh) * (D ** -0.5)),
            "wo": _w((lambda *s: torch.randn(*s, dtype=torch.bfloat16) * 0.4)(H * Dh, D) * ((H * Dh) ** -0.5)),
        }
    _A_in = _A_setup()

    def _B_setup():
        B, S, D, F = 2, 1, 640, 1536
        return {
            "x": _w((lambda *s: torch.randn(*s, dtype=torch.bfloat16) * 0.05)(B, S, D)),
            "w1": _w((lambda *s: torch.randn(*s, dtype=torch.bfloat16) * 0.05)(D, F)),
            "b1": _w((lambda *s: torch.randn(*s, dtype=torch.bfloat16) * 0.8)(F)),
            "w2": _w((lambda *s: torch.randn(*s, dtype=torch.bfloat16) * 0.05)(F, D)),
            "b2": _w((lambda *s: torch.randn(*s, dtype=torch.bfloat16) * 3.2)(D)),
        }
    _B_in = _B_setup()

    return {
        "A_x": _A_in["x"],
        "A_k_cache": _A_in["k_cache"],
        "A_v_cache": _A_in["v_cache"],
        "A_wq": _A_in["wq"],
        "A_wo": _A_in["wo"],
        "B_x": _B_in["x"],
        "B_w1": _B_in["w1"],
        "B_b1": _B_in["b1"],
        "B_w2": _B_in["w2"],
        "B_b2": _B_in["b2"],
    }

def reference(A_x, A_k_cache, A_v_cache, A_wq, A_wo, B_x, B_w1, B_b1, B_w2, B_b2):
    def _A_ref(x, k_cache, v_cache, wq, wo):
        B, Sq, D = x.shape
        H, Dh = 32, 192
        q = (lambda x, *d: x.permute(*d))((x @ wq).reshape(B, Sq, H, Dh), 0, 2, 1, 3)
        scores = torch.einsum("bhqd,bhkd->bhqk", q, k_cache) * (Dh ** -0.5)
        p = _softmax(scores, axis=-1)
        o = torch.einsum("bhqk,bhkd->bhqd", p, v_cache)
        return (lambda x, *d: x.permute(*d))(o, 0, 2, 1, 3).reshape(B, Sq, H * Dh) @ wo

    def _B_ref(x, w1, b1, w2, b2):
        h = torch.einsum("bsd,df->bsf", x, w1) + b1
        zero = torch.zeros_like(h)
        r = torch.where(h > zero, h, zero)
        h = r * r
        out = torch.einsum("bsf,fd->bsd", h, w2) + b2
        return out

    x = A_x
    h = x + _A_ref(_layernorm(x, axis=-1), A_k_cache, A_v_cache, A_wq, A_wo)
    h2 = h + _B_ref(_layernorm(h, axis=-1), B_w1, B_b1, B_w2, B_b2)
    return h2
```

```python
import re

TRANS = ("v_exp_f32", "v_log_f32", "v_rcp_f32", "v_rsq_f32", "v_sqrt_f32", "v_sin_f32", "v_cos_f32")


def _split_ops(s):
    out, depth, cur = [], 0, ""
    for ch in s:
        if ch == "[":
            depth += 1
        if ch == "]":
            depth -= 1
        if ch == "," and depth == 0:
            out.append(cur.strip())
            cur = ""
        else:
            cur += ch
    if cur.strip():
        out.append(cur.strip())
    return out


_REG = re.compile(r"^-?(?:abs\()?\|?([vsa])(\d+)\)?\|?$")
_RNG = re.compile(r"^([vsa])\[(\d+):(\d+)\]$")


def regs_of(op):
    op = op.strip()
    if op in ("vcc", "exec"):
        return [(op, 0)]
    if op in ("vcc_lo", "vcc_hi"):
        return [("vcc", 0)]
    m = _REG.match(op)
    if m:
        return [(m.group(1), int(m.group(2)))]
    m = _RNG.match(op)
    if m:
        return [(m.group(1), i) for i in range(int(m.group(2)), int(m.group(3)) + 1)]
    return []


class Gen:
    def __init__(self):
        self.lines = []
        self.pos = 0
        self.wr = {}
        self.store_data = {}
        self.nops = 0

    def raw(self, text):
        self.lines.append(text)

    def comment(self, text):
        self.lines.append("    ; " + text)

    def label(self, name, pad=True):
        self.lines.append(name + ":")
        if pad:
            self.lines.append("    s_nop 4")
            self.pos += 5
        self.wr = {}
        self.store_data = {}

    def nop(self, n):
        while n > 0:
            k = min(n, 16)
            self.lines.append("    s_nop %d" % (k - 1))
            self.pos += k
            self.nops += k
            n -= k

    def __call__(self, text):
        text = text.strip()
        m = re.match(r"^(\S+)\s*(.*)$", text)
        mn, rest = m.group(1), m.group(2)
        ops = _split_ops(rest)
        mods = ""
        if ops:
            parts = ops[-1].split()
            ops[-1] = parts[0] if parts else ""
            mods = " ".join(parts[1:])
        is_valu = mn.startswith("v_")
        is_trans = mn.startswith(TRANS)
        is_dot = mn.startswith("v_dot")
        is_dpp = is_valu and ("quad_perm" in mods or "row_" in mods or "wave_" in mods)
        is_perml = mn.startswith("v_permlane")
        is_rdl = mn.startswith("v_readlane") or mn.startswith("v_readfirstlane")
        is_vmem = mn.startswith("buffer_") or mn.startswith("global_")
        is_ds = mn.startswith("ds_")
        if mn == "s_nop":
            self.lines.append("    " + text)
            self.pos += int(ops[0]) + 1
            return
        dst, src = [], []
        if is_valu:
            if is_perml:
                dst = regs_of(ops[0]) + regs_of(ops[1])
                src = list(dst)
            elif mn.startswith(("v_add_co", "v_sub_co", "v_addc_co", "v_subb_co", "v_div_scale")):
                dst = regs_of(ops[0]) + regs_of(ops[1])
                for o in ops[2:]:
                    src += regs_of(o)
            else:
                dst = regs_of(ops[0])
                for o in ops[1:]:
                    src += regs_of(o)
                if mn.startswith(("v_fmac", "v_dot2c")):
                    src += dst
                if mn.startswith("v_div_fmas"):
                    src += [("vcc", 0)]
                if mn.startswith("v_cndmask") and len(ops) == 3:
                    src += [("vcc", 0)]
        elif is_vmem:
            if "load" in mn and "lds" not in mods:
                dst = regs_of(ops[0])
                for o in ops[1:]:
                    src += regs_of(o)
            else:
                for o in ops:
                    src += regs_of(o)
        elif is_ds:
            if mn.startswith(("ds_read", "ds_bpermute", "ds_permute", "ds_swizzle")):
                dst = regs_of(ops[0])
                for o in ops[1:]:
                    src += regs_of(o)
            else:
                for o in ops:
                    src += regs_of(o)
        else:
            for o in ops[1:]:
                src += regs_of(o)
            if ops:
                dst = regs_of(ops[0])

        need = self.pos

        def req(prod_pos, n):
            nonlocal need
            need = max(need, prod_pos + 1 + n)

        for r in src:
            w = self.wr.get(r)
            if w is None:
                continue
            p, kind = w
            if r[0] == "v":
                if is_dpp or is_perml:
                    req(p, 2)
                if is_rdl:
                    req(p, 1)
                if kind == "trans" and is_valu and not is_trans:
                    req(p, 1)
                if kind == "dot":
                    if is_dot:
                        srcc = regs_of(ops[3]) if len(ops) > 3 else []
                        ab = regs_of(ops[1]) + regs_of(ops[2])
                        if r in ab:
                            req(p, 3)
                    else:
                        req(p, 3)
            else:
                if is_valu:
                    req(p, 4 if mn.startswith("v_div_fmas") else 2)
                    if is_rdl:
                        req(p, 4)
                if is_vmem:
                    req(p, 5)
        for r in dst:
            w = self.wr.get(r)
            if w is not None and w[1] == "dot" and not is_dot:
                req(w[0], 3)
            if is_valu and r in self.store_data:
                req(self.store_data[r], 2)
        if need > self.pos:
            self.nop(need - self.pos)
        self.lines.append("    " + text)
        me = self.pos
        self.pos += 1
        if is_valu:
            kind = "dot" if is_dot else ("trans" if is_trans else "valu")
            for r in dst:
                self.wr[r] = (me, kind)
        else:
            for r in dst:
                self.wr.pop(r, None)
        if is_vmem and "store" in mn and ("x3" in mn or "x4" in mn):
            for r in regs_of(ops[0]):
                self.store_data[r] = me

    def text(self):
        return "\n".join(self.lines) + "\n"
```

```python
import sys
from asmgen import Gen

NAME = "sequential_preLN__mha_block_cached__dense_activation_squared_relu__decode"

WS_PART = 0
WS_HP = 0x40000
WS_FP = 0x50000
WS_HH = 0x90000
WS_SIZE = 0x100000

LOG2E = 0x3FB8AA3B
SCALE = 0x3D93CD3A
INV640 = 0x3ACCCCCD
EPS = 0x3727C5AC


def srd(g, d, base, size):
    g(f"s_mov_b32 s{d}, s{base}")
    g(f"s_and_b32 s{d+1}, s{base+1}, 0xffff")
    g(f"s_mov_b32 s{d+2}, {size}")
    g(f"s_mov_b32 s{d+3}, 0x00020000")


def allreduce(g, op, v, t):
    g(f"{op}_dpp v{v}, v{v}, v{v} quad_perm:[1,0,3,2] row_mask:0xf bank_mask:0xf")
    g(f"{op}_dpp v{v}, v{v}, v{v} quad_perm:[2,3,0,1] row_mask:0xf bank_mask:0xf")
    g(f"{op}_dpp v{v}, v{v}, v{v} row_half_mirror row_mask:0xf bank_mask:0xf")
    g(f"{op}_dpp v{v}, v{v}, v{v} row_mirror row_mask:0xf bank_mask:0xf")
    g(f"v_mov_b32 v{t}, v{v}")
    g(f"v_permlane16_swap_b32 v{v}, v{t}")
    g(f"{op} v{v}, v{v}, v{t}")
    g(f"v_mov_b32 v{t}, v{v}")
    g(f"v_permlane32_swap_b32 v{v}, v{t}")
    g(f"{op} v{v}, v{v}, v{t}")


def bf16r(g, dst, src):
    g(f"v_cvt_pk_bf16_f32 v{dst}, v{src}, v{src}")
    g(f"v_lshlrev_b32 v{dst}, 16, v{dst}")


def bf16r2(g, a, b, t):
    g(f"v_cvt_pk_bf16_f32 v{t}, v{a}, v{b}")
    g(f"v_lshlrev_b32 v{a}, 16, v{t}")
    g(f"v_and_b32 v{b}, 0xffff0000, v{t}")


def divide(g, dst, num, den, r, e):
    g(f"v_rcp_f32 v{r}, v{den}")
    g(f"v_mul_f32 v{dst}, v{num}, v{r}")
    g(f"v_fma_f32 v{e}, -v{dst}, v{den}, v{num}")
    g(f"v_fma_f32 v{dst}, v{e}, v{r}, v{dst}")


def ln_stats(g, xe, n, mb, sd, t0, t1, t2):
    g(f"v_add_f32 v{t0}, v{xe[0]}, v{xe[1]}")
    for r in xe[2:]:
        g(f"v_add_f32 v{t0}, v{t0}, v{r}")
    allreduce(g, "v_add_f32", t0, t1)
    g(f"v_mul_f32 v{t0}, {INV640:#x}, v{t0}")
    g(f"v_sub_f32 v{t1}, v{xe[0]}, v{t0}")
    g(f"v_mul_f32 v{t2}, v{t1}, v{t1}")
    for r in xe[1:]:
        g(f"v_sub_f32 v{t1}, v{r}, v{t0}")
        g(f"v_fmac_f32 v{t2}, v{t1}, v{t1}")
    allreduce(g, "v_add_f32", t2, t1)
    g(f"v_mul_f32 v{t2}, {INV640:#x}, v{t2}")
    bf16r(g, mb, t0)
    bf16r(g, t2, t2)
    g(f"v_add_f32 v{t2}, {EPS:#x}, v{t2}")
    bf16r(g, t2, t2)
    g(f"v_sqrt_f32 v{t2}, v{t2}")
    bf16r(g, sd, t2)


def ln_apply(g, x, mb, sd, r, e):
    g(f"v_sub_f32 v{x}, v{x}, v{mb}")
    bf16r(g, x, x)
    g(f"v_mov_b32 v{e}, v{x}")
    g(f"v_rcp_f32 v{r}, v{sd}")
    g(f"v_mul_f32 v{x}, v{e}, v{r}")
    g(f"v_fma_f32 v{e}, -v{x}, v{sd}, v{e}")
    g(f"v_fma_f32 v{x}, v{e}, v{r}, v{x}")
    bf16r(g, x, x)


def header(g, label):
    g.raw(".p2align 8")
    g.raw(f".type {label},@function")
    g.raw(f"{label}:")


def descriptor(label, nvgpr, nsgpr):
    acc = (nvgpr + 3) // 4 * 4
    return f""".amdhsa_kernel {label}
  .amdhsa_next_free_vgpr {nvgpr}
  .amdhsa_next_free_sgpr {nsgpr}
  .amdhsa_accum_offset {acc}
  .amdhsa_group_segment_fixed_size 0
  .amdhsa_kernarg_size 104
  .amdhsa_user_sgpr_count 2
  .amdhsa_user_sgpr_kernarg_segment_ptr 1
  .amdhsa_system_sgpr_workgroup_id_x 1
  .amdhsa_float_denorm_mode_32 3
.end_amdhsa_kernel
"""


def k_attn(g, NBUF=10, nt=True):
    L = "attn_kernel"
    header(g, L)
    NT = " nt" if nt else ""
    sX, sK, sV, sWQ, sWS = 16, 20, 24, 28, 32
    sWave, sH, sB, sS, sT0, sT1, sKV, sOff, sSelLo, sSelHi = 36, 37, 38, 39, 40, 41, 42, 43, 44, 45
    sM1, sM0, sWqb, sRec = 46, 48, 50, 51
    XN, QB, ML, PW, QP = 0, 2560, 3072, 4096, 8192
    vLane, vL32, vHalf, vKV, vT = 1, 2, 3, 4, 5
    vQ = 6
    vPA = 9
    vAcc = 10
    vS = 16
    vP = 18
    vLA, vLB, vLC, vLD = 20, 22, 24, 26
    vT2, vT3 = 28, 29
    vPm = 30
    vPPa, vPPb = 36, 40
    vRing = 44
    vWq = vRing + 4 * NBUF
    nv = vWq + 40
    assert nv <= 128, nv

    g("s_cmp_ge_u32 s2, 256")
    g("s_cbranch_scc1 attn_end")
    g("s_load_dwordx2 s[4:5], s[0:1], 0")
    g("s_load_dwordx4 s[8:11], s[0:1], 8")
    g("s_load_dwordx2 s[12:13], s[0:1], 24")
    g("s_load_dwordx2 s[14:15], s[0:1], 96")
    g(f"v_and_b32 v{vLane}, 63, v0")
    g(f"v_and_b32 v{vL32}, 31, v0")
    g(f"v_bfe_u32 v{vHalf}, v0, 5, 1")
    g(f"v_lshrrev_b32 v{vT}, 6, v0")
    g(f"v_readfirstlane_b32 s{sWave}, v{vT}")
    g(f"s_and_b32 s{sT0}, s2, 7")
    g(f"s_lshr_b32 s{sT1}, s2, 3")
    g(f"s_lshl_b32 s{sH}, s{sT0}, 2")
    g(f"s_and_b32 s{sT0}, s{sT1}, 3")
    g(f"s_add_u32 s{sH}, s{sH}, s{sT0}")
    g(f"s_lshr_b32 s{sT1}, s{sT1}, 2")
    g(f"s_lshr_b32 s{sB}, s{sT1}, 2")
    g(f"s_and_b32 s{sS}, s{sT1}, 3")
    g(f"s_lshl_b32 s{sRec}, s{sB}, 5")
    g(f"s_add_u32 s{sRec}, s{sRec}, s{sH}")
    g(f"s_lshl_b32 s{sRec}, s{sRec}, 2")
    g(f"s_add_u32 s{sRec}, s{sRec}, s{sS}")
    g(f"s_mul_i32 s{sKV}, s{sRec}, 786432")
    g(f"s_mov_b32 s{sSelLo}, 0x05040100")
    g(f"s_mov_b32 s{sSelHi}, 0x07060302")
    g(f"s_mov_b32 s{sM1}, 0xcccccccc")
    g(f"s_mov_b32 s{sM1+1}, 0xcccccccc")
    g(f"s_mov_b32 s{sM0}, 0xaaaaaaaa")
    g(f"s_mov_b32 s{sM0+1}, 0xaaaaaaaa")
    g(f"s_mul_i32 s{sWqb}, s{sWave}, 491520")
    g(f"s_mul_i32 s{sT0}, s{sH}, 384")
    g(f"s_add_u32 s{sWqb}, s{sWqb}, s{sT0}")
    g(f"v_mul_u32_u24 v{vT2}, 12, v{vL32}")
    g(f"v_lshrrev_b32 v{vT3}, 5, v0")
    g(f"v_mul_u32_u24 v{vKV}, 384, v{vT3}")
    g(f"v_add_u32 v{vKV}, v{vKV}, v{vT2}")
    vWo = 42
    g(f"v_mul_u32_u24 v{vWo}, 245760, v{vHalf}")
    g(f"v_add_u32 v{vWo}, v{vWo}, v{vT2}")
    g(f"v_lshlrev_b32 v{vT}, 2, v{vLane}")
    g("s_waitcnt lgkmcnt(0)")
    srd(g, sX, 4, 2560)
    srd(g, sK, 8, 201326592)
    srd(g, sV, 10, 201326592)
    srd(g, sWQ, 12, 7864320)
    srd(g, sWS, 14, WS_SIZE)
    g(f"s_mul_i32 s{sT0}, s{sB}, 1280")
    vXd = 36
    for j in range(5):
        g(f"buffer_load_dword v{vXd+j}, v{vT}, s[{sX}:{sX+3}], s{sT0} offen offset:{j*256}")

    def wq_load(j):
        g(f"s_add_u32 s{sOff}, s{sWqb}, {j*12288}")
        r = vWq + 4 * (j % 10)
        g(f"buffer_load_dwordx3 v[{r}:{r+2}], v{vWo}, s[{sWQ}:{sWQ+3}], s{sOff} offen")

    for j in range(10):
        wq_load(j)

    issued = [0]

    def kv_load(t):
        assert t == issued[0]
        issued[0] += 1
        s = sK if t < 64 else sV
        i = t % 64
        g(f"s_add_u32 s{sOff}, s{sKV}, {i*12288}")
        r = vRing + 4 * (t % NBUF)
        g(f"buffer_load_dwordx3 v[{r}:{r+2}], v{vKV}, s[{s}:{s+3}], s{sOff} offen{NT}")

    for t in range(NBUF):
        kv_load(t)
    g(f"s_waitcnt vmcnt({10+NBUF})")
    xe = list(range(16, 26))
    for j in range(5):
        g(f"v_lshlrev_b32 v{xe[2*j]}, 16, v{vXd+j}")
        g(f"v_and_b32 v{xe[2*j+1]}, 0xffff0000, v{vXd+j}")
    vMb, vSd = 26, 27
    ln_stats(g, xe, 640, vMb, vSd, 28, 29, 31)
    for r in xe:
        ln_apply(g, r, vMb, vSd, 28, 29)
    g(f"v_lshlrev_b32 v{vT}, 3, v{vLane}")
    for j in range(5):
        g(f"ds_write_b64 v{vT}, v[{xe[2*j]}:{xe[2*j+1]}] offset:{XN + j*512}")
    g(f"v_lshrrev_b32 v{vT3}, 5, v0")
    g(f"v_mul_u32_u24 v{vT}, 80, v{vT3}")
    g("s_waitcnt lgkmcnt(0)")
    xr = 16
    for j in range(5):
        g(f"ds_read_b128 v[{xr+4*j}:{xr+4*j+3}], v{vT} offset:{XN + j*16}")
    for c in range(6):
        g(f"v_mov_b32 v{vAcc+c}, 0")
    g("s_waitcnt lgkmcnt(0)")

    def wq_consume(j):
        r = vWq + 4 * (j % 10)
        for c in range(3):
            g(f"v_lshlrev_b32 v{36}, 16, v{r+c}")
            g(f"v_and_b32 v{37}, 0xffff0000, v{r+c}")
            g(f"v_fmac_f32 v{vAcc+2*c}, v{36}, v{xr+j}")
            g(f"v_fmac_f32 v{vAcc+2*c+1}, v{37}, v{xr+j}")

    g(f"s_waitcnt vmcnt({NBUF})")
    for j in range(10):
        wq_consume(j)
    for j in range(10, 20):
        wq_load(j)
    g("s_waitcnt vmcnt(0)")
    for j in range(10, 20):
        wq_consume(j)
    g(f"v_lshrrev_b32 v{vT3}, 5, v0")
    g(f"v_mul_u32_u24 v{vT}, 768, v{vT3}")
    g(f"v_mul_u32_u24 v{vT2}, 24, v{vL32}")
    g(f"v_add_u32 v{vT}, v{vT}, v{vT2}")
    vOWaddr = vPA
    g(f"v_mov_b32 v{vOWaddr}, v{vT}")
    for c in range(3):
        g(f"ds_write_b64 v{vT}, v[{vAcc+2*c}:{vAcc+2*c+1}] offset:{QP + c*8}")
    g("s_waitcnt lgkmcnt(0)")
    g("s_barrier")
    g(f"s_cmp_lt_u32 s{sWave}, 3")
    g("s_cbranch_scc0 attn_q2_skip")
    g(f"v_lshlrev_b32 v{vT}, 2, v0")
    rr = vWq
    for r in range(32):
        g(f"ds_read_b32 v{rr+r}, v{vT} offset:{QP + r*768}")
    g("s_waitcnt lgkmcnt(0)")
    for r in range(1, 32):
        g(f"v_add_f32 v{rr}, v{rr}, v{rr+r}")
    g(f"v_cvt_pk_bf16_f32 v{rr}, v{rr}, v{rr}")
    g(f"v_lshlrev_b32 v{vT}, 1, v0")
    g(f"ds_write_b16 v{vT}, v{rr} offset:{QB}")
    g("s_waitcnt lgkmcnt(0)")
    g.label("attn_q2_skip")
    g("s_barrier")
    g(f"v_mul_u32_u24 v{vT}, 12, v{vL32}")
    for c in range(3):
        g(f"ds_read_b32 v{vQ+c}, v{vT} offset:{QB + 4*c}")
    g("s_waitcnt lgkmcnt(0)")

    def wait_for(t):
        last = issued[0] - 1
        assert last >= t
        g(f"s_waitcnt vmcnt({last - t})")

    for t in range(64):
        i5 = t % 32
        r = vRing + 4 * (t % NBUF)
        P = vP + (t & 1)
        wait_for(t)
        g(f"v_dot2_f32_bf16 v{P}, v{r}, v{vQ}, 0")
        g(f"v_dot2_f32_bf16 v{P}, v{r+1}, v{vQ+1}, v{P}")
        g(f"v_dot2_f32_bf16 v{P}, v{r+2}, v{vQ+2}, v{P}")
        kv_load(t + NBUF)
        if i5 & 1:
            g(f"v_permlane16_swap_b32 v{vP}, v{vP+1}")
            g(f"v_add_f32 v{vLA+((i5>>1)&1)}, v{vP}, v{vP+1}")
        if (i5 & 3) == 3:
            d = vLB + ((i5 >> 2) & 1)
            g(f"v_add_f32_dpp v{d}, v{vLA}, v{vLA} row_ror:8 row_mask:0xf bank_mask:0x3")
            g(f"v_add_f32_dpp v{d}, v{vLA+1}, v{vLA+1} row_ror:8 row_mask:0xf bank_mask:0xc")
        if (i5 & 7) == 7:
            d = vLC + ((i5 >> 3) & 1)
            g(f"v_add_f32_dpp v{d}, v{vLB}, v{vLB} row_shl:4 row_mask:0xf bank_mask:0x5")
            g(f"v_add_f32_dpp v{d}, v{vLB+1}, v{vLB+1} row_shr:4 row_mask:0xf bank_mask:0xa")
        if (i5 & 15) == 15:
            d = vLD + ((i5 >> 4) & 1)
            g(f"v_add_f32_dpp v{vT2}, v{vLC}, v{vLC} quad_perm:[2,3,0,1] row_mask:0xf bank_mask:0xf")
            g(f"v_add_f32_dpp v{vT3}, v{vLC+1}, v{vLC+1} quad_perm:[2,3,0,1] row_mask:0xf bank_mask:0xf")
            g(f"v_cndmask_b32 v{d}, v{vT2}, v{vT3}, s[{sM1}:{sM1+1}]")
        if i5 == 31:
            d = vS + (t >> 5)
            g(f"v_add_f32_dpp v{vT2}, v{vLD}, v{vLD} quad_perm:[1,0,3,2] row_mask:0xf bank_mask:0xf")
            g(f"v_add_f32_dpp v{vT3}, v{vLD+1}, v{vLD+1} quad_perm:[1,0,3,2] row_mask:0xf bank_mask:0xf")
            g(f"v_cndmask_b32 v{d}, v{vT2}, v{vT3}, s[{sM0}:{sM0+1}]")

    S0, S1 = vS, vS + 1
    bf16r2(g, S0, S1, vT2)
    g(f"v_mul_f32 v{S0}, {SCALE:#x}, v{S0}")
    g(f"v_mul_f32 v{S1}, {SCALE:#x}, v{S1}")
    bf16r2(g, S0, S1, vT2)
    vM, vLs = vLA, vLA + 1
    g(f"v_max_f32 v{vM}, v{S0}, v{S1}")
    allreduce(g, "v_max_f32", vM, vT2)
    g(f"v_sub_f32 v{S0}, v{S0}, v{vM}")
    g(f"v_sub_f32 v{S1}, v{S1}, v{vM}")
    g(f"v_mul_f32 v{S0}, {LOG2E:#x}, v{S0}")
    g(f"v_mul_f32 v{S1}, {LOG2E:#x}, v{S1}")
    g(f"v_exp_f32 v{S0}, v{S0}")
    g(f"v_exp_f32 v{S1}, v{S1}")
    g(f"v_add_f32 v{vLs}, v{S0}, v{S1}")
    allreduce(g, "v_add_f32", vLs, vT2)
    g(f"v_bfrev_b32 v{vT2}, v{vL32}")
    g(f"v_lshrrev_b32 v{vT2}, 26, v{vT2}")
    g(f"v_lshlrev_b32 v{vT3}, 7, v{vHalf}")
    g(f"v_add_u32 v{vT2}, v{vT2}, v{vT3}")
    g(f"s_lshl_b32 s{sT0}, s{sWave}, 8")
    g(f"v_add_u32 v{vT2}, s{sT0}, v{vT2}")
    g(f"v_cvt_pk_bf16_f32 v{vT}, v{S0}, v{S1}")
    g(f"ds_write_b16 v{vT2}, v{vT} offset:{PW}")
    g(f"ds_write_b16_d16_hi v{vT2}, v{vT} offset:{PW+64}")
    vPr = vLB
    g(f"v_add_u32 v{vPr}, s{sT0}, v{vT3}")
    for c in range(6):
        g(f"v_mov_b32 v{vAcc+c}, 0")
    g("s_waitcnt lgkmcnt(0)")
    g(f"ds_read_b128 v[{vPPa}:{vPPa+3}], v{vPr} offset:{PW}")
    g(f"ds_read_b128 v[{vPPb}:{vPPb+3}], v{vPr} offset:{PW+16}")

    for j in range(32):
        t = 64 + 2 * j
        q4 = j // 4
        PP = (vPPa if (q4 & 1) == 0 else vPPb) + (j % 4)
        if j % 4 == 0:
            if q4 + 1 < 8:
                g("s_waitcnt lgkmcnt(1)")
            else:
                g("s_waitcnt lgkmcnt(0)")
        ra = vRing + 4 * (t % NBUF)
        rb = vRing + 4 * ((t + 1) % NBUF)
        wait_for(t + 1)
        for c in range(3):
            g(f"v_perm_b32 v{vPm}, v{rb+c}, v{ra+c}, s{sSelLo}")
            g(f"v_perm_b32 v{vPm+1}, v{rb+c}, v{ra+c}, s{sSelHi}")
            g(f"v_dot2_f32_bf16 v{vAcc+2*c}, v{vPm}, v{PP}, v{vAcc+2*c}")
            g(f"v_dot2_f32_bf16 v{vAcc+2*c+1}, v{vPm+1}, v{PP}, v{vAcc+2*c+1}")
        if t + NBUF < 128:
            kv_load(t + NBUF)
        if t + 1 + NBUF < 128:
            kv_load(t + 1 + NBUF)
        if j % 4 == 3 and q4 + 2 < 8:
            d = vPPa if (q4 & 1) == 0 else vPPb
            g(f"ds_read_b128 v[{d}:{d+3}], v{vPr} offset:{PW + (q4+2)*16}")

    for c in range(3):
        g(f"ds_write_b64 v{vOWaddr}, v[{vAcc+2*c}:{vAcc+2*c+1}] offset:{QP + c*8}")
    g(f"s_lshl_b32 s{sT0}, s{sWave}, 3")
    g(f"v_mov_b32 v{vT}, s{sT0}")
    g(f"ds_write_b64 v{vT}, v[{vM}:{vM+1}] offset:{ML}")
    g("s_waitcnt lgkmcnt(0)")
    g("s_barrier")
    g(f"s_cmp_lt_u32 s{sWave}, 3")
    g("s_cbranch_scc0 attn_end")
    rm = vRing
    ro = vWq
    g(f"v_mov_b32 v{vT}, 0")
    for w in range(0, 16, 2):
        g(f"ds_read_b128 v[{rm+2*w}:{rm+2*w+3}], v{vT} offset:{ML + 8*w}")
    g(f"v_lshlrev_b32 v{vT}, 2, v0")
    for r in range(32):
        g(f"ds_read_b32 v{ro+r}, v{vT} offset:{QP + r*768}")
    g("s_waitcnt lgkmcnt(0)")
    vMM, vLL, vO, vF = 16, 17, 18, 19
    g(f"v_max_f32 v{vMM}, v{rm}, v{rm+2}")
    for w in range(2, 16):
        g(f"v_max_f32 v{vMM}, v{vMM}, v{rm+2*w}")
    g(f"v_mov_b32 v{vLL}, 0")
    g(f"v_mov_b32 v{vO}, 0")
    for w in range(16):
        g(f"v_sub_f32 v{vF}, v{rm+2*w}, v{vMM}")
        g(f"v_mul_f32 v{vF}, {LOG2E:#x}, v{vF}")
        g(f"v_exp_f32 v{vF}, v{vF}")
        g(f"v_add_f32 v{vT2}, v{ro+2*w}, v{ro+2*w+1}")
        g(f"v_fmac_f32 v{vLL}, v{vF}, v{rm+2*w+1}")
        g(f"v_fmac_f32 v{vO}, v{vF}, v{vT2}")
    g(f"s_lshl_b32 s{sT0}, s{sRec}, 10")
    g(f"buffer_store_dword v{vO}, v{vT}, s[{sWS}:{sWS+3}], s{sT0} offen offset:{WS_PART}")
    g(f"v_mov_b32 v{vT}, 0")
    g(f"buffer_store_dwordx2 v[{vMM}:{vMM+1}], v{vT}, s[{sWS}:{sWS+3}], s{sT0} offen offset:{WS_PART+768}")
    g.label("attn_end", pad=False)
    g("s_endpgm")
    return L, nv, 56


def k_wo(g):
    L = "wo_kernel"
    header(g, L)
    sWO, sWS = 16, 20
    sRb, sCb, sWave, sT0, sT1, sOff = 24, 25, 26, 27, 28, 29
    OC, RED, RED2 = 0, 8192, 24576
    vLane, vT, vT2, vT3 = 1, 2, 3, 4
    vWoOff = 5
    vAcc = 8
    vW = 24
    vC = 72
    vOo, vMo = 144, 150
    nv = 160
    g("s_cmp_ge_u32 s2, 160")
    g("s_cbranch_scc1 wo_end")
    g("s_load_dwordx2 s[4:5], s[0:1], 32")
    g("s_load_dwordx2 s[6:7], s[0:1], 96")
    g(f"v_and_b32 v{vLane}, 63, v0")
    g(f"v_lshrrev_b32 v{vT}, 6, v0")
    g(f"v_readfirstlane_b32 s{sWave}, v{vT}")
    g(f"s_mul_i32 s{sRb}, s2, 3277")
    g(f"s_lshr_b32 s{sRb}, s{sRb}, 16")
    g(f"s_mul_i32 s{sT0}, s{sRb}, 20")
    g(f"s_sub_u32 s{sCb}, s2, s{sT0}")
    g(f"v_lshrrev_b32 v{vT}, 2, v{vLane}")
    g(f"v_mul_u32_u24 v{vWoOff}, 1280, v{vT}")
    g(f"v_and_b32 v{vT2}, 3, v{vLane}")
    g(f"v_lshlrev_b32 v{vT2}, 4, v{vT2}")
    g(f"v_add_u32 v{vWoOff}, v{vWoOff}, v{vT2}")
    for k in range(3):
        g(f"v_add_u32 v{vT}, {k*256}, v0")
        g(f"v_mul_u32_u24 v{vT2}, 43691, v{vT}")
        g(f"v_lshrrev_b32 v{vT2}, 23, v{vT2}")
        g(f"v_mul_u32_u24 v{vT3}, 192, v{vT2}")
        g(f"v_sub_u32 v{vT3}, v{vT}, v{vT3}")
        g(f"v_lshlrev_b32 v{vMo+k}, 12, v{vT2}")
        g(f"v_lshlrev_b32 v{vT3}, 2, v{vT3}")
        g(f"v_add_u32 v{vOo+k}, v{vMo+k}, v{vT3}")
    g("s_waitcnt lgkmcnt(0)")
    srd(g, sWO, 4, 7864320)
    srd(g, sWS, 6, WS_SIZE)
    for b in range(2):
        g(f"s_lshl_b32 s{sT0}, s{sRb}, 14")
        if b:
            g(f"s_add_u32 s{sT0}, s{sT0}, {32*4096}")
        for k in range(3):
            base = vC + (b * 3 + k) * 12
            for s in range(4):
                g(f"buffer_load_dword v{base+s}, v{vOo+k}, s[{sWS}:{sWS+3}], s{sT0} offen offset:{s*1024}")
            for s in range(4):
                g(f"buffer_load_dwordx2 v[{base+4+2*s}:{base+5+2*s}], v{vMo+k}, s[{sWS}:{sWS+3}], s{sT0} offen offset:{s*1024+768}")
    g(f"s_mul_i32 s{sT0}, s{sRb}, {768*1280}")
    g(f"s_mul_i32 s{sT1}, s{sWave}, {192*1280}")
    g(f"s_add_u32 s{sT0}, s{sT0}, s{sT1}")
    g(f"s_lshl_b32 s{sT1}, s{sCb}, 6")
    g(f"s_add_u32 s{sT0}, s{sT0}, s{sT1}")
    for i in range(12):
        g(f"s_add_u32 s{sOff}, s{sT0}, {i*16*1280}")
        g(f"buffer_load_dwordx4 v[{vW+4*i}:{vW+4*i+3}], v{vWoOff}, s[{sWO}:{sWO+3}], s{sOff} offen")
    g("s_waitcnt vmcnt(12)")
    vM, vF, vNum, vDen, vR, vE = 6, 7, 152, 153, 154, 155
    for b in range(2):
        for k in range(3):
            base = vC + (b * 3 + k) * 12
            m = [base + 4 + 2 * s for s in range(4)]
            l = [base + 5 + 2 * s for s in range(4)]
            g(f"v_max_f32 v{vM}, v{m[0]}, v{m[1]}")
            g(f"v_max3_f32 v{vM}, v{vM}, v{m[2]}, v{m[3]}")
            for s in range(4):
                g(f"v_sub_f32 v{vF}, v{m[s]}, v{vM}")
                g(f"v_mul_f32 v{vF}, {LOG2E:#x}, v{vF}")
                g(f"v_exp_f32 v{vF}, v{vF}")
                if s == 0:
                    g(f"v_mul_f32 v{vNum}, v{vF}, v{base+s}")
                    g(f"v_mul_f32 v{vDen}, v{vF}, v{l[s]}")
                else:
                    g(f"v_fmac_f32 v{vNum}, v{vF}, v{base+s}")
                    g(f"v_fmac_f32 v{vDen}, v{vF}, v{l[s]}")
            divide(g, vF, vNum, vDen, vR, vE)
            bf16r(g, vF, vF)
            g(f"v_lshlrev_b32 v{vT}, 3, v0")
            g(f"ds_write_b32 v{vT}, v{vF} offset:{OC + k*2048 + b*4}")
    g("s_waitcnt lgkmcnt(0)")
    g("s_barrier")
    g(f"v_lshrrev_b32 v{vT}, 2, v{vLane}")
    g(f"s_mul_i32 s{sT0}, s{sWave}, 192")
    g(f"v_add_u32 v{vT}, s{sT0}, v{vT}")
    g(f"v_lshlrev_b32 v{vT}, 3, v{vT}")
    vOv = vC
    for i in range(12):
        g(f"ds_read_b64 v[{vOv+2*i}:{vOv+2*i+1}], v{vT} offset:{OC + i*128}")
    for c in range(16):
        g(f"v_mov_b32 v{vAcc+c}, 0")
    g("s_waitcnt lgkmcnt(0)")
    for i in range(12):
        g(f"s_waitcnt vmcnt({11-i})")
        for c in range(4):
            r = vW + 4 * i + c
            g(f"v_lshlrev_b32 v{vT2}, 16, v{r}")
            g(f"v_and_b32 v{vT3}, 0xffff0000, v{r}")
            g(f"v_fmac_f32 v{vAcc+2*c}, v{vT2}, v{vOv+2*i}")
            g(f"v_fmac_f32 v{vAcc+2*c+1}, v{vT3}, v{vOv+2*i}")
            g(f"v_fmac_f32 v{vAcc+8+2*c}, v{vT2}, v{vOv+2*i+1}")
            g(f"v_fmac_f32 v{vAcc+8+2*c+1}, v{vT3}, v{vOv+2*i+1}")
    wave_reduce_64(g, vAcc, vLane, sWave, RED, RED2, vT, vT2, vT3, vW, sT0)
    g("s_barrier")
    g(f"s_cmp_eq_u32 s{sWave}, 0")
    g("s_cbranch_scc0 wo_end")
    g(f"v_lshlrev_b32 v{vT}, 2, v{vLane}")
    for w in range(4):
        g(f"ds_read_b32 v{vW+w}, v{vT} offset:{RED2 + w*256}")
    g("s_waitcnt lgkmcnt(0)")
    g(f"v_add_f32 v{vW}, v{vW}, v{vW+1}")
    g(f"v_add_f32 v{vW+2}, v{vW+2}, v{vW+3}")
    g(f"v_add_f32 v{vW}, v{vW}, v{vW+2}")
    g(f"v_lshrrev_b32 v{vT}, 5, v{vLane}")
    g(f"v_mul_u32_u24 v{vT}, 2560, v{vT}")
    g(f"v_and_b32 v{vT2}, 31, v{vLane}")
    g(f"v_lshlrev_b32 v{vT2}, 2, v{vT2}")
    g(f"v_add_u32 v{vT}, v{vT}, v{vT2}")
    g(f"s_mul_i32 s{sT0}, s{sRb}, 5120")
    g(f"s_lshl_b32 s{sT1}, s{sCb}, 7")
    g(f"s_add_u32 s{sT0}, s{sT0}, s{sT1}")
    g(f"s_add_u32 s{sT0}, s{sT0}, {WS_HP}")
    g(f"buffer_store_dword v{vW}, v{vT}, s[{sWS}:{sWS+3}], s{sT0} offen")
    g.label("wo_end", pad=False)
    g("s_endpgm")
    return L, nv, 40


def wave_reduce_64(g, vAcc, vLane, sWave, RED, RED2, vT, vT2, vT3, vTmp, sT0):
    g(f"v_lshlrev_b32 v{vT}, 6, v0")
    for q in range(4):
        g(f"ds_write_b128 v{vT}, v[{vAcc+4*q}:{vAcc+4*q+3}] offset:{RED + 16*q}")
    g(f"v_bfe_u32 v{vT2}, v{vLane}, 3, 2")
    g(f"v_lshlrev_b32 v{vT2}, 6, v{vT2}")
    g(f"v_lshrrev_b32 v{vT3}, 5, v{vLane}")
    g(f"v_lshlrev_b32 v{vT3}, 5, v{vT3}")
    g(f"v_add_u32 v{vT2}, v{vT2}, v{vT3}")
    g(f"v_and_b32 v{vT3}, 7, v{vLane}")
    g(f"v_lshlrev_b32 v{vT3}, 2, v{vT3}")
    g(f"v_add_u32 v{vT2}, v{vT2}, v{vT3}")
    g(f"s_lshl_b32 s{sT0}, s{sWave}, 12")
    g(f"v_add_u32 v{vT2}, s{sT0}, v{vT2}")
    g("s_waitcnt lgkmcnt(0)")
    for r in range(16):
        g(f"ds_read_b32 v{vTmp+r}, v{vT2} offset:{RED + r*256}")
    g("s_waitcnt lgkmcnt(0)")
    for r in range(1, 16):
        g(f"v_add_f32 v{vTmp}, v{vTmp}, v{vTmp+r}")
    g(f"v_lshlrev_b32 v{vT}, 2, v0")
    g(f"ds_write_b32 v{vT}, v{vTmp} offset:{RED2}")
    g("s_waitcnt lgkmcnt(0)")


def k_ffn(g):
    L = "ffn_kernel"
    header(g, L)
    sX, sW1, sB1, sW2, sWS = 16, 20, 24, 28, 32
    sWave, sT0, sT1, sOff = 36, 37, 38, 39
    sMk = 40
    H, HN, RED, RED2, H1, R3 = 0, 5120, 10240, 30720, 32000, 32768
    vLane, vT, vT2, vT3 = 1, 2, 3, 4
    vAcc = 8
    vW1 = 24
    vW2 = 56
    vHP = 88
    vX = 120
    vH = 124
    vB1 = 122
    vS = 128
    nv = 160
    g("s_cmp_ge_u32 s2, 48")
    g("s_cbranch_scc1 ffn_end")
    g("s_load_dwordx2 s[4:5], s[0:1], 0")
    g("s_load_dwordx4 s[8:11], s[0:1], 48")
    g("s_load_dwordx2 s[12:13], s[0:1], 64")
    g("s_load_dwordx2 s[14:15], s[0:1], 96")
    g(f"v_and_b32 v{vLane}, 63, v0")
    g(f"v_lshrrev_b32 v{vT}, 6, v0")
    g(f"v_readfirstlane_b32 s{sWave}, v{vT}")
    g("s_waitcnt lgkmcnt(0)")
    srd(g, sX, 4, 2560)
    srd(g, sW1, 8, 1966080)
    srd(g, sB1, 10, 3072)
    srd(g, sW2, 12, 1966080)
    srd(g, sWS, 14, WS_SIZE)
    g(f"v_lshlrev_b32 v{vT}, 4, v0")
    for rb in range(8):
        g(f"s_mov_b32 s{sOff}, {WS_HP + rb*5120}")
        g(f"buffer_load_dwordx4 v[{vHP+4*rb}:{vHP+4*rb+3}], v{vT}, s[{sWS}:{sWS+3}], s{sOff} offen")
    g(f"v_lshlrev_b32 v{vT2}, 3, v0")
    g(f"buffer_load_dwordx2 v[{vX}:{vX+1}], v{vT2}, s[{sX}:{sX+3}], 0 offen")
    g(f"v_and_b32 v{vT2}, 31, v{vLane}")
    g(f"v_lshlrev_b32 v{vT2}, 1, v{vT2}")
    g(f"s_lshl_b32 s{sT0}, s2, 6")
    g(f"buffer_load_ushort v{vB1}, v{vT2}, s[{sB1}:{sB1+3}], s{sT0} offen")
    g(f"v_lshrrev_b32 v{vT}, 2, v{vLane}")
    g(f"v_mul_u32_u24 v{vT}, 3072, v{vT}")
    g(f"v_and_b32 v{vT2}, 3, v{vLane}")
    g(f"v_lshlrev_b32 v{vT2}, 4, v{vT2}")
    g(f"v_add_u32 v{vT}, v{vT}, v{vT2}")
    g(f"s_mul_i32 s{sT1}, s{sWave}, {128*3072}")
    g(f"s_add_u32 s{sT1}, s{sT1}, s{sT0}")
    for i in range(8):
        g(f"s_add_u32 s{sOff}, s{sT1}, {i*16*3072}")
        g(f"buffer_load_dwordx4 v[{vW1+4*i}:{vW1+4*i+3}], v{vT}, s[{sW1}:{sW1+3}], s{sOff} offen")
    vRG, vCC = 5, 6
    g(f"v_mul_u32_u24 v{vRG}, 52429, v0")
    g(f"v_lshrrev_b32 v{vRG}, 22, v{vRG}")
    g(f"v_mul_u32_u24 v{vT}, 80, v{vRG}")
    g(f"v_sub_u32 v{vCC}, v0, v{vT}")
    g(f"v_mul_u32_u24 v{vT}, {8*1280}, v{vRG}")
    g(f"v_lshlrev_b32 v{vT2}, 4, v{vCC}")
    g(f"v_add_u32 v{vT}, v{vT}, v{vT2}")
    g(f"s_mul_i32 s{sT1}, s2, {32*1280}")
    for i in range(8):
        g(f"s_add_u32 s{sOff}, s{sT1}, {i*1280}")
        g(f"buffer_load_dwordx4 v[{vW2+4*i}:{vW2+4*i+3}], v{vT}, s[{sW2}:{sW2+3}], s{sOff} offen")
    g("s_waitcnt vmcnt(17)")
    for c in range(4):
        g(f"v_add_f32 v{vH+c}, v{vHP+c}, v{vHP+4+c}")
        for rb in range(2, 8):
            g(f"v_add_f32 v{vH+c}, v{vH+c}, v{vHP+4*rb+c}")
    bf16r2(g, vH, vH + 1, vT)
    bf16r2(g, vH + 2, vH + 3, vT)
    g(f"v_lshlrev_b32 v{vT}, 16, v{vX}")
    g(f"v_add_f32 v{vH}, v{vH}, v{vT}")
    g(f"v_and_b32 v{vT}, 0xffff0000, v{vX}")
    g(f"v_add_f32 v{vH+1}, v{vH+1}, v{vT}")
    g(f"v_lshlrev_b32 v{vT}, 16, v{vX+1}")
    g(f"v_add_f32 v{vH+2}, v{vH+2}, v{vT}")
    g(f"v_and_b32 v{vT}, 0xffff0000, v{vX+1}")
    g(f"v_add_f32 v{vH+3}, v{vH+3}, v{vT}")
    bf16r2(g, vH, vH + 1, vT)
    bf16r2(g, vH + 2, vH + 3, vT)
    g(f"v_lshlrev_b32 v{vT}, 4, v0")
    g(f"ds_write_b128 v{vT}, v[{vH}:{vH+3}] offset:{H}")
    g("s_cmp_eq_u32 s2, 0")
    g("s_cbranch_scc0 ffn_nohh")
    g(f"s_mov_b32 s{sOff}, {WS_HH}")
    g(f"buffer_store_dwordx4 v[{vH}:{vH+3}], v{vT}, s[{sWS}:{sWS+3}], s{sOff} offen")
    g.label("ffn_nohh")
    g("s_waitcnt lgkmcnt(0)")
    g("s_barrier")
    g(f"v_lshlrev_b32 v{vT}, 2, v{vLane}")
    for b in range(2):
        for j in range(10):
            g(f"ds_read_b32 v{vS+10*b+j}, v{vT} offset:{H + b*2560 + j*256}")
    g("s_waitcnt lgkmcnt(0)")
    vMb0, vSd0, vMb1, vSd1 = 148, 149, 150, 151
    ln_stats(g, list(range(vS, vS + 10)), 640, vMb0, vSd0, 152, 153, 154)
    ln_stats(g, list(range(vS + 10, vS + 20)), 640, vMb1, vSd1, 152, 153, 154)
    g(f"v_cmp_le_u32 vcc, 160, v0")
    g(f"s_mov_b64 s[{sMk}:{sMk+1}], vcc")
    g(f"v_cndmask_b32 v{vMb0}, v{vMb0}, v{vMb1}, s[{sMk}:{sMk+1}]")
    g(f"v_cndmask_b32 v{vSd0}, v{vSd0}, v{vSd1}, s[{sMk}:{sMk+1}]")
    for c in range(4):
        ln_apply(g, vH + c, vMb0, vSd0, 152, 153)
    g(f"v_cndmask_b32 v{vT2}, 0, 1, s[{sMk}:{sMk+1}]")
    g(f"v_mul_u32_u24 v{vT3}, 160, v{vT2}")
    g(f"v_sub_u32 v{vT3}, v0, v{vT3}")
    g(f"v_lshlrev_b32 v{vT3}, 5, v{vT3}")
    g(f"v_lshlrev_b32 v{vT2}, 2, v{vT2}")
    g(f"v_add_u32 v{vT3}, v{vT3}, v{vT2}")
    for c in range(4):
        g(f"ds_write_b32 v{vT3}, v{vH+c} offset:{HN + c*8}")
    g("s_waitcnt lgkmcnt(0)")
    g("s_barrier")
    g(f"v_lshrrev_b32 v{vT}, 2, v{vLane}")
    g(f"s_lshl_b32 s{sT0}, s{sWave}, 7")
    g(f"v_add_u32 v{vT}, s{sT0}, v{vT}")
    g(f"v_lshlrev_b32 v{vT}, 3, v{vT}")
    vOv = vHP
    for i in range(8):
        g(f"ds_read_b64 v[{vOv+2*i}:{vOv+2*i+1}], v{vT} offset:{HN + i*128}")
    for c in range(16):
        g(f"v_mov_b32 v{vAcc+c}, 0")
    g("s_waitcnt lgkmcnt(0)")
    g("s_waitcnt vmcnt(8)")
    for i in range(8):
        for c in range(4):
            r = vW1 + 4 * i + c
            g(f"v_lshlrev_b32 v{vT2}, 16, v{r}")
            g(f"v_and_b32 v{vT3}, 0xffff0000, v{r}")
            g(f"v_fmac_f32 v{vAcc+2*c}, v{vT2}, v{vOv+2*i}")
            g(f"v_fmac_f32 v{vAcc+2*c+1}, v{vT3}, v{vOv+2*i}")
            g(f"v_fmac_f32 v{vAcc+8+2*c}, v{vT2}, v{vOv+2*i+1}")
            g(f"v_fmac_f32 v{vAcc+8+2*c+1}, v{vT3}, v{vOv+2*i+1}")
    wave_reduce_64(g, vAcc, vLane, sWave, RED, RED2, vT, vT2, vT3, vW1, sT0)
    g("s_barrier")
    g(f"s_cmp_eq_u32 s{sWave}, 0")
    g("s_cbranch_scc0 ffn_h1_skip")
    g(f"v_lshlrev_b32 v{vT}, 2, v{vLane}")
    for w in range(5):
        g(f"ds_read_b32 v{vW1+w}, v{vT} offset:{RED2 + w*256}")
    g("s_waitcnt lgkmcnt(0)")
    for w in range(1, 5):
        g(f"v_add_f32 v{vW1}, v{vW1}, v{vW1+w}")
    bf16r(g, vW1, vW1)
    g(f"v_lshlrev_b32 v{vB1}, 16, v{vB1}")
    g(f"v_add_f32 v{vW1}, v{vW1}, v{vB1}")
    bf16r(g, vW1, vW1)
    g(f"v_max_f32 v{vW1}, 0, v{vW1}")
    g(f"v_mul_f32 v{vW1}, v{vW1}, v{vW1}")
    bf16r(g, vW1, vW1)
    g(f"v_and_b32 v{vT}, 31, v{vLane}")
    g(f"v_lshlrev_b32 v{vT}, 3, v{vT}")
    g(f"v_lshrrev_b32 v{vT2}, 5, v{vLane}")
    g(f"v_lshlrev_b32 v{vT2}, 2, v{vT2}")
    g(f"v_add_u32 v{vT}, v{vT}, v{vT2}")
    g(f"ds_write_b32 v{vT}, v{vW1} offset:{H1}")
    g("s_waitcnt lgkmcnt(0)")
    g.label("ffn_h1_skip")
    g("s_barrier")
    g(f"v_lshlrev_b32 v{vT}, 6, v{vRG}")
    for i in range(8):
        g(f"ds_read_b64 v[{vOv+2*i}:{vOv+2*i+1}], v{vT} offset:{H1 + i*8}")
    for c in range(16):
        g(f"v_mov_b32 v{vAcc+c}, 0")
    g("s_waitcnt lgkmcnt(0)")
    g("s_waitcnt vmcnt(0)")
    for i in range(8):
        for c in range(4):
            r = vW2 + 4 * i + c
            g(f"v_lshlrev_b32 v{vT2}, 16, v{r}")
            g(f"v_and_b32 v{vT3}, 0xffff0000, v{r}")
            g(f"v_fmac_f32 v{vAcc+2*c}, v{vT2}, v{vOv+2*i}")
            g(f"v_fmac_f32 v{vAcc+2*c+1}, v{vT3}, v{vOv+2*i}")
            g(f"v_fmac_f32 v{vAcc+8+2*c}, v{vT2}, v{vOv+2*i+1}")
            g(f"v_fmac_f32 v{vAcc+8+2*c+1}, v{vT3}, v{vOv+2*i+1}")
    g(f"v_mul_u32_u24 v{vT}, 5120, v{vRG}")
    g(f"v_lshlrev_b32 v{vT2}, 5, v{vCC}")
    g(f"v_add_u32 v{vT}, v{vT}, v{vT2}")
    for b in range(2):
        for q in range(2):
            r = vAcc + 8 * b + 4 * q
            g(f"ds_write_b128 v{vT}, v[{r}:{r+3}] offset:{R3 + b*2560 + q*16}")
    g("s_waitcnt lgkmcnt(0)")
    g("s_barrier")
    g(f"v_lshlrev_b32 v{vT}, 4, v0")
    for rg in range(4):
        g(f"ds_read_b128 v[{vW1+4*rg}:{vW1+4*rg+3}], v{vT} offset:{R3 + rg*5120}")
    g("s_waitcnt lgkmcnt(0)")
    for c in range(4):
        g(f"v_add_f32 v{vW1+c}, v{vW1+c}, v{vW1+4+c}")
        g(f"v_add_f32 v{vW1+8+c}, v{vW1+8+c}, v{vW1+12+c}")
        g(f"v_add_f32 v{vW1+c}, v{vW1+c}, v{vW1+8+c}")
    g(f"s_mul_i32 s{sT0}, s2, 5120")
    g(f"s_add_u32 s{sT0}, s{sT0}, {WS_FP}")
    g(f"buffer_store_dwordx4 v[{vW1}:{vW1+3}], v{vT}, s[{sWS}:{sWS+3}], s{sT0} offen")
    g.label("ffn_end", pad=False)
    g("s_endpgm")
    return L, nv, 48


def k_fin(g):
    L = "fin_kernel"
    header(g, L)
    sB2, sOut, sWS = 16, 20, 24
    sT0, sOff = 28, 29
    vE, vT, vH, vB = 1, 2, 3, 4
    vP = 8
    nv = 64
    g("s_cmp_ge_u32 s2, 20")
    g("s_cbranch_scc1 fin_end")
    g("s_load_dwordx2 s[4:5], s[0:1], 72")
    g("s_load_dwordx2 s[6:7], s[0:1], 80")
    g("s_load_dwordx2 s[8:9], s[0:1], 96")
    g(f"s_lshl_b32 s{sT0}, s2, 6")
    g(f"v_add_u32 v{vE}, s{sT0}, v0")
    g(f"v_lshlrev_b32 v{vT}, 2, v{vE}")
    g("s_waitcnt lgkmcnt(0)")
    srd(g, sB2, 4, 1280)
    srd(g, sOut, 6, 2560)
    srd(g, sWS, 8, WS_SIZE)
    for j in range(48):
        g(f"s_mov_b32 s{sOff}, {WS_FP + j*5120}")
        g(f"buffer_load_dword v{vP+j}, v{vT}, s[{sWS}:{sWS+3}], s{sOff} offen")
    g(f"s_mov_b32 s{sOff}, {WS_HH}")
    g(f"buffer_load_dword v{vH}, v{vT}, s[{sWS}:{sWS+3}], s{sOff} offen")
    g(f"s_cmp_ge_u32 s2, 10")
    g(f"s_cselect_b32 s{sT0}, 640, 0")
    g(f"v_subrev_u32 v{vT}, s{sT0}, v{vE}")
    g(f"v_lshlrev_b32 v{vT}, 1, v{vT}")
    g(f"buffer_load_ushort v{vB}, v{vT}, s[{sB2}:{sB2+3}], 0 offen")
    g("s_waitcnt vmcnt(0)")
    for j in range(1, 48):
        g(f"v_add_f32 v{vP}, v{vP}, v{vP+j}")
    bf16r(g, vP, vP)
    g(f"v_lshlrev_b32 v{vB}, 16, v{vB}")
    g(f"v_add_f32 v{vP}, v{vP}, v{vB}")
    bf16r(g, vP, vP)
    g(f"v_add_f32 v{vP}, v{vP}, v{vH}")
    g(f"v_cvt_pk_bf16_f32 v{vP}, v{vP}, v{vP}")
    g(f"v_lshlrev_b32 v{vT}, 1, v{vE}")
    g(f"buffer_store_short v{vP}, v{vT}, s[{sOut}:{sOut+3}], 0 offen")
    g.label("fin_end", pad=False)
    g("s_endpgm")
    return L, nv, 40


def build(NBUF=10, nt=True):
    g = Gen()
    head = open(f"cdna_kernels/{NAME}.s.ref").read().split("; Override launch")[0]
    g.raw(head.rstrip("\n"))
    g.raw("; @launch kernel=attn_kernel grid=(256,1,1) block=(1024,1,1) lds=98304")
    g.raw("; @launch kernel=wo_kernel grid=(160,1,1) block=(256,1,1) lds=25600")
    g.raw("; @launch kernel=ffn_kernel grid=(48,1,1) block=(320,1,1) lds=53248")
    g.raw("; @launch kernel=fin_kernel grid=(20,1,1) block=(64,1,1) lds=0")
    g.raw('.amdgcn_target "amdgcn-amd-amdhsa--gfx950"')
    g.raw(".text")
    descs = []
    for fn, kw in ((k_attn, dict(NBUF=NBUF, nt=nt)), (k_wo, {}), (k_ffn, {}), (k_fin, {})):
        g.wr = {}
        g.store_data = {}
        descs.append(fn(g, **kw))
    g.raw('.section .rodata,"a"')
    for L, nv, ns in descs:
        g.raw(".p2align 6")
        g.raw(descriptor(L, nv, ns).rstrip("\n"))
    return g.text()


if __name__ == "__main__":
    import struct
    import numpy as np
    assert struct.unpack("<I", struct.pack("<f", 192 ** -0.5))[0] == SCALE, hex(struct.unpack("<I", struct.pack("<f", 192 ** -0.5))[0])
    assert struct.unpack("<I", struct.pack("<f", 1 / 640))[0] == INV640
    assert struct.unpack("<I", struct.pack("<f", 1e-5))[0] == EPS
    for r in range(768):
        assert (r * 43691) >> 23 == r // 192
    for t in range(320):
        assert (t * 52429) >> 22 == t // 80
    for w in range(160):
        assert (w * 3277) >> 16 == w // 20
    out = sys.argv[1] if len(sys.argv) > 1 else f"cdna_kernels/{NAME}.s"
    kw = {}
    for a in sys.argv[2:]:
        k, v = a.split("=")
        kw[k] = int(v)
    open(out, "w").write(build(**kw))
    print("wrote", out)
```

```python
import sys
from asmgen import Gen

NAME = "sequential_preLN__mha_block_cached__dense_activation_squared_relu__decode"

WS_PART = 0
WS_HP = 0x40000
WS_FP = 0x50000
WS_HH = 0x90000
WS_SIZE = 0x100000

LOG2E = 0x3FB8AA3B
SCALE = 0x3D93CD3A
INV640 = 0x3ACCCCCD
EPS = 0x3727C5AC


def srd(g, d, base, size):
    g(f"s_mov_b32 s{d}, s{base}")
    g(f"s_and_b32 s{d+1}, s{base+1}, 0xffff")
    g(f"s_mov_b32 s{d+2}, {size}")
    g(f"s_mov_b32 s{d+3}, 0x00020000")


def allreduce(g, op, v, t):
    g(f"{op}_dpp v{v}, v{v}, v{v} quad_perm:[1,0,3,2] row_mask:0xf bank_mask:0xf")
    g(f"{op}_dpp v{v}, v{v}, v{v} quad_perm:[2,3,0,1] row_mask:0xf bank_mask:0xf")
    g(f"{op}_dpp v{v}, v{v}, v{v} row_half_mirror row_mask:0xf bank_mask:0xf")
    g(f"{op}_dpp v{v}, v{v}, v{v} row_mirror row_mask:0xf bank_mask:0xf")
    g(f"v_mov_b32 v{t}, v{v}")
    g(f"v_permlane16_swap_b32 v{v}, v{t}")
    g(f"{op} v{v}, v{v}, v{t}")
    g(f"v_mov_b32 v{t}, v{v}")
    g(f"v_permlane32_swap_b32 v{v}, v{t}")
    g(f"{op} v{v}, v{v}, v{t}")


def bf16r(g, dst, src):
    g(f"v_cvt_pk_bf16_f32 v{dst}, v{src}, v{src}")
    g(f"v_lshlrev_b32 v{dst}, 16, v{dst}")


def bf16r2(g, a, b, t):
    g(f"v_cvt_pk_bf16_f32 v{t}, v{a}, v{b}")
    g(f"v_lshlrev_b32 v{a}, 16, v{t}")
    g(f"v_and_b32 v{b}, 0xffff0000, v{t}")


def divide(g, dst, num, den, r, e):
    g(f"v_rcp_f32 v{r}, v{den}")
    g(f"v_mul_f32 v{dst}, v{num}, v{r}")
    g(f"v_fma_f32 v{e}, -v{dst}, v{den}, v{num}")
    g(f"v_fma_f32 v{dst}, v{e}, v{r}, v{dst}")


def ln_stats(g, xe, n, mb, sd, t0, t1, t2):
    g(f"v_add_f32 v{t0}, v{xe[0]}, v{xe[1]}")
    for r in xe[2:]:
        g(f"v_add_f32 v{t0}, v{t0}, v{r}")
    allreduce(g, "v_add_f32", t0, t1)
    g(f"v_mul_f32 v{t0}, {INV640:#x}, v{t0}")
    g(f"v_sub_f32 v{t1}, v{xe[0]}, v{t0}")
    g(f"v_mul_f32 v{t2}, v{t1}, v{t1}")
    for r in xe[1:]:
        g(f"v_sub_f32 v{t1}, v{r}, v{t0}")
        g(f"v_fmac_f32 v{t2}, v{t1}, v{t1}")
    allreduce(g, "v_add_f32", t2, t1)
    g(f"v_mul_f32 v{t2}, {INV640:#x}, v{t2}")
    bf16r(g, mb, t0)
    bf16r(g, t2, t2)
    g(f"v_add_f32 v{t2}, {EPS:#x}, v{t2}")
    bf16r(g, t2, t2)
    g(f"v_sqrt_f32 v{t2}, v{t2}")
    bf16r(g, sd, t2)


def ln_apply(g, x, mb, sd, r, e):
    g(f"v_sub_f32 v{x}, v{x}, v{mb}")
    bf16r(g, x, x)
    g(f"v_mov_b32 v{e}, v{x}")
    g(f"v_rcp_f32 v{r}, v{sd}")
    g(f"v_mul_f32 v{x}, v{e}, v{r}")
    g(f"v_fma_f32 v{e}, -v{x}, v{sd}, v{e}")
    g(f"v_fma_f32 v{x}, v{e}, v{r}, v{x}")
    bf16r(g, x, x)


STAMPS = False
STAMP_WG = 0


def stamp(g, idx):
    if not STAMPS:
        return
    g(f"s_memrealtime s[{70+2*idx}:{71+2*idx}]")
    g("s_waitcnt lgkmcnt(0)")


def stamp_flush(g, n, vt=0):
    if not STAMPS:
        return
    g("s_load_dwordx2 s[60:61], s[0:1], 88")
    g("s_waitcnt lgkmcnt(0)")
    srd(g, 64, 60, 256)
    g(f"s_mov_b32 s62, 0")
    for i in range(n):
        g(f"v_mov_b32 v{vt}, s{70+2*i}")
        g(f"v_mov_b32 v{vt+1}, {i*4}")
        g(f"buffer_store_dword v{vt}, v{vt+1}, s[64:67], 0 offen")
    g("s_waitcnt vmcnt(0)")


def header(g, label):
    g.raw(".p2align 8")
    g.raw(f".type {label},@function")
    g.raw(f"{label}:")


def descriptor(label, nvgpr, nsgpr):
    acc = (nvgpr + 3) // 4 * 4
    if STAMPS:
        nsgpr = 100
    return f""".amdhsa_kernel {label}
  .amdhsa_next_free_vgpr {nvgpr}
  .amdhsa_next_free_sgpr {nsgpr}
  .amdhsa_accum_offset {acc}
  .amdhsa_group_segment_fixed_size 0
  .amdhsa_kernarg_size 104
  .amdhsa_user_sgpr_count 2
  .amdhsa_user_sgpr_kernarg_segment_ptr 1
  .amdhsa_system_sgpr_workgroup_id_x 1
  .amdhsa_float_denorm_mode_32 3
.end_amdhsa_kernel
"""


def k_attn(g, NBUF=16, nt=True):
    L = "attn_kernel"
    header(g, L)
    NT = " nt" if nt else ""
    assert 64 % NBUF == 0
    sX, sK, sV, sWQ, sWS = 16, 20, 24, 28, 32
    sWave, sH, sB, sS, sT0, sT1, sKV, sOff, sSelLo, sSelHi = 36, 37, 38, 39, 40, 41, 42, 43, 44, 45
    sM1, sM0, sWqb, sRec = 46, 48, 50, 51
    sCur, sNext, sNextIdx = 52, 53, 54
    sEx = 56
    XN, QB, ML, CNT, PW, QP = 0, 2560, 3072, 3328, 4096, 8192
    vLane, vL32, vHalf, vKV, vT = 1, 2, 3, 4, 5
    vQ = 6
    vPA = 9
    vAcc = 10
    vS = 16
    vMr, vLr = 18, 19
    vP = 20
    vLA, vLB, vLC, vLD = 22, 24, 26, 28
    vT2, vT3 = 30, 31
    vPm = 32
    vPw, vPr = 34, 35
    vPPa, vPPb = 36, 40
    vRing = 44
    NPOOL = max(NBUF, 20)
    nv = vRing + 4 * NPOOL
    assert nv <= 128, nv

    g("s_cmp_ge_u32 s2, 256")
    g("s_cbranch_scc1 attn_end")
    stamp(g, 0)
    g("s_load_dwordx2 s[4:5], s[0:1], 0")
    g("s_load_dwordx4 s[8:11], s[0:1], 8")
    g("s_load_dwordx2 s[12:13], s[0:1], 24")
    g("s_load_dwordx2 s[14:15], s[0:1], 96")
    g(f"v_and_b32 v{vLane}, 63, v0")
    g(f"v_and_b32 v{vL32}, 31, v0")
    g(f"v_bfe_u32 v{vHalf}, v0, 5, 1")
    g(f"v_lshrrev_b32 v{vT}, 6, v0")
    g(f"v_readfirstlane_b32 s{sWave}, v{vT}")
    g(f"s_and_b32 s{sT0}, s2, 7")
    g(f"s_lshr_b32 s{sT1}, s2, 3")
    g(f"s_lshl_b32 s{sH}, s{sT0}, 2")
    g(f"s_and_b32 s{sT0}, s{sT1}, 3")
    g(f"s_add_u32 s{sH}, s{sH}, s{sT0}")
    g(f"s_lshr_b32 s{sT1}, s{sT1}, 2")
    g(f"s_lshr_b32 s{sB}, s{sT1}, 2")
    g(f"s_and_b32 s{sS}, s{sT1}, 3")
    g(f"s_lshl_b32 s{sRec}, s{sB}, 5")
    g(f"s_add_u32 s{sRec}, s{sRec}, s{sH}")
    g(f"s_lshl_b32 s{sRec}, s{sRec}, 2")
    g(f"s_add_u32 s{sRec}, s{sRec}, s{sS}")
    g(f"s_mul_i32 s{sKV}, s{sRec}, 786432")
    g(f"s_mov_b32 s{sSelLo}, 0x05040100")
    g(f"s_mov_b32 s{sSelHi}, 0x07060302")
    g(f"s_mov_b32 s{sM1}, 0xcccccccc")
    g(f"s_mov_b32 s{sM1+1}, 0xcccccccc")
    g(f"s_mov_b32 s{sM0}, 0xaaaaaaaa")
    g(f"s_mov_b32 s{sM0+1}, 0xaaaaaaaa")
    g(f"s_mul_i32 s{sWqb}, s{sWave}, 491520")
    g(f"s_mul_i32 s{sT0}, s{sH}, 384")
    g(f"s_add_u32 s{sWqb}, s{sWqb}, s{sT0}")
    g(f"s_mul_i32 s{sCur}, s{sWave}, 24576")
    g(f"s_add_u32 s{sCur}, s{sCur}, s{sKV}")
    g(f"v_mul_u32_u24 v{vT2}, 12, v{vL32}")
    g(f"v_mul_u32_u24 v{vKV}, 384, v{vHalf}")
    g(f"v_add_u32 v{vKV}, v{vKV}, v{vT2}")
    vWo = 42
    g(f"v_mul_u32_u24 v{vWo}, 245760, v{vHalf}")
    g(f"v_add_u32 v{vWo}, v{vWo}, v{vT2}")
    g(f"v_lshlrev_b32 v{vT}, 2, v{vLane}")
    g(f"v_mov_b32 v{vT2}, 16")
    g(f"v_mov_b32 v{vT3}, 0")
    g(f"ds_write_b32 v{vT3}, v{vT2} offset:{CNT}")
    g("s_waitcnt lgkmcnt(0)")
    srd(g, sX, 4, 2560)
    srd(g, sWQ, 12, 7864320)
    g(f"s_mul_i32 s{sT0}, s{sB}, 1280")
    vXd = 36
    for j in range(5):
        g(f"buffer_load_dword v{vXd+j}, v{vT}, s[{sX}:{sX+3}], s{sT0} offen offset:{j*256}")
    for j in range(20):
        g(f"s_add_u32 s{sOff}, s{sWqb}, {j*12288}")
        r = vRing + 4 * j
        g(f"buffer_load_dwordx3 v[{r}:{r+2}], v{vWo}, s[{sWQ}:{sWQ+3}], s{sOff} offen")
    srd(g, sK, 8, 201326592)
    srd(g, sV, 10, 201326592)
    srd(g, sWS, 14, WS_SIZE)

    def kv_load(t, base):
        s = sK if t < 32 else sV
        i = t % 32
        r = vRing + 4 * (t % NBUF)
        g(f"s_add_u32 s{sOff}, s{base}, {i*768}")
        g(f"buffer_load_dwordx3 v[{r}:{r+2}], v{vKV}, s[{s}:{s+3}], s{sOff} offen{NT}")

    g(f"s_waitcnt vmcnt(20)")
    xe = list(range(16, 26))
    for j in range(5):
        g(f"v_lshlrev_b32 v{xe[2*j]}, 16, v{vXd+j}")
        g(f"v_and_b32 v{xe[2*j+1]}, 0xffff0000, v{vXd+j}")
    vMb, vSd = 26, 27
    ln_stats(g, xe, 640, vMb, vSd, 28, 29, 31)
    for r in xe:
        ln_apply(g, r, vMb, vSd, 28, 29)
    g(f"v_lshlrev_b32 v{vT}, 3, v{vLane}")
    for j in range(5):
        g(f"ds_write_b64 v{vT}, v[{xe[2*j]}:{xe[2*j+1]}] offset:{XN + j*512}")
    g(f"v_lshrrev_b32 v{vT}, 5, v0")
    g(f"v_mul_u32_u24 v{vT}, 80, v{vT}")
    g("s_waitcnt lgkmcnt(0)")
    xr = 16
    for j in range(5):
        g(f"ds_read_b128 v[{xr+4*j}:{xr+4*j+3}], v{vT} offset:{XN + j*16}")
    for c in range(6):
        g(f"v_mov_b32 v{vAcc+c}, 0")
    g("s_waitcnt lgkmcnt(0)")
    for j in range(20):
        g(f"s_waitcnt vmcnt({19 - j + min(j, NBUF)})")
        r = vRing + 4 * j
        for c in range(3):
            g(f"v_lshlrev_b32 v{36}, 16, v{r+c}")
            g(f"v_and_b32 v{37}, 0xffff0000, v{r+c}")
            g(f"v_fmac_f32 v{vAcc+2*c}, v{36}, v{xr+j}")
            g(f"v_fmac_f32 v{vAcc+2*c+1}, v{37}, v{xr+j}")
        if j < NBUF:
            kv_load(j, sCur)
    g(f"v_lshrrev_b32 v{vT3}, 5, v0")
    g(f"v_mul_u32_u24 v{vT}, 768, v{vT3}")
    g(f"v_mul_u32_u24 v{vT2}, 24, v{vL32}")
    g(f"v_add_u32 v{vPA}, v{vT}, v{vT2}")
    for c in range(3):
        g(f"ds_write_b64 v{vPA}, v[{vAcc+2*c}:{vAcc+2*c+1}] offset:{QP + c*8}")
    g("s_waitcnt lgkmcnt(0)")
    g("s_barrier")
    g(f"s_cmp_lt_u32 s{sWave}, 3")
    g("s_cbranch_scc0 attn_q2_skip")
    g(f"v_lshlrev_b32 v{vT}, 2, v0")
    rr = 10
    for r in range(32):
        g(f"ds_read_b32 v{rr+r}, v{vT} offset:{QP + r*768}")
    g("s_waitcnt lgkmcnt(0)")
    for r in range(1, 32):
        g(f"v_add_f32 v{rr}, v{rr}, v{rr+r}")
    g(f"v_cvt_pk_bf16_f32 v{rr}, v{rr}, v{rr}")
    g(f"v_lshlrev_b32 v{vT}, 1, v0")
    g(f"ds_write_b16 v{vT}, v{rr} offset:{QB}")
    g("s_waitcnt lgkmcnt(0)")
    g.label("attn_q2_skip")
    g("s_barrier")
    g(f"v_mul_u32_u24 v{vT}, 12, v{vL32}")
    for c in range(3):
        g(f"ds_read_b32 v{vQ+c}, v{vT} offset:{QB + 4*c}")
    g(f"v_bfrev_b32 v{vT2}, v{vL32}")
    g(f"v_lshrrev_b32 v{vT2}, 26, v{vT2}")
    g(f"v_lshlrev_b32 v{vT3}, 6, v{vHalf}")
    g(f"s_lshl_b32 s{sT0}, s{sWave}, 7")
    g(f"v_add_u32 v{vPr}, s{sT0}, v{vT3}")
    g(f"v_add_u32 v{vPw}, v{vPr}, v{vT2}")
    for c in range(6):
        g(f"v_mov_b32 v{vAcc+c}, 0")
    g(f"v_mov_b32 v{vMr}, 0xff800000")
    g(f"v_mov_b32 v{vLr}, 0")
    g("s_waitcnt lgkmcnt(0)")
    stamp(g, 1)

    g.label("attn_loop")
    g(f"s_mov_b64 s[{sEx}:{sEx+1}], exec")
    g("s_mov_b64 exec, 1")
    g(f"v_mov_b32 v{vT2}, 1")
    g(f"v_mov_b32 v{vT3}, 0")
    g(f"ds_add_rtn_u32 v{vS+1}, v{vT3}, v{vT2} offset:{CNT}")
    g(f"s_mov_b64 exec, s[{sEx}:{sEx+1}]")
    for t in range(32):
        i5 = t
        r = vRing + 4 * (t % NBUF)
        P = vP + (t & 1)
        g(f"s_waitcnt vmcnt({NBUF-1})")
        g(f"v_dot2_f32_bf16 v{P}, v{r}, v{vQ}, 0")
        g(f"v_dot2_f32_bf16 v{P}, v{r+1}, v{vQ+1}, v{P}")
        g(f"v_dot2_f32_bf16 v{P}, v{r+2}, v{vQ+2}, v{P}")
        kv_load(t + NBUF, sCur)
        if i5 & 1:
            g(f"v_permlane16_swap_b32 v{vP}, v{vP+1}")
            g(f"v_add_f32 v{vLA+((i5>>1)&1)}, v{vP}, v{vP+1}")
        if (i5 & 3) == 3:
            d = vLB + ((i5 >> 2) & 1)
            g(f"v_add_f32_dpp v{d}, v{vLA}, v{vLA} row_ror:8 row_mask:0xf bank_mask:0x3")
            g(f"v_add_f32_dpp v{d}, v{vLA+1}, v{vLA+1} row_ror:8 row_mask:0xf bank_mask:0xc")
        if (i5 & 7) == 7:
            d = vLC + ((i5 >> 3) & 1)
            g(f"v_add_f32_dpp v{d}, v{vLB}, v{vLB} row_shl:4 row_mask:0xf bank_mask:0x5")
            g(f"v_add_f32_dpp v{d}, v{vLB+1}, v{vLB+1} row_shr:4 row_mask:0xf bank_mask:0xa")
        if (i5 & 15) == 15:
            d = vLD + ((i5 >> 4) & 1)
            g(f"v_add_f32_dpp v{vT2}, v{vLC}, v{vLC} quad_perm:[2,3,0,1] row_mask:0xf bank_mask:0xf")
            g(f"v_add_f32_dpp v{vT3}, v{vLC+1}, v{vLC+1} quad_perm:[2,3,0,1] row_mask:0xf bank_mask:0xf")
            g(f"v_cndmask_b32 v{d}, v{vT2}, v{vT3}, s[{sM1}:{sM1+1}]")
        if i5 == 31:
            g(f"v_add_f32_dpp v{vT2}, v{vLD}, v{vLD} quad_perm:[1,0,3,2] row_mask:0xf bank_mask:0xf")
            g(f"v_add_f32_dpp v{vT3}, v{vLD+1}, v{vLD+1} quad_perm:[1,0,3,2] row_mask:0xf bank_mask:0xf")
            g(f"v_cndmask_b32 v{vS}, v{vT2}, v{vT3}, s[{sM0}:{sM0+1}]")
    bf16r(g, vS, vS)
    g(f"v_mul_f32 v{vS}, {SCALE:#x}, v{vS}")
    bf16r(g, vS, vS)
    vCm, vAl = vLA, vLA + 1
    g(f"v_mov_b32 v{vCm}, v{vS}")
    allreduce(g, "v_max_f32", vCm, vT2)
    g(f"v_max_f32 v{vCm}, v{vCm}, v{vMr}")
    g(f"v_sub_f32 v{vAl}, v{vMr}, v{vCm}")
    g(f"v_mul_f32 v{vAl}, {LOG2E:#x}, v{vAl}")
    g(f"v_exp_f32 v{vAl}, v{vAl}")
    g(f"v_sub_f32 v{vS}, v{vS}, v{vCm}")
    g(f"v_mul_f32 v{vS}, {LOG2E:#x}, v{vS}")
    g(f"v_exp_f32 v{vS}, v{vS}")
    g(f"v_mov_b32 v{vMr}, v{vCm}")
    g(f"v_fma_f32 v{vLr}, v{vLr}, v{vAl}, v{vS}")
    g(f"v_cvt_pk_bf16_f32 v{vT}, v{vS}, v{vS}")
    g(f"ds_write_b16 v{vPw}, v{vT} offset:{PW}")
    for c in range(6):
        g(f"v_mul_f32 v{vAcc+c}, v{vAcc+c}, v{vAl}")
    g("s_waitcnt lgkmcnt(0)")
    g(f"ds_read_b128 v[{vPPa}:{vPPa+3}], v{vPr} offset:{PW}")
    g(f"ds_read_b128 v[{vPPb}:{vPPb+3}], v{vPr} offset:{PW+16}")
    g(f"v_readfirstlane_b32 s{sNextIdx}, v{vS+1}")
    g(f"s_mul_i32 s{sNext}, s{sNextIdx}, 24576")
    g(f"s_add_u32 s{sNext}, s{sNext}, s{sKV}")
    g(f"s_cmp_lt_u32 s{sNextIdx}, 32")
    g(f"s_cselect_b32 s{sNext}, s{sNext}, 0x80000000")
    for j in range(16):
        t = 32 + 2 * j
        q4 = j // 4
        PP = (vPPa if (q4 & 1) == 0 else vPPb) + (j % 4)
        if j % 4 == 0:
            if q4 + 1 < 4:
                g("s_waitcnt lgkmcnt(1)")
            else:
                g("s_waitcnt lgkmcnt(0)")
        ra = vRing + 4 * (t % NBUF)
        rb = vRing + 4 * ((t + 1) % NBUF)
        g(f"s_waitcnt vmcnt({NBUF-2})")
        for c in range(3):
            g(f"v_perm_b32 v{vPm}, v{rb+c}, v{ra+c}, s{sSelLo}")
            g(f"v_perm_b32 v{vPm+1}, v{rb+c}, v{ra+c}, s{sSelHi}")
            g(f"v_dot2_f32_bf16 v{vAcc+2*c}, v{vPm}, v{PP}, v{vAcc+2*c}")
            g(f"v_dot2_f32_bf16 v{vAcc+2*c+1}, v{vPm+1}, v{PP}, v{vAcc+2*c+1}")
        for tt in (t + NBUF, t + 1 + NBUF):
            if tt < 64:
                kv_load(tt, sCur)
            else:
                kv_load(tt - 64, sNext)
        if j % 4 == 3 and q4 + 2 < 4:
            d = vPPa if (q4 & 1) == 0 else vPPb
            g(f"ds_read_b128 v[{d}:{d+3}], v{vPr} offset:{PW + (q4+2)*16}")
    g(f"s_mov_b32 s{sCur}, s{sNext}")
    g(f"s_cmp_lt_u32 s{sNextIdx}, 32")
    g("s_cbranch_scc1 attn_loop")
    stamp(g, 3)
    allreduce(g, "v_add_f32", vLr, vT2)
    for c in range(3):
        g(f"ds_write_b64 v{vPA}, v[{vAcc+2*c}:{vAcc+2*c+1}] offset:{QP + c*8}")
    g(f"s_lshl_b32 s{sT0}, s{sWave}, 3")
    g(f"v_mov_b32 v{vT}, s{sT0}")
    g(f"ds_write_b64 v{vT}, v[{vMr}:{vMr+1}] offset:{ML}")
    g("s_waitcnt vmcnt(0) lgkmcnt(0)")
    g("s_barrier")
    g(f"s_cmp_lt_u32 s{sWave}, 3")
    g("s_cbranch_scc0 attn_end")
    rm = vRing
    ro = vRing + 32
    g(f"v_mov_b32 v{vT}, 0")
    for w in range(0, 16, 2):
        g(f"ds_read_b128 v[{rm+2*w}:{rm+2*w+3}], v{vT} offset:{ML + 8*w}")
    g(f"v_lshlrev_b32 v{vT}, 2, v0")
    for r in range(32):
        g(f"ds_read_b32 v{ro+r}, v{vT} offset:{QP + r*768}")
    g("s_waitcnt lgkmcnt(0)")
    vMM, vLL, vO, vF = 16, 17, 18, 19
    g(f"v_max_f32 v{vMM}, v{rm}, v{rm+2}")
    for w in range(2, 16):
        g(f"v_max_f32 v{vMM}, v{vMM}, v{rm+2*w}")
    g(f"v_mov_b32 v{vLL}, 0")
    g(f"v_mov_b32 v{vO}, 0")
    for w in range(16):
        g(f"v_sub_f32 v{vF}, v{rm+2*w}, v{vMM}")
        g(f"v_mul_f32 v{vF}, {LOG2E:#x}, v{vF}")
        g(f"v_exp_f32 v{vF}, v{vF}")
        g(f"v_add_f32 v{vT2}, v{ro+2*w}, v{ro+2*w+1}")
        g(f"v_fmac_f32 v{vLL}, v{vF}, v{rm+2*w+1}")
        g(f"v_fmac_f32 v{vO}, v{vF}, v{vT2}")
    g(f"s_lshl_b32 s{sT0}, s{sRec}, 10")
    g(f"buffer_store_dword v{vO}, v{vT}, s[{sWS}:{sWS+3}], s{sT0} offen offset:{WS_PART}")
    g(f"v_mov_b32 v{vT}, 0")
    g(f"buffer_store_dwordx2 v[{vMM}:{vMM+1}], v{vT}, s[{sWS}:{sWS+3}], s{sT0} offen offset:{WS_PART+768}")
    stamp(g, 7)
    if STAMPS:
        g("v_mov_b32 v100, s70")
        g("v_mov_b32 v101, s84")
        g("s_lshl_b32 s62, s2, 3")
        g("s_add_u32 s62, s62, 0xA0000")
        g("v_mov_b32 v102, 0")
        g(f"buffer_store_dwordx2 v[100:101], v102, s[{sWS}:{sWS+3}], s62 offen")
        g("s_cmp_eq_u32 s2, STAMP_WG".replace("STAMP_WG", str(STAMP_WG)))
        g("s_cbranch_scc0 attn_end")
        g(f"s_cmp_eq_u32 s{sWave}, 0")
        g("s_cbranch_scc0 attn_end")
    stamp_flush(g, 8, 100)
    g.label("attn_end", pad=False)
    g("s_endpgm")
    return L, nv, 60


def k_wo(g):
    L = "wo_kernel"
    header(g, L)
    sWO, sWS = 16, 20
    sRb, sCb, sWave, sT0, sT1, sOff = 24, 25, 26, 27, 28, 29
    OC, RED, RED2 = 0, 8192, 24576
    vLane, vT, vT2, vT3 = 1, 2, 3, 4
    vWoOff = 5
    vAcc = 8
    vW = 24
    vC = 72
    vOo, vMo = 144, 150
    nv = 160
    g("s_cmp_ge_u32 s2, 160")
    g("s_cbranch_scc1 wo_end")
    stamp(g, 0)
    g("s_load_dwordx2 s[4:5], s[0:1], 32")
    g("s_load_dwordx2 s[6:7], s[0:1], 96")
    g(f"v_and_b32 v{vLane}, 63, v0")
    g(f"v_lshrrev_b32 v{vT}, 6, v0")
    g(f"v_readfirstlane_b32 s{sWave}, v{vT}")
    g(f"s_mul_i32 s{sRb}, s2, 3277")
    g(f"s_lshr_b32 s{sRb}, s{sRb}, 16")
    g(f"s_mul_i32 s{sT0}, s{sRb}, 20")
    g(f"s_sub_u32 s{sCb}, s2, s{sT0}")
    g(f"v_lshrrev_b32 v{vT}, 2, v{vLane}")
    g(f"v_mul_u32_u24 v{vWoOff}, 1280, v{vT}")
    g(f"v_and_b32 v{vT2}, 3, v{vLane}")
    g(f"v_lshlrev_b32 v{vT2}, 4, v{vT2}")
    g(f"v_add_u32 v{vWoOff}, v{vWoOff}, v{vT2}")
    for k in range(3):
        g(f"v_add_u32 v{vT}, {k*256}, v0")
        g(f"v_mul_u32_u24 v{vT2}, 43691, v{vT}")
        g(f"v_lshrrev_b32 v{vT2}, 23, v{vT2}")
        g(f"v_mul_u32_u24 v{vT3}, 192, v{vT2}")
        g(f"v_sub_u32 v{vT3}, v{vT}, v{vT3}")
        g(f"v_lshlrev_b32 v{vMo+k}, 12, v{vT2}")
        g(f"v_lshlrev_b32 v{vT3}, 2, v{vT3}")
        g(f"v_add_u32 v{vOo+k}, v{vMo+k}, v{vT3}")
    g("s_waitcnt lgkmcnt(0)")
    srd(g, sWO, 4, 7864320)
    srd(g, sWS, 6, WS_SIZE)
    for b in range(2):
        g(f"s_lshl_b32 s{sT0}, s{sRb}, 14")
        if b:
            g(f"s_add_u32 s{sT0}, s{sT0}, {32*4096}")
        for k in range(3):
            base = vC + (b * 3 + k) * 12
            for s in range(4):
                g(f"buffer_load_dword v{base+s}, v{vOo+k}, s[{sWS}:{sWS+3}], s{sT0} offen offset:{s*1024}")
            for s in range(4):
                g(f"buffer_load_dwordx2 v[{base+4+2*s}:{base+5+2*s}], v{vMo+k}, s[{sWS}:{sWS+3}], s{sT0} offen offset:{s*1024+768}")
    g(f"s_mul_i32 s{sT0}, s{sRb}, {768*1280}")
    g(f"s_mul_i32 s{sT1}, s{sWave}, {192*1280}")
    g(f"s_add_u32 s{sT0}, s{sT0}, s{sT1}")
    g(f"s_lshl_b32 s{sT1}, s{sCb}, 6")
    g(f"s_add_u32 s{sT0}, s{sT0}, s{sT1}")
    for i in range(12):
        g(f"s_add_u32 s{sOff}, s{sT0}, {i*16*1280}")
        g(f"buffer_load_dwordx4 v[{vW+4*i}:{vW+4*i+3}], v{vWoOff}, s[{sWO}:{sWO+3}], s{sOff} offen")
    stamp(g, 1)
    g("s_waitcnt vmcnt(12)")
    stamp(g, 2)
    vM, vF, vNum, vDen, vR, vE = 6, 7, 152, 153, 154, 155
    for b in range(2):
        for k in range(3):
            base = vC + (b * 3 + k) * 12
            m = [base + 4 + 2 * s for s in range(4)]
            l = [base + 5 + 2 * s for s in range(4)]
            g(f"v_max_f32 v{vM}, v{m[0]}, v{m[1]}")
            g(f"v_max3_f32 v{vM}, v{vM}, v{m[2]}, v{m[3]}")
            for s in range(4):
                g(f"v_sub_f32 v{vF}, v{m[s]}, v{vM}")
                g(f"v_mul_f32 v{vF}, {LOG2E:#x}, v{vF}")
                g(f"v_exp_f32 v{vF}, v{vF}")
                if s == 0:
                    g(f"v_mul_f32 v{vNum}, v{vF}, v{base+s}")
                    g(f"v_mul_f32 v{vDen}, v{vF}, v{l[s]}")
                else:
                    g(f"v_fmac_f32 v{vNum}, v{vF}, v{base+s}")
                    g(f"v_fmac_f32 v{vDen}, v{vF}, v{l[s]}")
            divide(g, vF, vNum, vDen, vR, vE)
            bf16r(g, vF, vF)
            g(f"v_lshlrev_b32 v{vT}, 3, v0")
            g(f"ds_write_b32 v{vT}, v{vF} offset:{OC + k*2048 + b*4}")
    g("s_waitcnt lgkmcnt(0)")
    g("s_barrier")
    stamp(g, 3)
    g(f"v_lshrrev_b32 v{vT}, 2, v{vLane}")
    g(f"s_mul_i32 s{sT0}, s{sWave}, 192")
    g(f"v_add_u32 v{vT}, s{sT0}, v{vT}")
    g(f"v_lshlrev_b32 v{vT}, 3, v{vT}")
    vOv = vC
    for i in range(12):
        g(f"ds_read_b64 v[{vOv+2*i}:{vOv+2*i+1}], v{vT} offset:{OC + i*128}")
    for c in range(16):
        g(f"v_mov_b32 v{vAcc+c}, 0")
    g("s_waitcnt lgkmcnt(0)")
    for i in range(12):
        g(f"s_waitcnt vmcnt({11-i})")
        for c in range(4):
            r = vW + 4 * i + c
            g(f"v_lshlrev_b32 v{vT2}, 16, v{r}")
            g(f"v_and_b32 v{vT3}, 0xffff0000, v{r}")
            g(f"v_fmac_f32 v{vAcc+2*c}, v{vT2}, v{vOv+2*i}")
            g(f"v_fmac_f32 v{vAcc+2*c+1}, v{vT3}, v{vOv+2*i}")
            g(f"v_fmac_f32 v{vAcc+8+2*c}, v{vT2}, v{vOv+2*i+1}")
            g(f"v_fmac_f32 v{vAcc+8+2*c+1}, v{vT3}, v{vOv+2*i+1}")
    stamp(g, 4)
    wave_reduce_64(g, vAcc, vLane, sWave, RED, RED2, vT, vT2, vT3, vW, sT0)
    g("s_barrier")
    g(f"s_cmp_eq_u32 s{sWave}, 0")
    g("s_cbranch_scc0 wo_end")
    g(f"v_lshlrev_b32 v{vT}, 2, v{vLane}")
    for w in range(4):
        g(f"ds_read_b32 v{vW+w}, v{vT} offset:{RED2 + w*256}")
    g("s_waitcnt lgkmcnt(0)")
    g(f"v_add_f32 v{vW}, v{vW}, v{vW+1}")
    g(f"v_add_f32 v{vW+2}, v{vW+2}, v{vW+3}")
    g(f"v_add_f32 v{vW}, v{vW}, v{vW+2}")
    g(f"v_lshrrev_b32 v{vT}, 5, v{vLane}")
    g(f"v_mul_u32_u24 v{vT}, 2560, v{vT}")
    g(f"v_and_b32 v{vT2}, 31, v{vLane}")
    g(f"v_lshlrev_b32 v{vT2}, 2, v{vT2}")
    g(f"v_add_u32 v{vT}, v{vT}, v{vT2}")
    g(f"s_mul_i32 s{sT0}, s{sRb}, 5120")
    g(f"s_lshl_b32 s{sT1}, s{sCb}, 7")
    g(f"s_add_u32 s{sT0}, s{sT0}, s{sT1}")
    g(f"s_add_u32 s{sT0}, s{sT0}, {WS_HP}")
    g(f"buffer_store_dword v{vW}, v{vT}, s[{sWS}:{sWS+3}], s{sT0} offen")
    stamp(g, 7)
    if STAMPS:
        g("s_cmp_eq_u32 s2, STAMP_WG".replace("STAMP_WG", str(STAMP_WG)))
        g("s_cbranch_scc0 wo_end")
    if STAMPS:
        g(f"s_cmp_eq_u32 s{sWave}, 0")
        g("s_cbranch_scc0 wo_end")
    stamp_flush(g, 8, 100 if "wo_end" != "fin_end" else 60)
    g.label("wo_end", pad=False)
    g("s_endpgm")
    return L, nv, 40


def wave_reduce_64(g, vAcc, vLane, sWave, RED, RED2, vT, vT2, vT3, vTmp, sT0):
    g(f"v_lshlrev_b32 v{vT}, 6, v0")
    for q in range(4):
        g(f"ds_write_b128 v{vT}, v[{vAcc+4*q}:{vAcc+4*q+3}] offset:{RED + 16*q}")
    g(f"v_bfe_u32 v{vT2}, v{vLane}, 3, 2")
    g(f"v_lshlrev_b32 v{vT2}, 6, v{vT2}")
    g(f"v_lshrrev_b32 v{vT3}, 5, v{vLane}")
    g(f"v_lshlrev_b32 v{vT3}, 5, v{vT3}")
    g(f"v_add_u32 v{vT2}, v{vT2}, v{vT3}")
    g(f"v_and_b32 v{vT3}, 7, v{vLane}")
    g(f"v_lshlrev_b32 v{vT3}, 2, v{vT3}")
    g(f"v_add_u32 v{vT2}, v{vT2}, v{vT3}")
    g(f"s_lshl_b32 s{sT0}, s{sWave}, 12")
    g(f"v_add_u32 v{vT2}, s{sT0}, v{vT2}")
    g("s_waitcnt lgkmcnt(0)")
    for r in range(16):
        g(f"ds_read_b32 v{vTmp+r}, v{vT2} offset:{RED + r*256}")
    g("s_waitcnt lgkmcnt(0)")
    for r in range(1, 16):
        g(f"v_add_f32 v{vTmp}, v{vTmp}, v{vTmp+r}")
    g(f"v_lshlrev_b32 v{vT}, 2, v0")
    g(f"ds_write_b32 v{vT}, v{vTmp} offset:{RED2}")
    g("s_waitcnt lgkmcnt(0)")


def k_ffn(g):
    L = "ffn_kernel"
    header(g, L)
    sX, sW1, sB1, sW2, sWS = 16, 20, 24, 28, 32
    sWave, sT0, sT1, sOff = 36, 37, 38, 39
    sMk = 40
    H, HN, RED, RED2, H1, R3 = 0, 5120, 10240, 30720, 32000, 32768
    vLane, vT, vT2, vT3 = 1, 2, 3, 4
    vAcc = 8
    vW1 = 24
    vW2 = 56
    vHP = 88
    vX = 120
    vH = 124
    vB1 = 122
    vS = 128
    nv = 160
    g("s_cmp_ge_u32 s2, 48")
    g("s_cbranch_scc1 ffn_end")
    stamp(g, 0)
    g("s_load_dwordx2 s[4:5], s[0:1], 0")
    g("s_load_dwordx4 s[8:11], s[0:1], 48")
    g("s_load_dwordx2 s[12:13], s[0:1], 64")
    g("s_load_dwordx2 s[14:15], s[0:1], 96")
    g(f"v_and_b32 v{vLane}, 63, v0")
    g(f"v_lshrrev_b32 v{vT}, 6, v0")
    g(f"v_readfirstlane_b32 s{sWave}, v{vT}")
    g("s_waitcnt lgkmcnt(0)")
    srd(g, sX, 4, 2560)
    srd(g, sW1, 8, 1966080)
    srd(g, sB1, 10, 3072)
    srd(g, sW2, 12, 1966080)
    srd(g, sWS, 14, WS_SIZE)
    g(f"v_lshlrev_b32 v{vT}, 4, v0")
    for rb in range(8):
        g(f"s_mov_b32 s{sOff}, {WS_HP + rb*5120}")
        g(f"buffer_load_dwordx4 v[{vHP+4*rb}:{vHP+4*rb+3}], v{vT}, s[{sWS}:{sWS+3}], s{sOff} offen")
    g(f"v_lshlrev_b32 v{vT2}, 3, v0")
    g(f"buffer_load_dwordx2 v[{vX}:{vX+1}], v{vT2}, s[{sX}:{sX+3}], 0 offen")
    g(f"v_and_b32 v{vT2}, 31, v{vLane}")
    g(f"v_lshlrev_b32 v{vT2}, 1, v{vT2}")
    g(f"s_lshl_b32 s{sT0}, s2, 6")
    g(f"buffer_load_ushort v{vB1}, v{vT2}, s[{sB1}:{sB1+3}], s{sT0} offen")
    g(f"v_lshrrev_b32 v{vT}, 2, v{vLane}")
    g(f"v_mul_u32_u24 v{vT}, 3072, v{vT}")
    g(f"v_and_b32 v{vT2}, 3, v{vLane}")
    g(f"v_lshlrev_b32 v{vT2}, 4, v{vT2}")
    g(f"v_add_u32 v{vT}, v{vT}, v{vT2}")
    g(f"s_mul_i32 s{sT1}, s{sWave}, {128*3072}")
    g(f"s_add_u32 s{sT1}, s{sT1}, s{sT0}")
    for i in range(8):
        g(f"s_add_u32 s{sOff}, s{sT1}, {i*16*3072}")
        g(f"buffer_load_dwordx4 v[{vW1+4*i}:{vW1+4*i+3}], v{vT}, s[{sW1}:{sW1+3}], s{sOff} offen")
    vRG, vCC = 5, 6
    g(f"v_mul_u32_u24 v{vRG}, 52429, v0")
    g(f"v_lshrrev_b32 v{vRG}, 22, v{vRG}")
    g(f"v_mul_u32_u24 v{vT}, 80, v{vRG}")
    g(f"v_sub_u32 v{vCC}, v0, v{vT}")
    g(f"v_mul_u32_u24 v{vT}, {8*1280}, v{vRG}")
    g(f"v_lshlrev_b32 v{vT2}, 4, v{vCC}")
    g(f"v_add_u32 v{vT}, v{vT}, v{vT2}")
    g(f"s_mul_i32 s{sT1}, s2, {32*1280}")
    for i in range(8):
        g(f"s_add_u32 s{sOff}, s{sT1}, {i*1280}")
        g(f"buffer_load_dwordx4 v[{vW2+4*i}:{vW2+4*i+3}], v{vT}, s[{sW2}:{sW2+3}], s{sOff} offen")
    stamp(g, 1)
    g("s_waitcnt vmcnt(17)")
    stamp(g, 2)
    for c in range(4):
        g(f"v_add_f32 v{vH+c}, v{vHP+c}, v{vHP+4+c}")
        for rb in range(2, 8):
            g(f"v_add_f32 v{vH+c}, v{vH+c}, v{vHP+4*rb+c}")
    bf16r2(g, vH, vH + 1, vT)
    bf16r2(g, vH + 2, vH + 3, vT)
    g(f"v_lshlrev_b32 v{vT}, 16, v{vX}")
    g(f"v_add_f32 v{vH}, v{vH}, v{vT}")
    g(f"v_and_b32 v{vT}, 0xffff0000, v{vX}")
    g(f"v_add_f32 v{vH+1}, v{vH+1}, v{vT}")
    g(f"v_lshlrev_b32 v{vT}, 16, v{vX+1}")
    g(f"v_add_f32 v{vH+2}, v{vH+2}, v{vT}")
    g(f"v_and_b32 v{vT}, 0xffff0000, v{vX+1}")
    g(f"v_add_f32 v{vH+3}, v{vH+3}, v{vT}")
    bf16r2(g, vH, vH + 1, vT)
    bf16r2(g, vH + 2, vH + 3, vT)
    g(f"v_lshlrev_b32 v{vT}, 4, v0")
    g(f"ds_write_b128 v{vT}, v[{vH}:{vH+3}] offset:{H}")
    g("s_cmp_eq_u32 s2, 0")
    g("s_cbranch_scc0 ffn_nohh")
    g(f"s_mov_b32 s{sOff}, {WS_HH}")
    g(f"buffer_store_dwordx4 v[{vH}:{vH+3}], v{vT}, s[{sWS}:{sWS+3}], s{sOff} offen")
    g.label("ffn_nohh")
    g("s_waitcnt lgkmcnt(0)")
    g("s_barrier")
    g(f"v_lshlrev_b32 v{vT}, 2, v{vLane}")
    for b in range(2):
        for j in range(10):
            g(f"ds_read_b32 v{vS+10*b+j}, v{vT} offset:{H + b*2560 + j*256}")
    g("s_waitcnt lgkmcnt(0)")
    vMb0, vSd0, vMb1, vSd1 = 148, 149, 150, 151
    ln_stats(g, list(range(vS, vS + 10)), 640, vMb0, vSd0, 152, 153, 154)
    ln_stats(g, list(range(vS + 10, vS + 20)), 640, vMb1, vSd1, 152, 153, 154)
    g(f"v_cmp_le_u32 vcc, 160, v0")
    g(f"s_mov_b64 s[{sMk}:{sMk+1}], vcc")
    g(f"v_cndmask_b32 v{vMb0}, v{vMb0}, v{vMb1}, s[{sMk}:{sMk+1}]")
    g(f"v_cndmask_b32 v{vSd0}, v{vSd0}, v{vSd1}, s[{sMk}:{sMk+1}]")
    for c in range(4):
        ln_apply(g, vH + c, vMb0, vSd0, 152, 153)
    g(f"v_cndmask_b32 v{vT2}, 0, 1, s[{sMk}:{sMk+1}]")
    g(f"v_mul_u32_u24 v{vT3}, 160, v{vT2}")
    g(f"v_sub_u32 v{vT3}, v0, v{vT3}")
    g(f"v_lshlrev_b32 v{vT3}, 5, v{vT3}")
    g(f"v_lshlrev_b32 v{vT2}, 2, v{vT2}")
    g(f"v_add_u32 v{vT3}, v{vT3}, v{vT2}")
    for c in range(4):
        g(f"ds_write_b32 v{vT3}, v{vH+c} offset:{HN + c*8}")
    g("s_waitcnt lgkmcnt(0)")
    g("s_barrier")
    stamp(g, 3)
    g(f"v_lshrrev_b32 v{vT}, 2, v{vLane}")
    g(f"s_lshl_b32 s{sT0}, s{sWave}, 7")
    g(f"v_add_u32 v{vT}, s{sT0}, v{vT}")
    g(f"v_lshlrev_b32 v{vT}, 3, v{vT}")
    vOv = vHP
    for i in range(8):
        g(f"ds_read_b64 v[{vOv+2*i}:{vOv+2*i+1}], v{vT} offset:{HN + i*128}")
    for c in range(16):
        g(f"v_mov_b32 v{vAcc+c}, 0")
    g("s_waitcnt lgkmcnt(0)")
    g("s_waitcnt vmcnt(8)")
    for i in range(8):
        for c in range(4):
            r = vW1 + 4 * i + c
            g(f"v_lshlrev_b32 v{vT2}, 16, v{r}")
            g(f"v_and_b32 v{vT3}, 0xffff0000, v{r}")
            g(f"v_fmac_f32 v{vAcc+2*c}, v{vT2}, v{vOv+2*i}")
            g(f"v_fmac_f32 v{vAcc+2*c+1}, v{vT3}, v{vOv+2*i}")
            g(f"v_fmac_f32 v{vAcc+8+2*c}, v{vT2}, v{vOv+2*i+1}")
            g(f"v_fmac_f32 v{vAcc+8+2*c+1}, v{vT3}, v{vOv+2*i+1}")
    stamp(g, 4)
    wave_reduce_64(g, vAcc, vLane, sWave, RED, RED2, vT, vT2, vT3, vW1, sT0)
    g("s_barrier")
    g(f"s_cmp_eq_u32 s{sWave}, 0")
    g("s_cbranch_scc0 ffn_h1_skip")
    g(f"v_lshlrev_b32 v{vT}, 2, v{vLane}")
    for w in range(5):
        g(f"ds_read_b32 v{vW1+w}, v{vT} offset:{RED2 + w*256}")
    g("s_waitcnt lgkmcnt(0)")
    for w in range(1, 5):
        g(f"v_add_f32 v{vW1}, v{vW1}, v{vW1+w}")
    bf16r(g, vW1, vW1)
    g(f"v_lshlrev_b32 v{vB1}, 16, v{vB1}")
    g(f"v_add_f32 v{vW1}, v{vW1}, v{vB1}")
    bf16r(g, vW1, vW1)
    g(f"v_max_f32 v{vW1}, 0, v{vW1}")
    g(f"v_mul_f32 v{vW1}, v{vW1}, v{vW1}")
    bf16r(g, vW1, vW1)
    g(f"v_and_b32 v{vT}, 31, v{vLane}")
    g(f"v_lshlrev_b32 v{vT}, 3, v{vT}")
    g(f"v_lshrrev_b32 v{vT2}, 5, v{vLane}")
    g(f"v_lshlrev_b32 v{vT2}, 2, v{vT2}")
    g(f"v_add_u32 v{vT}, v{vT}, v{vT2}")
    g(f"ds_write_b32 v{vT}, v{vW1} offset:{H1}")
    g("s_waitcnt lgkmcnt(0)")
    g.label("ffn_h1_skip")
    g("s_barrier")
    stamp(g, 5)
    g(f"v_lshlrev_b32 v{vT}, 6, v{vRG}")
    for i in range(8):
        g(f"ds_read_b64 v[{vOv+2*i}:{vOv+2*i+1}], v{vT} offset:{H1 + i*8}")
    for c in range(16):
        g(f"v_mov_b32 v{vAcc+c}, 0")
    g("s_waitcnt lgkmcnt(0)")
    g("s_waitcnt vmcnt(0)")
    for i in range(8):
        for c in range(4):
            r = vW2 + 4 * i + c
            g(f"v_lshlrev_b32 v{vT2}, 16, v{r}")
            g(f"v_and_b32 v{vT3}, 0xffff0000, v{r}")
            g(f"v_fmac_f32 v{vAcc+2*c}, v{vT2}, v{vOv+2*i}")
            g(f"v_fmac_f32 v{vAcc+2*c+1}, v{vT3}, v{vOv+2*i}")
            g(f"v_fmac_f32 v{vAcc+8+2*c}, v{vT2}, v{vOv+2*i+1}")
            g(f"v_fmac_f32 v{vAcc+8+2*c+1}, v{vT3}, v{vOv+2*i+1}")
    stamp(g, 6)
    g(f"v_mul_u32_u24 v{vT}, 5120, v{vRG}")
    g(f"v_lshlrev_b32 v{vT2}, 5, v{vCC}")
    g(f"v_add_u32 v{vT}, v{vT}, v{vT2}")
    for b in range(2):
        for q in range(2):
            r = vAcc + 8 * b + 4 * q
            g(f"ds_write_b128 v{vT}, v[{r}:{r+3}] offset:{R3 + b*2560 + q*16}")
    g("s_waitcnt lgkmcnt(0)")
    g("s_barrier")
    g(f"v_lshlrev_b32 v{vT}, 4, v0")
    for rg in range(4):
        g(f"ds_read_b128 v[{vW1+4*rg}:{vW1+4*rg+3}], v{vT} offset:{R3 + rg*5120}")
    g("s_waitcnt lgkmcnt(0)")
    for c in range(4):
        g(f"v_add_f32 v{vW1+c}, v{vW1+c}, v{vW1+4+c}")
        g(f"v_add_f32 v{vW1+8+c}, v{vW1+8+c}, v{vW1+12+c}")
        g(f"v_add_f32 v{vW1+c}, v{vW1+c}, v{vW1+8+c}")
    g(f"s_mul_i32 s{sT0}, s2, 5120")
    g(f"s_add_u32 s{sT0}, s{sT0}, {WS_FP}")
    g(f"buffer_store_dwordx4 v[{vW1}:{vW1+3}], v{vT}, s[{sWS}:{sWS+3}], s{sT0} offen")
    stamp(g, 7)
    if STAMPS:
        g("s_cmp_eq_u32 s2, STAMP_WG".replace("STAMP_WG", str(STAMP_WG)))
        g("s_cbranch_scc0 ffn_end")
    if STAMPS:
        g(f"s_cmp_eq_u32 s{sWave}, 0")
        g("s_cbranch_scc0 ffn_end")
    stamp_flush(g, 8, 100 if "ffn_end" != "fin_end" else 60)
    g.label("ffn_end", pad=False)
    g("s_endpgm")
    return L, nv, 48


def k_fin(g):
    L = "fin_kernel"
    header(g, L)
    sB2, sOut, sWS = 16, 20, 24
    sT0, sOff = 28, 29
    vE, vT, vH, vB = 1, 2, 3, 4
    vP = 8
    nv = 64
    g("s_cmp_ge_u32 s2, 20")
    g("s_cbranch_scc1 fin_end")
    stamp(g, 0)
    g("s_load_dwordx2 s[4:5], s[0:1], 72")
    g("s_load_dwordx2 s[6:7], s[0:1], 80")
    g("s_load_dwordx2 s[8:9], s[0:1], 96")
    g(f"s_lshl_b32 s{sT0}, s2, 6")
    g(f"v_add_u32 v{vE}, s{sT0}, v0")
    g(f"v_lshlrev_b32 v{vT}, 2, v{vE}")
    g("s_waitcnt lgkmcnt(0)")
    srd(g, sB2, 4, 1280)
    srd(g, sOut, 6, 2560)
    srd(g, sWS, 8, WS_SIZE)
    for j in range(48):
        g(f"s_mov_b32 s{sOff}, {WS_FP + j*5120}")
        g(f"buffer_load_dword v{vP+j}, v{vT}, s[{sWS}:{sWS+3}], s{sOff} offen")
    g(f"s_mov_b32 s{sOff}, {WS_HH}")
    g(f"buffer_load_dword v{vH}, v{vT}, s[{sWS}:{sWS+3}], s{sOff} offen")
    g(f"s_cmp_ge_u32 s2, 10")
    g(f"s_cselect_b32 s{sT0}, 640, 0")
    g(f"v_subrev_u32 v{vT}, s{sT0}, v{vE}")
    g(f"v_lshlrev_b32 v{vT}, 1, v{vT}")
    g(f"buffer_load_ushort v{vB}, v{vT}, s[{sB2}:{sB2+3}], 0 offen")
    g("s_waitcnt vmcnt(0)")
    for j in range(1, 48):
        g(f"v_add_f32 v{vP}, v{vP}, v{vP+j}")
    bf16r(g, vP, vP)
    g(f"v_lshlrev_b32 v{vB}, 16, v{vB}")
    g(f"v_add_f32 v{vP}, v{vP}, v{vB}")
    bf16r(g, vP, vP)
    g(f"v_add_f32 v{vP}, v{vP}, v{vH}")
    g(f"v_cvt_pk_bf16_f32 v{vP}, v{vP}, v{vP}")
    g(f"v_lshlrev_b32 v{vT}, 1, v{vE}")
    g(f"buffer_store_short v{vP}, v{vT}, s[{sOut}:{sOut+3}], 0 offen")
    stamp(g, 7)
    if STAMPS:
        g("s_cmp_eq_u32 s2, STAMP_WG".replace("STAMP_WG", str(STAMP_WG)))
        g("s_cbranch_scc0 fin_end")
    stamp_flush(g, 8, 100 if "fin_end" != "fin_end" else 60)
    g.label("fin_end", pad=False)
    g("s_endpgm")
    return L, nv, 40


def build(NBUF=16, nt=True):
    g = Gen()
    head = open(f"cdna_kernels/{NAME}.s.ref").read().split("; Override launch")[0]
    g.raw(head.rstrip("\n"))
    g.raw("; @launch kernel=attn_kernel grid=(256,1,1) block=(1024,1,1) lds=98304")
    g.raw("; @launch kernel=wo_kernel grid=(160,1,1) block=(256,1,1) lds=25600")
    g.raw("; @launch kernel=ffn_kernel grid=(48,1,1) block=(320,1,1) lds=53248")
    g.raw("; @launch kernel=fin_kernel grid=(20,1,1) block=(64,1,1) lds=0")
    g.raw('.amdgcn_target "amdgcn-amd-amdhsa--gfx950"')
    g.raw(".text")
    descs = []
    for fn, kw in ((k_attn, dict(NBUF=NBUF, nt=nt)), (k_wo, {}), (k_ffn, {}), (k_fin, {})):
        g.wr = {}
        g.store_data = {}
        descs.append(fn(g, **kw))
    g.raw('.section .rodata,"a"')
    for L, nv, ns in descs:
        g.raw(".p2align 6")
        g.raw(descriptor(L, nv, ns).rstrip("\n"))
    return g.text()


if __name__ == "__main__":
    import struct
    import numpy as np
    assert struct.unpack("<I", struct.pack("<f", 192 ** -0.5))[0] == SCALE, hex(struct.unpack("<I", struct.pack("<f", 192 ** -0.5))[0])
    assert struct.unpack("<I", struct.pack("<f", 1 / 640))[0] == INV640
    assert struct.unpack("<I", struct.pack("<f", 1e-5))[0] == EPS
    for r in range(768):
        assert (r * 43691) >> 23 == r // 192
    for t in range(320):
        assert (t * 52429) >> 22 == t // 80
    for w in range(160):
        assert (w * 3277) >> 16 == w // 20
    out = sys.argv[1] if len(sys.argv) > 1 else f"cdna_kernels/{NAME}.s"
    kw = {}
    for a in sys.argv[2:]:
        k, v = a.split("=")
        if k == "STAMPS":
            STAMPS = bool(int(v))
        elif k == "STAMP_WG":
            STAMP_WG = int(v)
        else:
            kw[k] = int(v)
    open(out, "w").write(build(**kw))
    print("wrote", out)
```

```python
import sys
from asmgen import Gen

NAME = "sequential_preLN__mha_block_cached__dense_activation_squared_relu__decode"

WS_PART = 0
WS_ML = 0x30000
WS_HP = 0x40000
WS_FP = 0x4A000
WS_HH = 0x86000
WS_SENT_N = 18240
WS_SIZE = 0x100000

LOG2E = 0x3FB8AA3B
SCALE = 0x3D93CD3A
INV640 = 0x3ACCCCCD
EPS = 0x3727C5AC


def srd(g, d, base, size):
    g(f"s_mov_b32 s{d}, s{base}")
    g(f"s_and_b32 s{d+1}, s{base+1}, 0xffff")
    g(f"s_mov_b32 s{d+2}, {size}")
    g(f"s_mov_b32 s{d+3}, 0x00020000")


def allreduce(g, op, v, t):
    g(f"{op}_dpp v{v}, v{v}, v{v} quad_perm:[1,0,3,2] row_mask:0xf bank_mask:0xf")
    g(f"{op}_dpp v{v}, v{v}, v{v} quad_perm:[2,3,0,1] row_mask:0xf bank_mask:0xf")
    g(f"{op}_dpp v{v}, v{v}, v{v} row_half_mirror row_mask:0xf bank_mask:0xf")
    g(f"{op}_dpp v{v}, v{v}, v{v} row_mirror row_mask:0xf bank_mask:0xf")
    g(f"v_mov_b32 v{t}, v{v}")
    g(f"v_permlane16_swap_b32 v{v}, v{t}")
    g(f"{op} v{v}, v{v}, v{t}")
    g(f"v_mov_b32 v{t}, v{v}")
    g(f"v_permlane32_swap_b32 v{v}, v{t}")
    g(f"{op} v{v}, v{v}, v{t}")


def bf16r(g, dst, src):
    g(f"v_cvt_pk_bf16_f32 v{dst}, v{src}, v{src}")
    g(f"v_lshlrev_b32 v{dst}, 16, v{dst}")


def bf16r2(g, a, b, t):
    g(f"v_cvt_pk_bf16_f32 v{t}, v{a}, v{b}")
    g(f"v_lshlrev_b32 v{a}, 16, v{t}")
    g(f"v_and_b32 v{b}, 0xffff0000, v{t}")


def divide(g, dst, num, den, r, e):
    g(f"v_rcp_f32 v{r}, v{den}")
    g(f"v_mul_f32 v{dst}, v{num}, v{r}")
    g(f"v_fma_f32 v{e}, -v{dst}, v{den}, v{num}")
    g(f"v_fma_f32 v{dst}, v{e}, v{r}, v{dst}")


def ln_stats(g, xe, n, mb, sd, t0, t1, t2):
    g(f"v_add_f32 v{t0}, v{xe[0]}, v{xe[1]}")
    for r in xe[2:]:
        g(f"v_add_f32 v{t0}, v{t0}, v{r}")
    allreduce(g, "v_add_f32", t0, t1)
    g(f"v_mul_f32 v{t0}, {INV640:#x}, v{t0}")
    g(f"v_sub_f32 v{t1}, v{xe[0]}, v{t0}")
    g(f"v_mul_f32 v{t2}, v{t1}, v{t1}")
    for r in xe[1:]:
        g(f"v_sub_f32 v{t1}, v{r}, v{t0}")
        g(f"v_fmac_f32 v{t2}, v{t1}, v{t1}")
    allreduce(g, "v_add_f32", t2, t1)
    g(f"v_mul_f32 v{t2}, {INV640:#x}, v{t2}")
    bf16r(g, mb, t0)
    bf16r(g, t2, t2)
    g(f"v_add_f32 v{t2}, {EPS:#x}, v{t2}")
    bf16r(g, t2, t2)
    g(f"v_sqrt_f32 v{t2}, v{t2}")
    bf16r(g, sd, t2)


def ln_apply(g, x, mb, sd, r, e):
    g(f"v_sub_f32 v{x}, v{x}, v{mb}")
    bf16r(g, x, x)
    g(f"v_mov_b32 v{e}, v{x}")
    g(f"v_rcp_f32 v{r}, v{sd}")
    g(f"v_mul_f32 v{x}, v{e}, v{r}")
    g(f"v_fma_f32 v{e}, -v{x}, v{sd}, v{e}")
    g(f"v_fma_f32 v{x}, v{e}, v{r}, v{x}")
    bf16r(g, x, x)


STAMPS = False
STAMP_WG = 0


def stamp(g, idx):
    if not STAMPS:
        return
    g(f"s_memrealtime s[{70+2*idx}:{71+2*idx}]")
    g("s_waitcnt lgkmcnt(0)")


def stamp_flush(g, n, vt=0, base=0):
    if not STAMPS:
        return
    g("s_load_dwordx2 s[60:61], s[0:1], 88")
    g("s_waitcnt lgkmcnt(0)")
    srd(g, 64, 60, 256)
    g(f"s_mov_b32 s62, 0")
    for i in range(n):
        g(f"v_mov_b32 v{vt}, s{70+2*i}")
        g(f"v_mov_b32 v{vt+1}, {base + i*4}")
        g(f"buffer_store_dword v{vt}, v{vt+1}, s[64:67], 0 offen")
    g("s_waitcnt vmcnt(0)")


def header(g, label):
    g.raw(".p2align 8")
    g.raw(f".type {label},@function")
    g.raw(f"{label}:")


def descriptor(label, nvgpr, nsgpr):
    acc = (nvgpr + 3) // 4 * 4
    if STAMPS:
        nsgpr = 100
    return f""".amdhsa_kernel {label}
  .amdhsa_next_free_vgpr {nvgpr}
  .amdhsa_next_free_sgpr {nsgpr}
  .amdhsa_accum_offset {acc}
  .amdhsa_group_segment_fixed_size 0
  .amdhsa_kernarg_size 104
  .amdhsa_user_sgpr_count 2
  .amdhsa_user_sgpr_kernarg_segment_ptr 1
  .amdhsa_system_sgpr_workgroup_id_x 1
  .amdhsa_float_denorm_mode_32 3
.end_amdhsa_kernel
"""


def k_attn(g, NBUF=16, nt=True, PRIO=1):
    L = "attn_kernel"
    header(g, L)
    NT = " nt" if nt else ""
    assert 64 % NBUF == 0
    sX, sK, sV, sWQ, sWS = 16, 20, 24, 28, 32
    sWave, sH, sB, sS, sT0, sT1, sKV, sOff, sSelLo, sSelHi = 36, 37, 38, 39, 40, 41, 42, 43, 44, 45
    sM1, sM0, sWqb, sRec = 46, 48, 50, 51
    sCur, sNext, sNextIdx = 52, 53, 54
    sEx = 56
    XN, QB, ML, CNT, PW, QP = 0, 2560, 3072, 3328, 4096, 8192
    vLane, vL32, vHalf, vKV, vT = 1, 2, 3, 4, 5
    vQ = 6
    vPA = 9
    vAcc = 10
    vS = 16
    vMr, vLr = 18, 19
    vP = 20
    vLA, vLB, vLC, vLD = 22, 24, 26, 28
    vT2, vT3 = 30, 31
    vPm = 32
    vPw, vPr = 34, 35
    vPPa, vPPb = 36, 40
    vRing = 44
    NPOOL = max(NBUF, 20)
    nv = vRing + 4 * NPOOL
    assert nv <= 128, nv

    g("s_cmp_ge_u32 s2, 256")
    g("s_cbranch_scc1 attn_end")
    if PRIO:
        g("s_setprio 3")
    stamp(g, 0)
    g("s_load_dwordx2 s[4:5], s[0:1], 0")
    g("s_load_dwordx4 s[8:11], s[0:1], 8")
    g("s_load_dwordx2 s[12:13], s[0:1], 24")
    g("s_load_dwordx2 s[14:15], s[0:1], 96")
    g(f"v_and_b32 v{vLane}, 63, v0")
    g(f"v_and_b32 v{vL32}, 31, v0")
    g(f"v_bfe_u32 v{vHalf}, v0, 5, 1")
    g(f"v_lshrrev_b32 v{vT}, 6, v0")
    g(f"v_readfirstlane_b32 s{sWave}, v{vT}")
    g(f"s_and_b32 s{sT0}, s2, 7")
    g(f"s_lshr_b32 s{sT1}, s2, 3")
    g(f"s_lshl_b32 s{sH}, s{sT0}, 2")
    g(f"s_and_b32 s{sT0}, s{sT1}, 3")
    g(f"s_add_u32 s{sH}, s{sH}, s{sT0}")
    g(f"s_lshr_b32 s{sT1}, s{sT1}, 2")
    g(f"s_lshr_b32 s{sB}, s{sT1}, 2")
    g(f"s_and_b32 s{sS}, s{sT1}, 3")
    g(f"s_lshl_b32 s{sRec}, s{sB}, 5")
    g(f"s_add_u32 s{sRec}, s{sRec}, s{sH}")
    g(f"s_lshl_b32 s{sRec}, s{sRec}, 2")
    g(f"s_add_u32 s{sRec}, s{sRec}, s{sS}")
    g(f"s_mul_i32 s{sKV}, s{sRec}, 786432")
    g(f"s_mov_b32 s{sSelLo}, 0x05040100")
    g(f"s_mov_b32 s{sSelHi}, 0x07060302")
    g(f"s_mov_b32 s{sM1}, 0xcccccccc")
    g(f"s_mov_b32 s{sM1+1}, 0xcccccccc")
    g(f"s_mov_b32 s{sM0}, 0xaaaaaaaa")
    g(f"s_mov_b32 s{sM0+1}, 0xaaaaaaaa")
    g(f"s_mul_i32 s{sWqb}, s{sWave}, 491520")
    g(f"s_mul_i32 s{sT0}, s{sH}, 384")
    g(f"s_add_u32 s{sWqb}, s{sWqb}, s{sT0}")
    g(f"s_mul_i32 s{sCur}, s{sWave}, 24576")
    g(f"s_add_u32 s{sCur}, s{sCur}, s{sKV}")
    g(f"v_mul_u32_u24 v{vT2}, 12, v{vL32}")
    g(f"v_mul_u32_u24 v{vKV}, 384, v{vHalf}")
    g(f"v_add_u32 v{vKV}, v{vKV}, v{vT2}")
    vWo = 42
    g(f"v_mul_u32_u24 v{vWo}, 245760, v{vHalf}")
    g(f"v_add_u32 v{vWo}, v{vWo}, v{vT2}")
    g(f"v_lshlrev_b32 v{vT}, 2, v{vLane}")
    g(f"v_mov_b32 v{vT2}, 16")
    g(f"v_mov_b32 v{vT3}, 0")
    g(f"ds_write_b32 v{vT3}, v{vT2} offset:{CNT}")
    g("s_waitcnt lgkmcnt(0)")
    srd(g, sX, 4, 2560)
    srd(g, sWQ, 12, 7864320)
    srd(g, sWS, 14, WS_SIZE)
    g(f"s_cmp_lt_u32 s{sWave}, 2")
    g("s_cbranch_scc0 attn_nosent")
    g(f"s_mul_i32 s{sT0}, s2, 72")
    g(f"v_add_u32 v{vT2}, s{sT0}, v0")
    g(f"v_cmp_gt_u32 vcc, 72, v0")
    g(f"s_mov_b64 s[{sEx}:{sEx+1}], vcc")
    g(f"v_cmp_gt_u32 vcc, {WS_SENT_N}, v{vT2}")
    g(f"s_and_b64 s[{sEx}:{sEx+1}], s[{sEx}:{sEx+1}], vcc")
    g(f"v_lshlrev_b32 v{vT2}, 4, v{vT2}")
    for c in range(4):
        g(f"v_mov_b32 v{vAcc+c}, -1")
    g(f"s_mov_b64 s[{sEx+2}:{sEx+3}], exec")
    g(f"s_mov_b64 exec, s[{sEx}:{sEx+1}]")
    g("s_cbranch_execz attn_sent_done")
    g(f"s_mov_b32 s{sT0}, {WS_HP}")
    g(f"buffer_store_dwordx4 v[{vAcc}:{vAcc+3}], v{vT2}, s[{sWS}:{sWS+3}], s{sT0} offen")
    g.label("attn_sent_done")
    g(f"s_mov_b64 exec, s[{sEx+2}:{sEx+3}]")
    g.label("attn_nosent")
    g(f"s_mul_i32 s{sT0}, s{sB}, 1280")
    vXd = 36
    for j in range(5):
        g(f"buffer_load_dword v{vXd+j}, v{vT}, s[{sX}:{sX+3}], s{sT0} offen offset:{j*256}")
    for j in range(20):
        g(f"s_add_u32 s{sOff}, s{sWqb}, {j*12288}")
        r = vRing + 4 * j
        g(f"buffer_load_dwordx3 v[{r}:{r+2}], v{vWo}, s[{sWQ}:{sWQ+3}], s{sOff} offen")
    srd(g, sK, 8, 201326592)
    srd(g, sV, 10, 201326592)

    def kv_load(t, base):
        s = sK if t < 32 else sV
        i = t % 32
        r = vRing + 4 * (t % NBUF)
        g(f"s_add_u32 s{sOff}, s{base}, {i*768}")
        g(f"buffer_load_dwordx3 v[{r}:{r+2}], v{vKV}, s[{s}:{s+3}], s{sOff} offen{NT}")

    stamp(g, 2)
    g(f"s_waitcnt vmcnt(20)")
    stamp(g, 4)
    xe = list(range(16, 26))
    for j in range(5):
        g(f"v_lshlrev_b32 v{xe[2*j]}, 16, v{vXd+j}")
        g(f"v_and_b32 v{xe[2*j+1]}, 0xffff0000, v{vXd+j}")
    vMb, vSd = 26, 27
    ln_stats(g, xe, 640, vMb, vSd, 28, 29, 31)
    for r in xe:
        ln_apply(g, r, vMb, vSd, 28, 29)
    g(f"v_lshlrev_b32 v{vT}, 3, v{vLane}")
    for j in range(5):
        g(f"ds_write_b64 v{vT}, v[{xe[2*j]}:{xe[2*j+1]}] offset:{XN + j*512}")
    g(f"v_lshrrev_b32 v{vT}, 5, v0")
    g(f"v_mul_u32_u24 v{vT}, 80, v{vT}")
    g("s_waitcnt lgkmcnt(0)")
    xr = 16
    for j in range(5):
        g(f"ds_read_b128 v[{xr+4*j}:{xr+4*j+3}], v{vT} offset:{XN + j*16}")
    for c in range(6):
        g(f"v_mov_b32 v{vAcc+c}, 0")
    g("s_waitcnt lgkmcnt(0)")
    stamp(g, 5)
    for j in range(20):
        if PRIO:
            g(f"s_waitcnt vmcnt({19 - j})")
        else:
            g(f"s_waitcnt vmcnt({19 - j + min(j, NBUF)})")
        r = vRing + 4 * j
        for c in range(3):
            g(f"v_lshlrev_b32 v{36}, 16, v{r+c}")
            g(f"v_and_b32 v{37}, 0xffff0000, v{r+c}")
            g(f"v_fmac_f32 v{vAcc+2*c}, v{36}, v{xr+j}")
            g(f"v_fmac_f32 v{vAcc+2*c+1}, v{37}, v{xr+j}")
        if j < NBUF and not PRIO:
            kv_load(j, sCur)
    if PRIO:
        g("s_setprio 0")
        for j in range(NBUF):
            kv_load(j, sCur)
    stamp(g, 6)
    g(f"v_lshrrev_b32 v{vT3}, 5, v0")
    g(f"v_mul_u32_u24 v{vT}, 768, v{vT3}")
    g(f"v_mul_u32_u24 v{vT2}, 24, v{vL32}")
    g(f"v_add_u32 v{vPA}, v{vT}, v{vT2}")
    for c in range(3):
        g(f"ds_write_b64 v{vPA}, v[{vAcc+2*c}:{vAcc+2*c+1}] offset:{QP + c*8}")
    g("s_waitcnt lgkmcnt(0)")
    g("s_barrier")
    g(f"s_cmp_lt_u32 s{sWave}, 3")
    g("s_cbranch_scc0 attn_q2_skip")
    g(f"v_lshlrev_b32 v{vT}, 2, v0")
    rr = 10
    for r in range(32):
        g(f"ds_read_b32 v{rr+r}, v{vT} offset:{QP + r*768}")
    g("s_waitcnt lgkmcnt(0)")
    for r in range(1, 32):
        g(f"v_add_f32 v{rr}, v{rr}, v{rr+r}")
    g(f"v_cvt_pk_bf16_f32 v{rr}, v{rr}, v{rr}")
    g(f"v_lshlrev_b32 v{vT}, 1, v0")
    g(f"ds_write_b16 v{vT}, v{rr} offset:{QB}")
    g("s_waitcnt lgkmcnt(0)")
    g.label("attn_q2_skip")
    g("s_barrier")
    g(f"v_mul_u32_u24 v{vT}, 12, v{vL32}")
    for c in range(3):
        g(f"ds_read_b32 v{vQ+c}, v{vT} offset:{QB + 4*c}")
    g(f"v_bfrev_b32 v{vT2}, v{vL32}")
    g(f"v_lshrrev_b32 v{vT2}, 26, v{vT2}")
    g(f"v_lshlrev_b32 v{vT3}, 6, v{vHalf}")
    g(f"s_lshl_b32 s{sT0}, s{sWave}, 7")
    g(f"v_add_u32 v{vPr}, s{sT0}, v{vT3}")
    g(f"v_add_u32 v{vPw}, v{vPr}, v{vT2}")
    for c in range(6):
        g(f"v_mov_b32 v{vAcc+c}, 0")
    g(f"v_mov_b32 v{vMr}, 0xff800000")
    g(f"v_mov_b32 v{vLr}, 0")
    g("s_waitcnt lgkmcnt(0)")
    stamp(g, 1)

    g.label("attn_loop")
    g(f"s_mov_b64 s[{sEx}:{sEx+1}], exec")
    g("s_mov_b64 exec, 1")
    g(f"v_mov_b32 v{vT2}, 1")
    g(f"v_mov_b32 v{vT3}, 0")
    g(f"ds_add_rtn_u32 v{vS+1}, v{vT3}, v{vT2} offset:{CNT}")
    g(f"s_mov_b64 exec, s[{sEx}:{sEx+1}]")
    for t in range(32):
        i5 = t
        r = vRing + 4 * (t % NBUF)
        P = vP + (t & 1)
        g(f"s_waitcnt vmcnt({NBUF-1})")
        g(f"v_dot2_f32_bf16 v{P}, v{r}, v{vQ}, 0")
        g(f"v_dot2_f32_bf16 v{P}, v{r+1}, v{vQ+1}, v{P}")
        g(f"v_dot2_f32_bf16 v{P}, v{r+2}, v{vQ+2}, v{P}")
        kv_load(t + NBUF, sCur)
        if i5 & 1:
            g(f"v_permlane16_swap_b32 v{vP}, v{vP+1}")
            g(f"v_add_f32 v{vLA+((i5>>1)&1)}, v{vP}, v{vP+1}")
        if (i5 & 3) == 3:
            d = vLB + ((i5 >> 2) & 1)
            g(f"v_add_f32_dpp v{d}, v{vLA}, v{vLA} row_ror:8 row_mask:0xf bank_mask:0x3")
            g(f"v_add_f32_dpp v{d}, v{vLA+1}, v{vLA+1} row_ror:8 row_mask:0xf bank_mask:0xc")
        if (i5 & 7) == 7:
            d = vLC + ((i5 >> 3) & 1)
            g(f"v_add_f32_dpp v{d}, v{vLB}, v{vLB} row_shl:4 row_mask:0xf bank_mask:0x5")
            g(f"v_add_f32_dpp v{d}, v{vLB+1}, v{vLB+1} row_shr:4 row_mask:0xf bank_mask:0xa")
        if (i5 & 15) == 15:
            d = vLD + ((i5 >> 4) & 1)
            g(f"v_add_f32_dpp v{vT2}, v{vLC}, v{vLC} quad_perm:[2,3,0,1] row_mask:0xf bank_mask:0xf")
            g(f"v_add_f32_dpp v{vT3}, v{vLC+1}, v{vLC+1} quad_perm:[2,3,0,1] row_mask:0xf bank_mask:0xf")
            g(f"v_cndmask_b32 v{d}, v{vT2}, v{vT3}, s[{sM1}:{sM1+1}]")
        if i5 == 31:
            g(f"v_add_f32_dpp v{vT2}, v{vLD}, v{vLD} quad_perm:[1,0,3,2] row_mask:0xf bank_mask:0xf")
            g(f"v_add_f32_dpp v{vT3}, v{vLD+1}, v{vLD+1} quad_perm:[1,0,3,2] row_mask:0xf bank_mask:0xf")
            g(f"v_cndmask_b32 v{vS}, v{vT2}, v{vT3}, s[{sM0}:{sM0+1}]")
    bf16r(g, vS, vS)
    g(f"v_mul_f32 v{vS}, {SCALE:#x}, v{vS}")
    bf16r(g, vS, vS)
    vCm, vAl = vLA, vLA + 1
    g(f"v_mov_b32 v{vCm}, v{vS}")
    allreduce(g, "v_max_f32", vCm, vT2)
    g(f"v_max_f32 v{vCm}, v{vCm}, v{vMr}")
    g(f"v_sub_f32 v{vAl}, v{vMr}, v{vCm}")
    g(f"v_mul_f32 v{vAl}, {LOG2E:#x}, v{vAl}")
    g(f"v_exp_f32 v{vAl}, v{vAl}")
    g(f"v_sub_f32 v{vS}, v{vS}, v{vCm}")
    g(f"v_mul_f32 v{vS}, {LOG2E:#x}, v{vS}")
    g(f"v_exp_f32 v{vS}, v{vS}")
    g(f"v_mov_b32 v{vMr}, v{vCm}")
    g(f"v_fma_f32 v{vLr}, v{vLr}, v{vAl}, v{vS}")
    g(f"v_cvt_pk_bf16_f32 v{vT}, v{vS}, v{vS}")
    g(f"ds_write_b16 v{vPw}, v{vT} offset:{PW}")
    for c in range(6):
        g(f"v_mul_f32 v{vAcc+c}, v{vAcc+c}, v{vAl}")
    g("s_waitcnt lgkmcnt(0)")
    g(f"ds_read_b128 v[{vPPa}:{vPPa+3}], v{vPr} offset:{PW}")
    g(f"ds_read_b128 v[{vPPb}:{vPPb+3}], v{vPr} offset:{PW+16}")
    g(f"v_readfirstlane_b32 s{sNextIdx}, v{vS+1}")
    g(f"s_mul_i32 s{sNext}, s{sNextIdx}, 24576")
    g(f"s_add_u32 s{sNext}, s{sNext}, s{sKV}")
    g(f"s_cmp_lt_u32 s{sNextIdx}, 32")
    g(f"s_cselect_b32 s{sNext}, s{sNext}, 0x80000000")
    for j in range(16):
        t = 32 + 2 * j
        q4 = j // 4
        PP = (vPPa if (q4 & 1) == 0 else vPPb) + (j % 4)
        if j % 4 == 0:
            if q4 + 1 < 4:
                g("s_waitcnt lgkmcnt(1)")
            else:
                g("s_waitcnt lgkmcnt(0)")
        ra = vRing + 4 * (t % NBUF)
        rb = vRing + 4 * ((t + 1) % NBUF)
        g(f"s_waitcnt vmcnt({NBUF-2})")
        for c in range(3):
            g(f"v_perm_b32 v{vPm}, v{rb+c}, v{ra+c}, s{sSelLo}")
            g(f"v_perm_b32 v{vPm+1}, v{rb+c}, v{ra+c}, s{sSelHi}")
            g(f"v_dot2_f32_bf16 v{vAcc+2*c}, v{vPm}, v{PP}, v{vAcc+2*c}")
            g(f"v_dot2_f32_bf16 v{vAcc+2*c+1}, v{vPm+1}, v{PP}, v{vAcc+2*c+1}")
        for tt in (t + NBUF, t + 1 + NBUF):
            if tt < 64:
                kv_load(tt, sCur)
            else:
                kv_load(tt - 64, sNext)
        if j % 4 == 3 and q4 + 2 < 4:
            d = vPPa if (q4 & 1) == 0 else vPPb
            g(f"ds_read_b128 v[{d}:{d+3}], v{vPr} offset:{PW + (q4+2)*16}")
    g(f"s_mov_b32 s{sCur}, s{sNext}")
    g(f"s_cmp_lt_u32 s{sNextIdx}, 32")
    g("s_cbranch_scc1 attn_loop")
    stamp(g, 3)
    allreduce(g, "v_add_f32", vLr, vT2)
    for c in range(3):
        g(f"ds_write_b64 v{vPA}, v[{vAcc+2*c}:{vAcc+2*c+1}] offset:{QP + c*8}")
    g(f"s_lshl_b32 s{sT0}, s{sWave}, 3")
    g(f"v_mov_b32 v{vT}, s{sT0}")
    g(f"ds_write_b64 v{vT}, v[{vMr}:{vMr+1}] offset:{ML}")
    g("s_waitcnt vmcnt(0) lgkmcnt(0)")
    g("s_barrier")
    g(f"s_cmp_lt_u32 s{sWave}, 3")
    g("s_cbranch_scc0 attn_end")
    rm = vRing
    ro = vRing + 32
    g(f"v_mov_b32 v{vT}, 0")
    for w in range(0, 16, 2):
        g(f"ds_read_b128 v[{rm+2*w}:{rm+2*w+3}], v{vT} offset:{ML + 8*w}")
    g(f"v_lshlrev_b32 v{vT}, 2, v0")
    for r in range(32):
        g(f"ds_read_b32 v{ro+r}, v{vT} offset:{QP + r*768}")
    g("s_waitcnt lgkmcnt(0)")
    vMM, vLL, vO, vF = 16, 17, 18, 19
    g(f"v_max_f32 v{vMM}, v{rm}, v{rm+2}")
    for w in range(2, 16):
        g(f"v_max_f32 v{vMM}, v{vMM}, v{rm+2*w}")
    g(f"v_mov_b32 v{vLL}, 0")
    g(f"v_mov_b32 v{vO}, 0")
    for w in range(16):
        g(f"v_sub_f32 v{vF}, v{rm+2*w}, v{vMM}")
        g(f"v_mul_f32 v{vF}, {LOG2E:#x}, v{vF}")
        g(f"v_exp_f32 v{vF}, v{vF}")
        g(f"v_add_f32 v{vT2}, v{ro+2*w}, v{ro+2*w+1}")
        g(f"v_fmac_f32 v{vLL}, v{vF}, v{rm+2*w+1}")
        g(f"v_fmac_f32 v{vO}, v{vF}, v{vT2}")
    g(f"s_mul_i32 s{sT0}, s{sRec}, 768")
    g(f"buffer_store_dword v{vO}, v{vT}, s[{sWS}:{sWS+3}], s{sT0} offen offset:{WS_PART}")
    g(f"v_mov_b32 v{vT}, 0")
    g(f"s_lshl_b32 s{sT0}, s{sRec}, 3")
    g(f"s_add_u32 s{sT0}, s{sT0}, {WS_ML}")
    g(f"buffer_store_dwordx2 v[{vMM}:{vMM+1}], v{vT}, s[{sWS}:{sWS+3}], s{sT0} offen")
    stamp(g, 7)
    if STAMPS:
        g("v_mov_b32 v100, s70")
        g("v_mov_b32 v101, s84")
        g("s_lshl_b32 s62, s2, 3")
        g("s_add_u32 s62, s62, 0xA0000")
        g("v_mov_b32 v102, 0")
        g(f"buffer_store_dwordx2 v[100:101], v102, s[{sWS}:{sWS+3}], s62 offen")
        g("s_cmp_eq_u32 s2, STAMP_WG".replace("STAMP_WG", str(STAMP_WG)))
        g("s_cbranch_scc0 attn_end")
        g(f"s_cmp_eq_u32 s{sWave}, 0")
        g("s_cbranch_scc0 attn_end")
    stamp_flush(g, 8, 100)
    g.label("attn_end", pad=False)
    g("s_endpgm")
    return L, nv, 60


def k_wo(g):
    L = "wo_kernel"
    header(g, L)
    sWO, sWS = 16, 20
    sRb, sCb, sWave, sT0, sT1, sOff = 24, 25, 26, 27, 28, 29
    OC, RED, RED2 = 0, 8192, 24576
    vLane, vT, vT2, vT3 = 1, 2, 3, 4
    vWoOff = 5
    vAcc = 8
    vW = 24
    vC = 72
    vOo, vMo = 144, 150
    nv = 160
    g("s_cmp_ge_u32 s2, 160")
    g("s_cbranch_scc1 wo_end")
    stamp(g, 0)
    g("s_load_dwordx2 s[4:5], s[0:1], 32")
    g("s_load_dwordx2 s[6:7], s[0:1], 96")
    g(f"v_and_b32 v{vLane}, 63, v0")
    g(f"v_lshrrev_b32 v{vT}, 6, v0")
    g(f"v_readfirstlane_b32 s{sWave}, v{vT}")
    g(f"s_mul_i32 s{sRb}, s2, 3277")
    g(f"s_lshr_b32 s{sRb}, s{sRb}, 16")
    g(f"s_mul_i32 s{sT0}, s{sRb}, 20")
    g(f"s_sub_u32 s{sCb}, s2, s{sT0}")
    g(f"v_lshrrev_b32 v{vT}, 2, v{vLane}")
    g(f"v_mul_u32_u24 v{vWoOff}, 1280, v{vT}")
    g(f"v_and_b32 v{vT2}, 3, v{vLane}")
    g(f"v_lshlrev_b32 v{vT2}, 4, v{vT2}")
    g(f"v_add_u32 v{vWoOff}, v{vWoOff}, v{vT2}")
    for k in range(3):
        g(f"v_add_u32 v{vT}, {k*256}, v0")
        g(f"v_mul_u32_u24 v{vT2}, 43691, v{vT}")
        g(f"v_lshrrev_b32 v{vT2}, 23, v{vT2}")
        g(f"v_mul_u32_u24 v{vT3}, 192, v{vT2}")
        g(f"v_sub_u32 v{vT3}, v{vT}, v{vT3}")
        g(f"v_lshlrev_b32 v{vMo+k}, 12, v{vT2}")
        g(f"v_lshlrev_b32 v{vT3}, 2, v{vT3}")
        g(f"v_add_u32 v{vOo+k}, v{vMo+k}, v{vT3}")
    g("s_waitcnt lgkmcnt(0)")
    srd(g, sWO, 4, 7864320)
    srd(g, sWS, 6, WS_SIZE)
    for b in range(2):
        g(f"s_lshl_b32 s{sT0}, s{sRb}, 14")
        if b:
            g(f"s_add_u32 s{sT0}, s{sT0}, {32*4096}")
        for k in range(3):
            base = vC + (b * 3 + k) * 12
            for s in range(4):
                g(f"buffer_load_dword v{base+s}, v{vOo+k}, s[{sWS}:{sWS+3}], s{sT0} offen offset:{s*1024}")
            for s in range(4):
                g(f"buffer_load_dwordx2 v[{base+4+2*s}:{base+5+2*s}], v{vMo+k}, s[{sWS}:{sWS+3}], s{sT0} offen offset:{s*1024+768}")
    g(f"s_mul_i32 s{sT0}, s{sRb}, {768*1280}")
    g(f"s_mul_i32 s{sT1}, s{sWave}, {192*1280}")
    g(f"s_add_u32 s{sT0}, s{sT0}, s{sT1}")
    g(f"s_lshl_b32 s{sT1}, s{sCb}, 6")
    g(f"s_add_u32 s{sT0}, s{sT0}, s{sT1}")
    for i in range(12):
        g(f"s_add_u32 s{sOff}, s{sT0}, {i*16*1280}")
        g(f"buffer_load_dwordx4 v[{vW+4*i}:{vW+4*i+3}], v{vWoOff}, s[{sWO}:{sWO+3}], s{sOff} offen")
    stamp(g, 1)
    g("s_waitcnt vmcnt(12)")
    stamp(g, 2)
    vM, vF, vNum, vDen, vR, vE = 6, 7, 152, 153, 154, 155
    for b in range(2):
        for k in range(3):
            base = vC + (b * 3 + k) * 12
            m = [base + 4 + 2 * s for s in range(4)]
            l = [base + 5 + 2 * s for s in range(4)]
            g(f"v_max_f32 v{vM}, v{m[0]}, v{m[1]}")
            g(f"v_max3_f32 v{vM}, v{vM}, v{m[2]}, v{m[3]}")
            for s in range(4):
                g(f"v_sub_f32 v{vF}, v{m[s]}, v{vM}")
                g(f"v_mul_f32 v{vF}, {LOG2E:#x}, v{vF}")
                g(f"v_exp_f32 v{vF}, v{vF}")
                if s == 0:
                    g(f"v_mul_f32 v{vNum}, v{vF}, v{base+s}")
                    g(f"v_mul_f32 v{vDen}, v{vF}, v{l[s]}")
                else:
                    g(f"v_fmac_f32 v{vNum}, v{vF}, v{base+s}")
                    g(f"v_fmac_f32 v{vDen}, v{vF}, v{l[s]}")
            divide(g, vF, vNum, vDen, vR, vE)
            bf16r(g, vF, vF)
            g(f"v_lshlrev_b32 v{vT}, 3, v0")
            g(f"ds_write_b32 v{vT}, v{vF} offset:{OC + k*2048 + b*4}")
    g("s_waitcnt lgkmcnt(0)")
    g("s_barrier")
    stamp(g, 3)
    g(f"v_lshrrev_b32 v{vT}, 2, v{vLane}")
    g(f"s_mul_i32 s{sT0}, s{sWave}, 192")
    g(f"v_add_u32 v{vT}, s{sT0}, v{vT}")
    g(f"v_lshlrev_b32 v{vT}, 3, v{vT}")
    vOv = vC
    for i in range(12):
        g(f"ds_read_b64 v[{vOv+2*i}:{vOv+2*i+1}], v{vT} offset:{OC + i*128}")
    for c in range(16):
        g(f"v_mov_b32 v{vAcc+c}, 0")
    g("s_waitcnt lgkmcnt(0)")
    for i in range(12):
        g(f"s_waitcnt vmcnt({11-i})")
        for c in range(4):
            r = vW + 4 * i + c
            g(f"v_lshlrev_b32 v{vT2}, 16, v{r}")
            g(f"v_and_b32 v{vT3}, 0xffff0000, v{r}")
            g(f"v_fmac_f32 v{vAcc+2*c}, v{vT2}, v{vOv+2*i}")
            g(f"v_fmac_f32 v{vAcc+2*c+1}, v{vT3}, v{vOv+2*i}")
            g(f"v_fmac_f32 v{vAcc+8+2*c}, v{vT2}, v{vOv+2*i+1}")
            g(f"v_fmac_f32 v{vAcc+8+2*c+1}, v{vT3}, v{vOv+2*i+1}")
    stamp(g, 4)
    wave_reduce_64(g, vAcc, vLane, sWave, RED, RED2, vT, vT2, vT3, vW, sT0)
    g("s_barrier")
    g(f"s_cmp_eq_u32 s{sWave}, 0")
    g("s_cbranch_scc0 wo_end")
    g(f"v_lshlrev_b32 v{vT}, 2, v{vLane}")
    for w in range(4):
        g(f"ds_read_b32 v{vW+w}, v{vT} offset:{RED2 + w*256}")
    g("s_waitcnt lgkmcnt(0)")
    g(f"v_add_f32 v{vW}, v{vW}, v{vW+1}")
    g(f"v_add_f32 v{vW+2}, v{vW+2}, v{vW+3}")
    g(f"v_add_f32 v{vW}, v{vW}, v{vW+2}")
    g(f"v_lshrrev_b32 v{vT}, 5, v{vLane}")
    g(f"v_mul_u32_u24 v{vT}, 2560, v{vT}")
    g(f"v_and_b32 v{vT2}, 31, v{vLane}")
    g(f"v_lshlrev_b32 v{vT2}, 2, v{vT2}")
    g(f"v_add_u32 v{vT}, v{vT}, v{vT2}")
    g(f"s_mul_i32 s{sT0}, s{sRb}, 5120")
    g(f"s_lshl_b32 s{sT1}, s{sCb}, 7")
    g(f"s_add_u32 s{sT0}, s{sT0}, s{sT1}")
    g(f"s_add_u32 s{sT0}, s{sT0}, {WS_HP}")
    g(f"buffer_store_dword v{vW}, v{vT}, s[{sWS}:{sWS+3}], s{sT0} offen")
    stamp(g, 7)
    if STAMPS:
        g("s_cmp_eq_u32 s2, STAMP_WG".replace("STAMP_WG", str(STAMP_WG)))
        g("s_cbranch_scc0 wo_end")
    if STAMPS:
        g(f"s_cmp_eq_u32 s{sWave}, 0")
        g("s_cbranch_scc0 wo_end")
    stamp_flush(g, 8, 100 if "wo_end" != "fin_end" else 60)
    g.label("wo_end", pad=False)
    g("s_endpgm")
    return L, nv, 40


def wave_reduce_64(g, vAcc, vLane, sWave, RED, RED2, vT, vT2, vT3, vTmp, sT0):
    g(f"v_lshlrev_b32 v{vT}, 6, v0")
    for q in range(4):
        g(f"ds_write_b128 v{vT}, v[{vAcc+4*q}:{vAcc+4*q+3}] offset:{RED + 16*q}")
    g(f"v_bfe_u32 v{vT2}, v{vLane}, 3, 2")
    g(f"v_lshlrev_b32 v{vT2}, 6, v{vT2}")
    g(f"v_lshrrev_b32 v{vT3}, 5, v{vLane}")
    g(f"v_lshlrev_b32 v{vT3}, 5, v{vT3}")
    g(f"v_add_u32 v{vT2}, v{vT2}, v{vT3}")
    g(f"v_and_b32 v{vT3}, 7, v{vLane}")
    g(f"v_lshlrev_b32 v{vT3}, 2, v{vT3}")
    g(f"v_add_u32 v{vT2}, v{vT2}, v{vT3}")
    g(f"s_lshl_b32 s{sT0}, s{sWave}, 12")
    g(f"v_add_u32 v{vT2}, s{sT0}, v{vT2}")
    g("s_waitcnt lgkmcnt(0)")
    for r in range(16):
        g(f"ds_read_b32 v{vTmp+r}, v{vT2} offset:{RED + r*256}")
    g("s_waitcnt lgkmcnt(0)")
    for r in range(1, 16):
        g(f"v_add_f32 v{vTmp}, v{vTmp}, v{vTmp+r}")
    g(f"v_lshlrev_b32 v{vT}, 2, v0")
    g(f"ds_write_b32 v{vT}, v{vTmp} offset:{RED2}")
    g("s_waitcnt lgkmcnt(0)")


def k_ffn(g):
    L = "ffn_kernel"
    header(g, L)
    sX, sW1, sB1, sW2, sWS = 16, 20, 24, 28, 32
    sWave, sT0, sT1, sOff = 36, 37, 38, 39
    sMk = 40
    H, HN, RED, RED2, H1, R3 = 0, 5120, 10240, 30720, 32000, 32768
    vLane, vT, vT2, vT3 = 1, 2, 3, 4
    vAcc = 8
    vW1 = 24
    vW2 = 56
    vHP = 88
    vX = 120
    vH = 124
    vB1 = 122
    vS = 128
    nv = 160
    g("s_cmp_ge_u32 s2, 48")
    g("s_cbranch_scc1 ffn_end")
    stamp(g, 0)
    g("s_load_dwordx2 s[4:5], s[0:1], 0")
    g("s_load_dwordx4 s[8:11], s[0:1], 48")
    g("s_load_dwordx2 s[12:13], s[0:1], 64")
    g("s_load_dwordx2 s[14:15], s[0:1], 96")
    g(f"v_and_b32 v{vLane}, 63, v0")
    g(f"v_lshrrev_b32 v{vT}, 6, v0")
    g(f"v_readfirstlane_b32 s{sWave}, v{vT}")
    g("s_waitcnt lgkmcnt(0)")
    srd(g, sX, 4, 2560)
    srd(g, sW1, 8, 1966080)
    srd(g, sB1, 10, 3072)
    srd(g, sW2, 12, 1966080)
    srd(g, sWS, 14, WS_SIZE)
    g(f"v_lshlrev_b32 v{vT}, 4, v0")
    for rb in range(8):
        g(f"s_mov_b32 s{sOff}, {WS_HP + rb*5120}")
        g(f"buffer_load_dwordx4 v[{vHP+4*rb}:{vHP+4*rb+3}], v{vT}, s[{sWS}:{sWS+3}], s{sOff} offen")
    g(f"v_lshlrev_b32 v{vT2}, 3, v0")
    g(f"buffer_load_dwordx2 v[{vX}:{vX+1}], v{vT2}, s[{sX}:{sX+3}], 0 offen")
    g(f"v_and_b32 v{vT2}, 31, v{vLane}")
    g(f"v_lshlrev_b32 v{vT2}, 1, v{vT2}")
    g(f"s_lshl_b32 s{sT0}, s2, 6")
    g(f"buffer_load_ushort v{vB1}, v{vT2}, s[{sB1}:{sB1+3}], s{sT0} offen")
    g(f"v_lshrrev_b32 v{vT}, 2, v{vLane}")
    g(f"v_mul_u32_u24 v{vT}, 3072, v{vT}")
    g(f"v_and_b32 v{vT2}, 3, v{vLane}")
    g(f"v_lshlrev_b32 v{vT2}, 4, v{vT2}")
    g(f"v_add_u32 v{vT}, v{vT}, v{vT2}")
    g(f"s_mul_i32 s{sT1}, s{sWave}, {128*3072}")
    g(f"s_add_u32 s{sT1}, s{sT1}, s{sT0}")
    for i in range(8):
        g(f"s_add_u32 s{sOff}, s{sT1}, {i*16*3072}")
        g(f"buffer_load_dwordx4 v[{vW1+4*i}:{vW1+4*i+3}], v{vT}, s[{sW1}:{sW1+3}], s{sOff} offen")
    vRG, vCC = 5, 6
    g(f"v_mul_u32_u24 v{vRG}, 52429, v0")
    g(f"v_lshrrev_b32 v{vRG}, 22, v{vRG}")
    g(f"v_mul_u32_u24 v{vT}, 80, v{vRG}")
    g(f"v_sub_u32 v{vCC}, v0, v{vT}")
    g(f"v_mul_u32_u24 v{vT}, {8*1280}, v{vRG}")
    g(f"v_lshlrev_b32 v{vT2}, 4, v{vCC}")
    g(f"v_add_u32 v{vT}, v{vT}, v{vT2}")
    g(f"s_mul_i32 s{sT1}, s2, {32*1280}")
    for i in range(8):
        g(f"s_add_u32 s{sOff}, s{sT1}, {i*1280}")
        g(f"buffer_load_dwordx4 v[{vW2+4*i}:{vW2+4*i+3}], v{vT}, s[{sW2}:{sW2+3}], s{sOff} offen")
    stamp(g, 1)
    g("s_waitcnt vmcnt(17)")
    stamp(g, 2)
    for c in range(4):
        g(f"v_add_f32 v{vH+c}, v{vHP+c}, v{vHP+4+c}")
        for rb in range(2, 8):
            g(f"v_add_f32 v{vH+c}, v{vH+c}, v{vHP+4*rb+c}")
    bf16r2(g, vH, vH + 1, vT)
    bf16r2(g, vH + 2, vH + 3, vT)
    g(f"v_lshlrev_b32 v{vT}, 16, v{vX}")
    g(f"v_add_f32 v{vH}, v{vH}, v{vT}")
    g(f"v_and_b32 v{vT}, 0xffff0000, v{vX}")
    g(f"v_add_f32 v{vH+1}, v{vH+1}, v{vT}")
    g(f"v_lshlrev_b32 v{vT}, 16, v{vX+1}")
    g(f"v_add_f32 v{vH+2}, v{vH+2}, v{vT}")
    g(f"v_and_b32 v{vT}, 0xffff0000, v{vX+1}")
    g(f"v_add_f32 v{vH+3}, v{vH+3}, v{vT}")
    bf16r2(g, vH, vH + 1, vT)
    bf16r2(g, vH + 2, vH + 3, vT)
    g(f"v_lshlrev_b32 v{vT}, 4, v0")
    g(f"ds_write_b128 v{vT}, v[{vH}:{vH+3}] offset:{H}")
    g("s_cmp_eq_u32 s2, 0")
    g("s_cbranch_scc0 ffn_nohh")
    g(f"s_mov_b32 s{sOff}, {WS_HH}")
    g(f"buffer_store_dwordx4 v[{vH}:{vH+3}], v{vT}, s[{sWS}:{sWS+3}], s{sOff} offen")
    g.label("ffn_nohh")
    g("s_waitcnt lgkmcnt(0)")
    g("s_barrier")
    g(f"v_lshlrev_b32 v{vT}, 2, v{vLane}")
    for b in range(2):
        for j in range(10):
            g(f"ds_read_b32 v{vS+10*b+j}, v{vT} offset:{H + b*2560 + j*256}")
    g("s_waitcnt lgkmcnt(0)")
    vMb0, vSd0, vMb1, vSd1 = 148, 149, 150, 151
    ln_stats(g, list(range(vS, vS + 10)), 640, vMb0, vSd0, 152, 153, 154)
    ln_stats(g, list(range(vS + 10, vS + 20)), 640, vMb1, vSd1, 152, 153, 154)
    g(f"v_cmp_le_u32 vcc, 160, v0")
    g(f"s_mov_b64 s[{sMk}:{sMk+1}], vcc")
    g(f"v_cndmask_b32 v{vMb0}, v{vMb0}, v{vMb1}, s[{sMk}:{sMk+1}]")
    g(f"v_cndmask_b32 v{vSd0}, v{vSd0}, v{vSd1}, s[{sMk}:{sMk+1}]")
    for c in range(4):
        ln_apply(g, vH + c, vMb0, vSd0, 152, 153)
    g(f"v_cndmask_b32 v{vT2}, 0, 1, s[{sMk}:{sMk+1}]")
    g(f"v_mul_u32_u24 v{vT3}, 160, v{vT2}")
    g(f"v_sub_u32 v{vT3}, v0, v{vT3}")
    g(f"v_lshlrev_b32 v{vT3}, 5, v{vT3}")
    g(f"v_lshlrev_b32 v{vT2}, 2, v{vT2}")
    g(f"v_add_u32 v{vT3}, v{vT3}, v{vT2}")
    for c in range(4):
        g(f"ds_write_b32 v{vT3}, v{vH+c} offset:{HN + c*8}")
    g("s_waitcnt lgkmcnt(0)")
    g("s_barrier")
    stamp(g, 3)
    g(f"v_lshrrev_b32 v{vT}, 2, v{vLane}")
    g(f"s_lshl_b32 s{sT0}, s{sWave}, 7")
    g(f"v_add_u32 v{vT}, s{sT0}, v{vT}")
    g(f"v_lshlrev_b32 v{vT}, 3, v{vT}")
    vOv = vHP
    for i in range(8):
        g(f"ds_read_b64 v[{vOv+2*i}:{vOv+2*i+1}], v{vT} offset:{HN + i*128}")
    for c in range(16):
        g(f"v_mov_b32 v{vAcc+c}, 0")
    g("s_waitcnt lgkmcnt(0)")
    g("s_waitcnt vmcnt(8)")
    for i in range(8):
        for c in range(4):
            r = vW1 + 4 * i + c
            g(f"v_lshlrev_b32 v{vT2}, 16, v{r}")
            g(f"v_and_b32 v{vT3}, 0xffff0000, v{r}")
            g(f"v_fmac_f32 v{vAcc+2*c}, v{vT2}, v{vOv+2*i}")
            g(f"v_fmac_f32 v{vAcc+2*c+1}, v{vT3}, v{vOv+2*i}")
            g(f"v_fmac_f32 v{vAcc+8+2*c}, v{vT2}, v{vOv+2*i+1}")
            g(f"v_fmac_f32 v{vAcc+8+2*c+1}, v{vT3}, v{vOv+2*i+1}")
    stamp(g, 4)
    wave_reduce_64(g, vAcc, vLane, sWave, RED, RED2, vT, vT2, vT3, vW1, sT0)
    g("s_barrier")
    g(f"s_cmp_eq_u32 s{sWave}, 0")
    g("s_cbranch_scc0 ffn_h1_skip")
    g(f"v_lshlrev_b32 v{vT}, 2, v{vLane}")
    for w in range(5):
        g(f"ds_read_b32 v{vW1+w}, v{vT} offset:{RED2 + w*256}")
    g("s_waitcnt lgkmcnt(0)")
    for w in range(1, 5):
        g(f"v_add_f32 v{vW1}, v{vW1}, v{vW1+w}")
    bf16r(g, vW1, vW1)
    g(f"v_lshlrev_b32 v{vB1}, 16, v{vB1}")
    g(f"v_add_f32 v{vW1}, v{vW1}, v{vB1}")
    bf16r(g, vW1, vW1)
    g(f"v_max_f32 v{vW1}, 0, v{vW1}")
    g(f"v_mul_f32 v{vW1}, v{vW1}, v{vW1}")
    bf16r(g, vW1, vW1)
    g(f"v_and_b32 v{vT}, 31, v{vLane}")
    g(f"v_lshlrev_b32 v{vT}, 3, v{vT}")
    g(f"v_lshrrev_b32 v{vT2}, 5, v{vLane}")
    g(f"v_lshlrev_b32 v{vT2}, 2, v{vT2}")
    g(f"v_add_u32 v{vT}, v{vT}, v{vT2}")
    g(f"ds_write_b32 v{vT}, v{vW1} offset:{H1}")
    g("s_waitcnt lgkmcnt(0)")
    g.label("ffn_h1_skip")
    g("s_barrier")
    stamp(g, 5)
    g(f"v_lshlrev_b32 v{vT}, 6, v{vRG}")
    for i in range(8):
        g(f"ds_read_b64 v[{vOv+2*i}:{vOv+2*i+1}], v{vT} offset:{H1 + i*8}")
    for c in range(16):
        g(f"v_mov_b32 v{vAcc+c}, 0")
    g("s_waitcnt lgkmcnt(0)")
    g("s_waitcnt vmcnt(0)")
    for i in range(8):
        for c in range(4):
            r = vW2 + 4 * i + c
            g(f"v_lshlrev_b32 v{vT2}, 16, v{r}")
            g(f"v_and_b32 v{vT3}, 0xffff0000, v{r}")
            g(f"v_fmac_f32 v{vAcc+2*c}, v{vT2}, v{vOv+2*i}")
            g(f"v_fmac_f32 v{vAcc+2*c+1}, v{vT3}, v{vOv+2*i}")
            g(f"v_fmac_f32 v{vAcc+8+2*c}, v{vT2}, v{vOv+2*i+1}")
            g(f"v_fmac_f32 v{vAcc+8+2*c+1}, v{vT3}, v{vOv+2*i+1}")
    stamp(g, 6)
    g(f"v_mul_u32_u24 v{vT}, 5120, v{vRG}")
    g(f"v_lshlrev_b32 v{vT2}, 5, v{vCC}")
    g(f"v_add_u32 v{vT}, v{vT}, v{vT2}")
    for b in range(2):
        for q in range(2):
            r = vAcc + 8 * b + 4 * q
            g(f"ds_write_b128 v{vT}, v[{r}:{r+3}] offset:{R3 + b*2560 + q*16}")
    g("s_waitcnt lgkmcnt(0)")
    g("s_barrier")
    g(f"v_lshlrev_b32 v{vT}, 4, v0")
    for rg in range(4):
        g(f"ds_read_b128 v[{vW1+4*rg}:{vW1+4*rg+3}], v{vT} offset:{R3 + rg*5120}")
    g("s_waitcnt lgkmcnt(0)")
    for c in range(4):
        g(f"v_add_f32 v{vW1+c}, v{vW1+c}, v{vW1+4+c}")
        g(f"v_add_f32 v{vW1+8+c}, v{vW1+8+c}, v{vW1+12+c}")
        g(f"v_add_f32 v{vW1+c}, v{vW1+c}, v{vW1+8+c}")
    g(f"s_mul_i32 s{sT0}, s2, 5120")
    g(f"s_add_u32 s{sT0}, s{sT0}, {WS_FP}")
    g(f"buffer_store_dwordx4 v[{vW1}:{vW1+3}], v{vT}, s[{sWS}:{sWS+3}], s{sT0} offen")
    stamp(g, 7)
    if STAMPS:
        g("s_cmp_eq_u32 s2, STAMP_WG".replace("STAMP_WG", str(STAMP_WG)))
        g("s_cbranch_scc0 ffn_end")
    if STAMPS:
        g(f"s_cmp_eq_u32 s{sWave}, 0")
        g("s_cbranch_scc0 ffn_end")
    stamp_flush(g, 8, 100 if "ffn_end" != "fin_end" else 60)
    g.label("ffn_end", pad=False)
    g("s_endpgm")
    return L, nv, 48


def k_fin(g):
    L = "fin_kernel"
    header(g, L)
    sB2, sOut, sWS = 16, 20, 24
    sT0, sOff = 28, 29
    vE, vT, vH, vB = 1, 2, 3, 4
    vP = 8
    nv = 64
    g("s_cmp_ge_u32 s2, 20")
    g("s_cbranch_scc1 fin_end")
    stamp(g, 0)
    g("s_load_dwordx2 s[4:5], s[0:1], 72")
    g("s_load_dwordx2 s[6:7], s[0:1], 80")
    g("s_load_dwordx2 s[8:9], s[0:1], 96")
    g(f"s_lshl_b32 s{sT0}, s2, 6")
    g(f"v_add_u32 v{vE}, s{sT0}, v0")
    g(f"v_lshlrev_b32 v{vT}, 2, v{vE}")
    g("s_waitcnt lgkmcnt(0)")
    srd(g, sB2, 4, 1280)
    srd(g, sOut, 6, 2560)
    srd(g, sWS, 8, WS_SIZE)
    for j in range(48):
        g(f"s_mov_b32 s{sOff}, {WS_FP + j*5120}")
        g(f"buffer_load_dword v{vP+j}, v{vT}, s[{sWS}:{sWS+3}], s{sOff} offen")
    g(f"s_mov_b32 s{sOff}, {WS_HH}")
    g(f"buffer_load_dword v{vH}, v{vT}, s[{sWS}:{sWS+3}], s{sOff} offen")
    g(f"s_cmp_ge_u32 s2, 10")
    g(f"s_cselect_b32 s{sT0}, 640, 0")
    g(f"v_subrev_u32 v{vT}, s{sT0}, v{vE}")
    g(f"v_lshlrev_b32 v{vT}, 1, v{vT}")
    g(f"buffer_load_ushort v{vB}, v{vT}, s[{sB2}:{sB2+3}], 0 offen")
    g("s_waitcnt vmcnt(0)")
    for j in range(1, 48):
        g(f"v_add_f32 v{vP}, v{vP}, v{vP+j}")
    bf16r(g, vP, vP)
    g(f"v_lshlrev_b32 v{vB}, 16, v{vB}")
    g(f"v_add_f32 v{vP}, v{vP}, v{vB}")
    bf16r(g, vP, vP)
    g(f"v_add_f32 v{vP}, v{vP}, v{vH}")
    g(f"v_cvt_pk_bf16_f32 v{vP}, v{vP}, v{vP}")
    g(f"v_lshlrev_b32 v{vT}, 1, v{vE}")
    g(f"buffer_store_short v{vP}, v{vT}, s[{sOut}:{sOut+3}], 0 offen")
    stamp(g, 7)
    if STAMPS:
        g("s_cmp_eq_u32 s2, STAMP_WG".replace("STAMP_WG", str(STAMP_WG)))
        g("s_cbranch_scc0 fin_end")
    stamp_flush(g, 8, 100 if "fin_end" != "fin_end" else 60)
    g.label("fin_end", pad=False)
    g("s_endpgm")
    return L, nv, 40


def poll(g, name, issue, regs, vt):
    g.label(name)
    issue()
    g("s_waitcnt vmcnt(0)")
    rs = list(regs)
    g(f"v_max3_u32 v{vt}, v{rs[0]}, v{rs[1]}, v{rs[2]}")
    k = 3
    while k < len(rs):
        if k + 1 < len(rs):
            g(f"v_max3_u32 v{vt}, v{vt}, v{rs[k]}, v{rs[k+1]}")
            k += 2
        else:
            g(f"v_max_u32 v{vt}, v{vt}, v{rs[k]}")
            k += 1
    g(f"v_cmp_eq_u32 vcc, -1, v{vt}")
    g(f"s_cbranch_vccz {name}_done")
    g("s_sleep 2")
    g(f"s_branch {name}")
    g.label(name + "_done")


def half_reduce(g, v, t):
    op = "v_add_f32"
    g(f"{op}_dpp v{v}, v{v}, v{v} quad_perm:[1,0,3,2] row_mask:0xf bank_mask:0xf")
    g(f"{op}_dpp v{v}, v{v}, v{v} quad_perm:[2,3,0,1] row_mask:0xf bank_mask:0xf")
    g(f"{op}_dpp v{v}, v{v}, v{v} row_half_mirror row_mask:0xf bank_mask:0xf")
    g(f"{op}_dpp v{v}, v{v}, v{v} row_mirror row_mask:0xf bank_mask:0xf")
    g(f"v_mov_b32 v{t}, v{v}")
    g(f"v_permlane16_swap_b32 v{v}, v{t}")
    g(f"{op} v{v}, v{v}, v{t}")


def gemv_step(g, vW, vAcc, o0, o1, t2, t3):
    for c in range(4):
        r = vW + c
        g(f"v_lshlrev_b32 v{t2}, 16, v{r}")
        g(f"v_and_b32 v{t3}, 0xffff0000, v{r}")
        g(f"v_fmac_f32 v{vAcc+2*c}, v{t2}, v{o0}")
        g(f"v_fmac_f32 v{vAcc+2*c+1}, v{t3}, v{o0}")
        g(f"v_fmac_f32 v{vAcc+8+2*c}, v{t2}, v{o1}")
        g(f"v_fmac_f32 v{vAcc+8+2*c+1}, v{t3}, v{o1}")


def k_tail(g):
    L = "tail_kernel"
    header(g, L)
    sWave, sT0, sT1, sOff = 36, 37, 38, 39
    vLane, vT, vT2, vT3 = 1, 2, 3, 4
    g("s_cmp_ge_u32 s2, 228")
    g("s_cbranch_scc1 tail_end")
    stamp(g, 0)
    g("s_load_dwordx2 s[14:15], s[0:1], 96")
    g(f"v_and_b32 v{vLane}, 63, v0")
    g(f"v_lshrrev_b32 v{vT}, 6, v0")
    g(f"v_readfirstlane_b32 s{sWave}, v{vT}")
    g("s_cmp_ge_u32 s2, 208")
    g("s_cbranch_scc1 tail_fin")
    g("s_cmp_ge_u32 s2, 160")
    g("s_cbranch_scc1 tail_ffn")

    sWO, sWS = 16, 20
    sRb, sCb = 24, 25
    OC, RED, RED2 = 0, 8192, 32768
    vWoOff, vOo, vMo, vB = 5, 6, 7, 40
    vAcc = 8
    vML = 24
    vM, vF, vDen, vR = 32, 33, 34, 35
    vN = 36
    vO = 44
    vW = 60
    vOv = 92
    g("s_load_dwordx2 s[4:5], s[0:1], 32")
    g(f"s_mul_i32 s{sRb}, s2, 3277")
    g(f"s_lshr_b32 s{sRb}, s{sRb}, 16")
    g(f"s_mul_i32 s{sT0}, s{sRb}, 20")
    g(f"s_sub_u32 s{sCb}, s2, s{sT0}")
    g(f"v_lshrrev_b32 v{vT}, 2, v{vLane}")
    g(f"v_mul_u32_u24 v{vWoOff}, 1280, v{vT}")
    g(f"v_and_b32 v{vT2}, 3, v{vLane}")
    g(f"v_lshlrev_b32 v{vT2}, 4, v{vT2}")
    g(f"v_add_u32 v{vWoOff}, v{vWoOff}, v{vT2}")
    g(f"v_cmp_le_u32 vcc, 192, v0")
    g(f"v_cndmask_b32 v{vB}, 0, 1, vcc")
    g(f"v_mul_u32_u24 v{vT}, 192, v{vB}")
    g(f"v_sub_u32 v{vT}, v0, v{vT}")
    g(f"v_mul_u32_u24 v{vT2}, 1366, v{vT}")
    g(f"v_lshrrev_b32 v{vT2}, 16, v{vT2}")
    g(f"v_mul_u32_u24 v{vT3}, 48, v{vT2}")
    g(f"v_sub_u32 v{vT3}, v{vT}, v{vT3}")
    g(f"v_lshlrev_b32 v{vB}, 5, v{vB}")
    g(f"v_add_u32 v{vT2}, v{vT2}, v{vB}")
    g(f"v_lshlrev_b32 v{vMo}, 5, v{vT2}")
    g(f"v_mul_u32_u24 v{vOo}, 3072, v{vT2}")
    g(f"v_lshlrev_b32 v{vT3}, 4, v{vT3}")
    g(f"v_add_u32 v{vOo}, v{vOo}, v{vT3}")
    g("s_waitcnt lgkmcnt(0)")
    srd(g, sWS, 14, WS_SIZE)
    srd(g, sWO, 4, 7864320)
    g(f"s_mul_i32 s{sT0}, s{sRb}, {4*3072}")
    for sp in range(4):
        g(f"buffer_load_dwordx4 v[{vO+4*sp}:{vO+4*sp+3}], v{vOo}, s[{sWS}:{sWS+3}], s{sT0} offen offset:{WS_PART + sp*768}")
    g(f"s_lshl_b32 s{sT0}, s{sRb}, 7")
    g(f"s_add_u32 s{sT0}, s{sT0}, {WS_ML}")
    for q in range(2):
        g(f"buffer_load_dwordx4 v[{vML+4*q}:{vML+4*q+3}], v{vMo}, s[{sWS}:{sWS+3}], s{sT0} offen offset:{q*16}")
    g(f"s_mul_i32 s{sT0}, s{sRb}, {768*1280}")
    g(f"s_mul_i32 s{sT1}, s{sWave}, {128*1280}")
    g(f"s_add_u32 s{sT0}, s{sT0}, s{sT1}")
    g(f"s_lshl_b32 s{sT1}, s{sCb}, 6")
    g(f"s_add_u32 s{sT0}, s{sT0}, s{sT1}")
    for i in range(8):
        g(f"s_add_u32 s{sOff}, s{sT0}, {i*16*1280}")
        g(f"buffer_load_dwordx4 v[{vW+4*i}:{vW+4*i+3}], v{vWoOff}, s[{sWO}:{sWO+3}], s{sOff} offen")
    for c in range(16):
        g(f"v_mov_b32 v{vAcc+c}, 0")
    stamp(g, 1)
    g("s_waitcnt vmcnt(8)")
    stamp(g, 2)
    g(f"v_max_f32 v{vM}, v{vML}, v{vML+2}")
    g(f"v_max3_f32 v{vM}, v{vM}, v{vML+4}, v{vML+6}")
    for sp in range(4):
        g(f"v_sub_f32 v{vF}, v{vML+2*sp}, v{vM}")
        g(f"v_mul_f32 v{vF}, {LOG2E:#x}, v{vF}")
        g(f"v_exp_f32 v{vF}, v{vF}")
        if sp == 0:
            g(f"v_mul_f32 v{vDen}, v{vF}, v{vML+1}")
            for c in range(4):
                g(f"v_mul_f32 v{vN+c}, v{vF}, v{vO+c}")
        else:
            g(f"v_fmac_f32 v{vDen}, v{vF}, v{vML+2*sp+1}")
            for c in range(4):
                g(f"v_fmac_f32 v{vN+c}, v{vF}, v{vO+4*sp+c}")
    g(f"v_rcp_f32 v{vR}, v{vDen}")
    for c in range(4):
        g(f"v_mul_f32 v{vO+c}, v{vN+c}, v{vR}")
        g(f"v_fma_f32 v{vN+c}, -v{vO+c}, v{vDen}, v{vN+c}")
        g(f"v_fma_f32 v{vO+c}, v{vN+c}, v{vR}, v{vO+c}")
    bf16r2(g, vO, vO + 1, vT)
    bf16r2(g, vO + 2, vO + 3, vT)
    g(f"v_lshlrev_b32 v{vT}, 4, v0")
    g(f"ds_write_b128 v{vT}, v[{vO}:{vO+3}] offset:{OC}")
    g(f"v_lshrrev_b32 v{vT}, 2, v{vLane}")
    g(f"s_lshl_b32 s{sT0}, s{sWave}, 7")
    g(f"v_add_u32 v{vT}, s{sT0}, v{vT}")
    g(f"v_lshlrev_b32 v{vT}, 2, v{vT}")
    g("s_waitcnt lgkmcnt(0)")
    g("s_barrier")
    stamp(g, 3)
    for i in range(8):
        g(f"ds_read_b32 v{vOv+2*i}, v{vT} offset:{OC + i*64}")
        g(f"ds_read_b32 v{vOv+2*i+1}, v{vT} offset:{OC + 3072 + i*64}")
    g("s_waitcnt lgkmcnt(0)")
    for i in range(8):
        g(f"s_waitcnt vmcnt({7-i})")
        gemv_step(g, vW + 4 * i, vAcc, vOv + 2 * i, vOv + 2 * i + 1, vT2, vT3)
    stamp(g, 4)
    wave_reduce_64(g, vAcc, vLane, sWave, RED, RED2, vT, vT2, vT3, vW, sT0)
    g("s_barrier")
    g(f"s_cmp_eq_u32 s{sWave}, 0")
    g("s_cbranch_scc0 tail_end")
    g(f"v_lshlrev_b32 v{vT}, 2, v{vLane}")
    for w in range(6):
        g(f"ds_read_b32 v{vW+w}, v{vT} offset:{RED2 + w*256}")
    g(f"v_lshrrev_b32 v{vT}, 5, v{vLane}")
    g(f"v_mul_u32_u24 v{vT}, 2560, v{vT}")
    g(f"v_and_b32 v{vT2}, 31, v{vLane}")
    g(f"v_lshlrev_b32 v{vT2}, 2, v{vT2}")
    g(f"v_add_u32 v{vT}, v{vT}, v{vT2}")
    g(f"s_mul_i32 s{sT0}, s{sRb}, 5120")
    g(f"s_lshl_b32 s{sT1}, s{sCb}, 7")
    g(f"s_add_u32 s{sT0}, s{sT0}, s{sT1}")
    g(f"s_add_u32 s{sT0}, s{sT0}, {WS_HP}")
    g("s_waitcnt lgkmcnt(0)")
    g(f"v_add_f32 v{vW}, v{vW}, v{vW+1}")
    g(f"v_add_f32 v{vW+2}, v{vW+2}, v{vW+3}")
    g(f"v_add_f32 v{vW+4}, v{vW+4}, v{vW+5}")
    g(f"v_add_f32 v{vW}, v{vW}, v{vW+2}")
    g(f"v_add_f32 v{vW}, v{vW}, v{vW+4}")
    g(f"buffer_store_dword v{vW}, v{vT}, s[{sWS}:{sWS+3}], s{sT0} offen sc1")
    stamp(g, 7)
    if STAMPS:
        g(f"s_cmp_eq_u32 s2, {STAMP_WG}")
        g("s_cbranch_scc0 tail_end")
        stamp_flush(g, 8, 100, 0)
    g("s_endpgm")

    g.label("tail_ffn")
    g(f"s_cmp_eq_u32 s{sWave}, 5")
    g("s_cbranch_scc1 tail_end")
    sX, sW1, sB1, sW2, sWS = 16, 20, 24, 28, 32
    sFb = 40
    sMk = 42
    SUM, SUM2, HN, RED, RED2, H1, R3 = 0, 64, 5120, 10240, 30720, 32000, 32768
    vAcc = 8
    vW1 = 24
    vW2 = 56
    vHP = 88
    vX = 120
    vB1 = 122
    vH = 124
    vRG, vCC = 5, 6
    vHa = 7
    vS = 128
    vMb, vSd = 136, 137
    g("s_load_dwordx2 s[4:5], s[0:1], 0")
    g("s_load_dwordx4 s[8:11], s[0:1], 48")
    g("s_load_dwordx2 s[12:13], s[0:1], 64")
    g(f"s_sub_u32 s{sFb}, s2, 160")
    g(f"v_lshlrev_b32 v{vHa}, 4, v0")
    g("s_waitcnt lgkmcnt(0)")
    srd(g, sX, 4, 2560)
    srd(g, sW1, 8, 1966080)
    srd(g, sB1, 10, 3072)
    srd(g, sW2, 12, 1966080)
    srd(g, sWS, 14, WS_SIZE)
    g(f"v_lshlrev_b32 v{vT2}, 3, v0")
    g(f"buffer_load_dwordx2 v[{vX}:{vX+1}], v{vT2}, s[{sX}:{sX+3}], 0 offen")
    g(f"v_and_b32 v{vT2}, 31, v{vLane}")
    g(f"v_lshlrev_b32 v{vT2}, 1, v{vT2}")
    g(f"s_lshl_b32 s{sT0}, s{sFb}, 6")
    g(f"buffer_load_ushort v{vB1}, v{vT2}, s[{sB1}:{sB1+3}], s{sT0} offen")
    g(f"v_lshrrev_b32 v{vT}, 2, v{vLane}")
    g(f"v_mul_u32_u24 v{vT}, 3072, v{vT}")
    g(f"v_and_b32 v{vT2}, 3, v{vLane}")
    g(f"v_lshlrev_b32 v{vT2}, 4, v{vT2}")
    g(f"v_add_u32 v{vT}, v{vT}, v{vT2}")
    g(f"s_mul_i32 s{sT1}, s{sWave}, {128*3072}")
    g(f"s_add_u32 s{sT1}, s{sT1}, s{sT0}")
    for i in range(8):
        g(f"s_add_u32 s{sOff}, s{sT1}, {i*16*3072}")
        g(f"buffer_load_dwordx4 v[{vW1+4*i}:{vW1+4*i+3}], v{vT}, s[{sW1}:{sW1+3}], s{sOff} offen")
    g(f"v_mul_u32_u24 v{vRG}, 52429, v0")
    g(f"v_lshrrev_b32 v{vRG}, 22, v{vRG}")
    g(f"v_mul_u32_u24 v{vT}, 80, v{vRG}")
    g(f"v_sub_u32 v{vCC}, v0, v{vT}")
    g(f"v_mul_u32_u24 v{vT}, {8*1280}, v{vRG}")
    g(f"v_lshlrev_b32 v{vT2}, 4, v{vCC}")
    g(f"v_add_u32 v{vT}, v{vT}, v{vT2}")
    g(f"s_mul_i32 s{sT1}, s{sFb}, {32*1280}")
    for i in range(8):
        g(f"s_add_u32 s{sOff}, s{sT1}, {i*1280}")
        g(f"buffer_load_dwordx4 v[{vW2+4*i}:{vW2+4*i+3}], v{vT}, s[{sW2}:{sW2+3}], s{sOff} offen")
    g(f"v_cmp_le_u32 vcc, 160, v0")
    g(f"s_mov_b64 s[{sMk}:{sMk+1}], vcc")
    vBt, vSw, vSr, vHNa = 138, 139, 140, 141
    g(f"v_cndmask_b32 v{vBt}, 0, 1, s[{sMk}:{sMk+1}]")
    g(f"v_lshrrev_b32 v{vT}, 5, v0")
    g(f"v_mul_u32_u24 v{vT2}, 3, v{vBt}")
    g(f"v_add_u32 v{vT}, v{vT}, v{vT2}")
    g(f"v_lshlrev_b32 v{vSw}, 2, v{vT}")
    g(f"v_lshlrev_b32 v{vSr}, 5, v{vBt}")
    g(f"v_mul_u32_u24 v{vT3}, 160, v{vBt}")
    g(f"v_sub_u32 v{vT3}, v0, v{vT3}")
    g(f"v_lshlrev_b32 v{vT3}, 5, v{vT3}")
    g(f"v_lshlrev_b32 v{vT2}, 2, v{vBt}")
    g(f"v_add_u32 v{vHNa}, v{vT3}, v{vT2}")
    stamp(g, 1)

    def issue_hp():
        for rb in range(8):
            g(f"s_mov_b32 s{sOff}, {WS_HP + rb*5120}")
            g(f"buffer_load_dwordx4 v[{vHP+4*rb}:{vHP+4*rb+3}], v{vHa}, s[{sWS}:{sWS+3}], s{sOff} offen sc1")
    poll(g, "ffn_poll", issue_hp, range(vHP, vHP + 32), vT)
    stamp(g, 2)
    for c in range(4):
        g(f"v_add_f32 v{vH+c}, v{vHP+c}, v{vHP+4+c}")
        g(f"v_add_f32 v{vT}, v{vHP+8+c}, v{vHP+12+c}")
        g(f"v_add_f32 v{vT2}, v{vHP+16+c}, v{vHP+20+c}")
        g(f"v_add_f32 v{vT3}, v{vHP+24+c}, v{vHP+28+c}")
        g(f"v_add_f32 v{vH+c}, v{vH+c}, v{vT}")
        g(f"v_add_f32 v{vT2}, v{vT2}, v{vT3}")
        g(f"v_add_f32 v{vH+c}, v{vH+c}, v{vT2}")
    bf16r2(g, vH, vH + 1, vT)
    bf16r2(g, vH + 2, vH + 3, vT)
    g(f"v_lshlrev_b32 v{vT}, 16, v{vX}")
    g(f"v_add_f32 v{vH}, v{vH}, v{vT}")
    g(f"v_and_b32 v{vT}, 0xffff0000, v{vX}")
    g(f"v_add_f32 v{vH+1}, v{vH+1}, v{vT}")
    g(f"v_lshlrev_b32 v{vT}, 16, v{vX+1}")
    g(f"v_add_f32 v{vH+2}, v{vH+2}, v{vT}")
    g(f"v_and_b32 v{vT}, 0xffff0000, v{vX+1}")
    g(f"v_add_f32 v{vH+3}, v{vH+3}, v{vT}")
    bf16r2(g, vH, vH + 1, vT)
    bf16r2(g, vH + 2, vH + 3, vT)
    g(f"s_cmp_eq_u32 s{sFb}, 0")
    g("s_cbranch_scc0 ffn_nohh")
    g(f"s_mov_b32 s{sOff}, {WS_HH}")
    g(f"buffer_store_dwordx4 v[{vH}:{vH+3}], v{vHa}, s[{sWS}:{sWS+3}], s{sOff} offen sc1")
    g.label("ffn_nohh")
    g(f"v_add_f32 v{vT}, v{vH}, v{vH+1}")
    g(f"v_add_f32 v{vT2}, v{vH+2}, v{vH+3}")
    g(f"v_add_f32 v{vT}, v{vT}, v{vT2}")
    half_reduce(g, vT, vT2)
    g(f"ds_write_b32 v{vSw}, v{vT} offset:{SUM}")
    g("s_waitcnt lgkmcnt(0)")
    g("s_barrier")
    g(f"ds_read_b128 v[{vS}:{vS+3}], v{vSr} offset:{SUM}")
    g(f"ds_read_b32 v{vS+4}, v{vSr} offset:{SUM+16}")
    g("s_waitcnt lgkmcnt(0)")
    g(f"v_add_f32 v{vS}, v{vS}, v{vS+1}")
    g(f"v_add_f32 v{vS+2}, v{vS+2}, v{vS+3}")
    g(f"v_add_f32 v{vS}, v{vS}, v{vS+4}")
    g(f"v_add_f32 v{vS}, v{vS}, v{vS+2}")
    g(f"v_mul_f32 v{vS+5}, {INV640:#x}, v{vS}")
    g(f"v_sub_f32 v{vT2}, v{vH}, v{vS+5}")
    g(f"v_mul_f32 v{vT}, v{vT2}, v{vT2}")
    for c in range(1, 4):
        g(f"v_sub_f32 v{vT2}, v{vH+c}, v{vS+5}")
        g(f"v_fmac_f32 v{vT}, v{vT2}, v{vT2}")
    half_reduce(g, vT, vT2)
    g(f"ds_write_b32 v{vSw}, v{vT} offset:{SUM2}")
    bf16r(g, vMb, vS + 5)
    g("s_waitcnt lgkmcnt(0)")
    g("s_barrier")
    g(f"ds_read_b128 v[{vS}:{vS+3}], v{vSr} offset:{SUM2}")
    g(f"ds_read_b32 v{vS+4}, v{vSr} offset:{SUM2+16}")
    for c in range(4):
        g(f"v_sub_f32 v{vH+c}, v{vH+c}, v{vMb}")
    bf16r2(g, vH, vH + 1, vT)
    bf16r2(g, vH + 2, vH + 3, vT)
    g("s_waitcnt lgkmcnt(0)")
    g(f"v_add_f32 v{vS}, v{vS}, v{vS+1}")
    g(f"v_add_f32 v{vS+2}, v{vS+2}, v{vS+3}")
    g(f"v_add_f32 v{vS}, v{vS}, v{vS+4}")
    g(f"v_add_f32 v{vS}, v{vS}, v{vS+2}")
    g(f"v_mul_f32 v{vS}, {INV640:#x}, v{vS}")
    bf16r(g, vS, vS)
    g(f"v_add_f32 v{vS}, {EPS:#x}, v{vS}")
    bf16r(g, vS, vS)
    g(f"v_sqrt_f32 v{vS}, v{vS}")
    bf16r(g, vSd, vS)
    g(f"v_rcp_f32 v{vS+1}, v{vSd}")
    for c in range(4):
        g(f"v_mul_f32 v{vS+2}, v{vH+c}, v{vS+1}")
        g(f"v_fma_f32 v{vH+c}, -v{vS+2}, v{vSd}, v{vH+c}")
        g(f"v_fma_f32 v{vH+c}, v{vH+c}, v{vS+1}, v{vS+2}")
    bf16r2(g, vH, vH + 1, vT)
    bf16r2(g, vH + 2, vH + 3, vT)
    for c in range(4):
        g(f"ds_write_b32 v{vHNa}, v{vH+c} offset:{HN + c*8}")
    g(f"v_lshrrev_b32 v{vT}, 2, v{vLane}")
    g(f"s_lshl_b32 s{sT0}, s{sWave}, 7")
    g(f"v_add_u32 v{vT}, s{sT0}, v{vT}")
    g(f"v_lshlrev_b32 v{vT}, 3, v{vT}")
    for c in range(16):
        g(f"v_mov_b32 v{vAcc+c}, 0")
    g("s_waitcnt lgkmcnt(0)")
    g("s_barrier")
    stamp(g, 3)
    vOv = vHP
    for i in range(8):
        g(f"ds_read_b64 v[{vOv+2*i}:{vOv+2*i+1}], v{vT} offset:{HN + i*128}")
    for i in range(8):
        g(f"s_waitcnt lgkmcnt({7-i})")
        gemv_step(g, vW1 + 4 * i, vAcc, vOv + 2 * i, vOv + 2 * i + 1, vT2, vT3)
    stamp(g, 4)
    wave_reduce_64(g, vAcc, vLane, sWave, RED, RED2, vT, vT2, vT3, vW1, sT0)
    g("s_barrier")
    g(f"s_cmp_eq_u32 s{sWave}, 0")
    g("s_cbranch_scc0 ffn_h1_skip")
    g(f"v_lshlrev_b32 v{vT}, 2, v{vLane}")
    for w in range(5):
        g(f"ds_read_b32 v{vW1+w}, v{vT} offset:{RED2 + w*256}")
    g(f"v_lshlrev_b32 v{vB1}, 16, v{vB1}")
    g(f"v_and_b32 v{vT}, 31, v{vLane}")
    g(f"v_lshlrev_b32 v{vT}, 3, v{vT}")
    g(f"v_lshrrev_b32 v{vT2}, 5, v{vLane}")
    g(f"v_lshlrev_b32 v{vT2}, 2, v{vT2}")
    g(f"v_add_u32 v{vT}, v{vT}, v{vT2}")
    g("s_waitcnt lgkmcnt(0)")
    g(f"v_add_f32 v{vW1}, v{vW1}, v{vW1+1}")
    g(f"v_add_f32 v{vW1+2}, v{vW1+2}, v{vW1+3}")
    g(f"v_add_f32 v{vW1}, v{vW1}, v{vW1+4}")
    g(f"v_add_f32 v{vW1}, v{vW1}, v{vW1+2}")
    bf16r(g, vW1, vW1)
    g(f"v_add_f32 v{vW1}, v{vW1}, v{vB1}")
    bf16r(g, vW1, vW1)
    g(f"v_max_f32 v{vW1}, 0, v{vW1}")
    g(f"v_mul_f32 v{vW1}, v{vW1}, v{vW1}")
    bf16r(g, vW1, vW1)
    g(f"ds_write_b32 v{vT}, v{vW1} offset:{H1}")
    g("s_waitcnt lgkmcnt(0)")
    g.label("ffn_h1_skip")
    g(f"v_lshlrev_b32 v{vT}, 6, v{vRG}")
    for c in range(16):
        g(f"v_mov_b32 v{vAcc+c}, 0")
    g("s_barrier")
    stamp(g, 5)
    for i in range(0, 8, 2):
        g(f"ds_read_b128 v[{vOv+2*i}:{vOv+2*i+3}], v{vT} offset:{H1 + i*8}")
    g("s_waitcnt lgkmcnt(0)")
    for i in range(8):
        gemv_step(g, vW2 + 4 * i, vAcc, vOv + 2 * i, vOv + 2 * i + 1, vT2, vT3)
    stamp(g, 6)
    g(f"v_mul_u32_u24 v{vT}, 5120, v{vRG}")
    g(f"v_lshlrev_b32 v{vT2}, 5, v{vCC}")
    g(f"v_add_u32 v{vT}, v{vT}, v{vT2}")
    for b in range(2):
        for q in range(2):
            r = vAcc + 8 * b + 4 * q
            g(f"ds_write_b128 v{vT}, v[{r}:{r+3}] offset:{R3 + b*2560 + q*16}")
    g("s_waitcnt lgkmcnt(0)")
    g("s_barrier")
    for rg in range(4):
        g(f"ds_read_b128 v[{vW1+4*rg}:{vW1+4*rg+3}], v{vHa} offset:{R3 + rg*5120}")
    g(f"s_mul_i32 s{sT0}, s{sFb}, 5120")
    g(f"s_add_u32 s{sT0}, s{sT0}, {WS_FP}")
    g("s_waitcnt lgkmcnt(0)")
    for c in range(4):
        g(f"v_add_f32 v{vW1+c}, v{vW1+c}, v{vW1+4+c}")
        g(f"v_add_f32 v{vW1+8+c}, v{vW1+8+c}, v{vW1+12+c}")
        g(f"v_add_f32 v{vW1+c}, v{vW1+c}, v{vW1+8+c}")
    g(f"buffer_store_dwordx4 v[{vW1}:{vW1+3}], v{vHa}, s[{sWS}:{sWS+3}], s{sT0} offen sc1")
    stamp(g, 7)
    if STAMPS:
        g(f"s_cmp_eq_u32 s2, 160")
        g("s_cbranch_scc0 tail_end")
        g(f"s_cmp_eq_u32 s{sWave}, 0")
        g("s_cbranch_scc0 tail_end")
        stamp_flush(g, 8, 100, 32)
    g("s_endpgm")

    g.label("tail_fin")
    sB2, sOut, sWS = 16, 20, 24
    sFi = 28
    FL = 0
    vE, vHh, vB2 = 5, 6, 7
    vP = 8
    g("s_load_dwordx2 s[4:5], s[0:1], 72")
    g("s_load_dwordx2 s[6:7], s[0:1], 80")
    g(f"s_sub_u32 s{sFi}, s2, 208")
    g(f"s_lshl_b32 s{sT0}, s{sFi}, 6")
    g(f"v_add_u32 v{vE}, s{sT0}, v{vLane}")
    g(f"v_lshlrev_b32 v{vT3}, 2, v{vE}")
    g("s_waitcnt lgkmcnt(0)")
    srd(g, sB2, 4, 1280)
    srd(g, sOut, 6, 2560)
    srd(g, sWS, 14, WS_SIZE)
    g(f"s_cmp_ge_u32 s{sFi}, 10")
    g(f"s_cselect_b32 s{sT0}, 640, 0")
    g(f"v_subrev_u32 v{vT}, s{sT0}, v{vE}")
    g(f"v_lshlrev_b32 v{vT}, 1, v{vT}")
    g(f"buffer_load_ushort v{vB2}, v{vT}, s[{sB2}:{sB2+3}], 0 offen")
    g(f"s_mul_i32 s{sT1}, s{sWave}, {8*5120}")
    g(f"s_add_u32 s{sT1}, s{sT1}, {WS_FP}")

    def issue_fp():
        for j in range(8):
            g(f"s_add_u32 s{sOff}, s{sT1}, {j*5120}")
            g(f"buffer_load_dword v{vP+j}, v{vT3}, s[{sWS}:{sWS+3}], s{sOff} offen sc1")
        g(f"s_mov_b32 s{sOff}, {WS_HH}")
        g(f"buffer_load_dword v{vP+8}, v{vT3}, s[{sWS}:{sWS+3}], s{sOff} offen sc1")
    poll(g, "fin_poll", issue_fp, range(vP, vP + 9), vT)
    stamp(g, 2)
    g(f"v_add_f32 v{vP}, v{vP}, v{vP+1}")
    g(f"v_add_f32 v{vP+2}, v{vP+2}, v{vP+3}")
    g(f"v_add_f32 v{vP+4}, v{vP+4}, v{vP+5}")
    g(f"v_add_f32 v{vP+6}, v{vP+6}, v{vP+7}")
    g(f"v_add_f32 v{vP}, v{vP}, v{vP+2}")
    g(f"v_add_f32 v{vP+4}, v{vP+4}, v{vP+6}")
    g(f"v_add_f32 v{vP}, v{vP}, v{vP+4}")
    g(f"v_lshlrev_b32 v{vT}, 2, v0")
    g(f"ds_write_b32 v{vT}, v{vP} offset:{FL}")
    g("s_waitcnt lgkmcnt(0)")
    g("s_barrier")
    g(f"s_cmp_eq_u32 s{sWave}, 0")
    g("s_cbranch_scc0 tail_end")
    for w in range(1, 6):
        g(f"ds_read_b32 v{vP+w}, v{vT} offset:{FL + w*256}")
    g(f"v_lshlrev_b32 v{vB2}, 16, v{vB2}")
    g("s_waitcnt lgkmcnt(0)")
    g(f"v_add_f32 v{vP}, v{vP}, v{vP+1}")
    g(f"v_add_f32 v{vP+2}, v{vP+2}, v{vP+3}")
    g(f"v_add_f32 v{vP+4}, v{vP+4}, v{vP+5}")
    g(f"v_add_f32 v{vP}, v{vP}, v{vP+2}")
    g(f"v_add_f32 v{vP}, v{vP}, v{vP+4}")
    bf16r(g, vP, vP)
    g(f"v_add_f32 v{vP}, v{vP}, v{vB2}")
    bf16r(g, vP, vP)
    g(f"v_add_f32 v{vP}, v{vP}, v{vP+8}")
    g(f"v_cvt_pk_bf16_f32 v{vP}, v{vP}, v{vP}")
    g(f"v_lshlrev_b32 v{vT}, 1, v{vE}")
    g(f"buffer_store_short v{vP}, v{vT}, s[{sOut}:{sOut+3}], 0 offen")
    stamp(g, 7)
    if STAMPS:
        g(f"s_cmp_eq_u32 s2, 208")
        g("s_cbranch_scc0 tail_end")
        stamp_flush(g, 8, 100, 64)
    g.label("tail_end", pad=False)
    g("s_endpgm")
    return L, 144, 48


def build(NBUF=16, nt=True, PRIO=1):
    g = Gen()
    head = open(f"cdna_kernels/{NAME}.s.ref").read().split("; Override launch")[0]
    g.raw(head.rstrip("\n"))
    g.raw("; @launch kernel=attn_kernel grid=(256,1,1) block=(1024,1,1) lds=98304")
    g.raw("; @launch kernel=tail_kernel grid=(228,1,1) block=(384,1,1) lds=53248")
    g.raw('.amdgcn_target "amdgcn-amd-amdhsa--gfx950"')
    g.raw(".text")
    descs = []
    for fn, kw in ((k_attn, dict(NBUF=NBUF, nt=nt, PRIO=PRIO)), (k_tail, {})):
        g.wr = {}
        g.store_data = {}
        descs.append(fn(g, **kw))
    g.raw('.section .rodata,"a"')
    for L, nv, ns in descs:
        g.raw(".p2align 6")
        g.raw(descriptor(L, nv, ns).rstrip("\n"))
    return g.text()


if __name__ == "__main__":
    import struct
    import numpy as np
    assert struct.unpack("<I", struct.pack("<f", 192 ** -0.5))[0] == SCALE, hex(struct.unpack("<I", struct.pack("<f", 192 ** -0.5))[0])
    assert struct.unpack("<I", struct.pack("<f", 1 / 640))[0] == INV640
    assert struct.unpack("<I", struct.pack("<f", 1e-5))[0] == EPS
    for r in range(768):
        assert (r * 43691) >> 23 == r // 192
    for t in range(320):
        assert (t * 52429) >> 22 == t // 80
    for r in range(192):
        assert (r * 1366) >> 16 == r // 48
    for w in range(160):
        assert (w * 3277) >> 16 == w // 20
    out = sys.argv[1] if len(sys.argv) > 1 else f"cdna_kernels/{NAME}.s"
    kw = {}
    for a in sys.argv[2:]:
        k, v = a.split("=")
        if k == "STAMPS":
            STAMPS = bool(int(v))
        elif k == "STAMP_WG":
            STAMP_WG = int(v)
        else:
            kw[k] = int(v)
    open(out, "w").write(build(**kw))
    print("wrote", out)
```

```python
import sys
from asmgen import Gen

NAME = "sequential_preLN__mha_block_cached__dense_activation_squared_relu__decode"

WS_PART = 0
WS_ML = 0x30000
WS_HP = 0x40000
WS_FP = 0x4A000
WS_HH = 0x86000
WS_SENT_N = 18240
WS_SIZE = 0x100000

LOG2E = 0x3FB8AA3B
SCALE = 0x3D93CD3A
INV640 = 0x3ACCCCCD
EPS = 0x3727C5AC


def srd(g, d, base, size):
    g(f"s_mov_b32 s{d}, s{base}")
    g(f"s_and_b32 s{d+1}, s{base+1}, 0xffff")
    g(f"s_mov_b32 s{d+2}, {size}")
    g(f"s_mov_b32 s{d+3}, 0x00020000")


def allreduce(g, op, v, t):
    g(f"{op}_dpp v{v}, v{v}, v{v} quad_perm:[1,0,3,2] row_mask:0xf bank_mask:0xf")
    g(f"{op}_dpp v{v}, v{v}, v{v} quad_perm:[2,3,0,1] row_mask:0xf bank_mask:0xf")
    g(f"{op}_dpp v{v}, v{v}, v{v} row_half_mirror row_mask:0xf bank_mask:0xf")
    g(f"{op}_dpp v{v}, v{v}, v{v} row_mirror row_mask:0xf bank_mask:0xf")
    g(f"v_mov_b32 v{t}, v{v}")
    g(f"v_permlane16_swap_b32 v{v}, v{t}")
    g(f"{op} v{v}, v{v}, v{t}")
    g(f"v_mov_b32 v{t}, v{v}")
    g(f"v_permlane32_swap_b32 v{v}, v{t}")
    g(f"{op} v{v}, v{v}, v{t}")


def bf16r(g, dst, src):
    g(f"v_cvt_pk_bf16_f32 v{dst}, v{src}, v{src}")
    g(f"v_lshlrev_b32 v{dst}, 16, v{dst}")


def bf16r2(g, a, b, t):
    g(f"v_cvt_pk_bf16_f32 v{t}, v{a}, v{b}")
    g(f"v_lshlrev_b32 v{a}, 16, v{t}")
    g(f"v_and_b32 v{b}, 0xffff0000, v{t}")


def divide(g, dst, num, den, r, e):
    g(f"v_rcp_f32 v{r}, v{den}")
    g(f"v_mul_f32 v{dst}, v{num}, v{r}")
    g(f"v_fma_f32 v{e}, -v{dst}, v{den}, v{num}")
    g(f"v_fma_f32 v{dst}, v{e}, v{r}, v{dst}")


def ln_stats(g, xe, n, mb, sd, t0, t1, t2):
    g(f"v_add_f32 v{t0}, v{xe[0]}, v{xe[1]}")
    for r in xe[2:]:
        g(f"v_add_f32 v{t0}, v{t0}, v{r}")
    allreduce(g, "v_add_f32", t0, t1)
    g(f"v_mul_f32 v{t0}, {INV640:#x}, v{t0}")
    g(f"v_sub_f32 v{t1}, v{xe[0]}, v{t0}")
    g(f"v_mul_f32 v{t2}, v{t1}, v{t1}")
    for r in xe[1:]:
        g(f"v_sub_f32 v{t1}, v{r}, v{t0}")
        g(f"v_fmac_f32 v{t2}, v{t1}, v{t1}")
    allreduce(g, "v_add_f32", t2, t1)
    g(f"v_mul_f32 v{t2}, {INV640:#x}, v{t2}")
    bf16r(g, mb, t0)
    bf16r(g, t2, t2)
    g(f"v_add_f32 v{t2}, {EPS:#x}, v{t2}")
    bf16r(g, t2, t2)
    g(f"v_sqrt_f32 v{t2}, v{t2}")
    bf16r(g, sd, t2)


def ln_apply(g, x, mb, sd, r, e):
    g(f"v_sub_f32 v{x}, v{x}, v{mb}")
    bf16r(g, x, x)
    g(f"v_mov_b32 v{e}, v{x}")
    g(f"v_rcp_f32 v{r}, v{sd}")
    g(f"v_mul_f32 v{x}, v{e}, v{r}")
    g(f"v_fma_f32 v{e}, -v{x}, v{sd}, v{e}")
    g(f"v_fma_f32 v{x}, v{e}, v{r}, v{x}")
    bf16r(g, x, x)


STAMPS = False
STAMP_WG = 0


def stamp(g, idx):
    if not STAMPS:
        return
    g(f"s_memrealtime s[{70+2*idx}:{71+2*idx}]")
    g("s_waitcnt lgkmcnt(0)")


def stamp_flush(g, n, vt=0, base=0):
    if not STAMPS:
        return
    g("s_load_dwordx2 s[60:61], s[0:1], 88")
    g("s_waitcnt lgkmcnt(0)")
    srd(g, 64, 60, 256)
    g(f"s_mov_b32 s62, 0")
    for i in range(n):
        g(f"v_mov_b32 v{vt}, s{70+2*i}")
        g(f"v_mov_b32 v{vt+1}, {base + i*4}")
        g(f"buffer_store_dword v{vt}, v{vt+1}, s[64:67], 0 offen")
    g("s_waitcnt vmcnt(0)")


def header(g, label):
    g.raw(".p2align 8")
    g.raw(f".type {label},@function")
    g.raw(f"{label}:")


def descriptor(label, nvgpr, nsgpr):
    acc = (nvgpr + 3) // 4 * 4
    if STAMPS:
        nsgpr = 100
    return f""".amdhsa_kernel {label}
  .amdhsa_next_free_vgpr {nvgpr}
  .amdhsa_next_free_sgpr {nsgpr}
  .amdhsa_accum_offset {acc}
  .amdhsa_group_segment_fixed_size 0
  .amdhsa_kernarg_size 104
  .amdhsa_user_sgpr_count 2
  .amdhsa_user_sgpr_kernarg_segment_ptr 1
  .amdhsa_system_sgpr_workgroup_id_x 1
  .amdhsa_float_denorm_mode_32 3
.end_amdhsa_kernel
"""


def k_attn(g, NBUF=16, nt=True, PRIO=0, PREF=0):
    L = "attn_kernel"
    header(g, L)
    NT = " nt" if nt else ""
    assert 64 % NBUF == 0
    sX, sK, sV, sWQ, sWS = 16, 20, 24, 28, 32
    sWave, sH, sB, sS, sT0, sT1, sKV, sOff, sSelLo, sSelHi = 36, 37, 38, 39, 40, 41, 42, 43, 44, 45
    sM1, sM0, sWqb, sRec = 46, 48, 50, 51
    sCur, sNext, sNextIdx = 52, 53, 54
    sEx = 56
    XN, QB, ML, CNT, PW, QP = 0, 2560, 3072, 3328, 4096, 8192
    vLane, vL32, vHalf, vKV, vT = 1, 2, 3, 4, 5
    vQ = 6
    vPA = 9
    vAcc = 10
    vS = 16
    vMr, vLr = 18, 19
    vP = 20
    vLA, vLB, vLC, vLD = 22, 24, 26, 28
    vT2, vT3 = 30, 31
    vPm = 32
    vPw, vPr = 34, 35
    vPPa, vPPb = 36, 40
    vRing = 44
    NPOOL = max(NBUF, 20)
    nv = vRing + 4 * NPOOL
    assert nv <= 128, nv

    g("s_cmp_ge_u32 s2, 256")
    g("s_cbranch_scc1 attn_end")
    if PRIO:
        g("s_setprio 3")
    stamp(g, 0)
    g("s_load_dwordx2 s[4:5], s[0:1], 0")
    g("s_load_dwordx4 s[8:11], s[0:1], 8")
    g("s_load_dwordx2 s[12:13], s[0:1], 24")
    g("s_load_dwordx2 s[14:15], s[0:1], 96")
    g(f"v_and_b32 v{vLane}, 63, v0")
    g(f"v_and_b32 v{vL32}, 31, v0")
    g(f"v_bfe_u32 v{vHalf}, v0, 5, 1")
    g(f"v_lshrrev_b32 v{vT}, 6, v0")
    g(f"v_readfirstlane_b32 s{sWave}, v{vT}")
    g(f"s_and_b32 s{sT0}, s2, 7")
    g(f"s_lshr_b32 s{sT1}, s2, 3")
    g(f"s_lshl_b32 s{sH}, s{sT0}, 2")
    g(f"s_and_b32 s{sT0}, s{sT1}, 3")
    g(f"s_add_u32 s{sH}, s{sH}, s{sT0}")
    g(f"s_lshr_b32 s{sT1}, s{sT1}, 2")
    g(f"s_lshr_b32 s{sB}, s{sT1}, 2")
    g(f"s_and_b32 s{sS}, s{sT1}, 3")
    g(f"s_lshl_b32 s{sRec}, s{sB}, 5")
    g(f"s_add_u32 s{sRec}, s{sRec}, s{sH}")
    g(f"s_lshl_b32 s{sRec}, s{sRec}, 2")
    g(f"s_add_u32 s{sRec}, s{sRec}, s{sS}")
    g(f"s_mul_i32 s{sKV}, s{sRec}, 786432")
    g(f"s_mov_b32 s{sSelLo}, 0x05040100")
    g(f"s_mov_b32 s{sSelHi}, 0x07060302")
    g(f"s_mov_b32 s{sM1}, 0xcccccccc")
    g(f"s_mov_b32 s{sM1+1}, 0xcccccccc")
    g(f"s_mov_b32 s{sM0}, 0xaaaaaaaa")
    g(f"s_mov_b32 s{sM0+1}, 0xaaaaaaaa")
    g(f"s_mul_i32 s{sWqb}, s{sWave}, 491520")
    g(f"s_mul_i32 s{sT0}, s{sH}, 384")
    g(f"s_add_u32 s{sWqb}, s{sWqb}, s{sT0}")
    g(f"s_mul_i32 s{sCur}, s{sWave}, 24576")
    g(f"s_add_u32 s{sCur}, s{sCur}, s{sKV}")
    g(f"v_mul_u32_u24 v{vT2}, 12, v{vL32}")
    g(f"v_mul_u32_u24 v{vKV}, 384, v{vHalf}")
    g(f"v_add_u32 v{vKV}, v{vKV}, v{vT2}")
    vWo = 42
    g(f"v_mul_u32_u24 v{vWo}, 245760, v{vHalf}")
    g(f"v_add_u32 v{vWo}, v{vWo}, v{vT2}")
    g(f"v_lshlrev_b32 v{vT}, 2, v{vLane}")
    g(f"v_mov_b32 v{vT2}, 16")
    g(f"v_mov_b32 v{vT3}, 0")
    g(f"ds_write_b32 v{vT3}, v{vT2} offset:{CNT}")
    g("s_waitcnt lgkmcnt(0)")
    srd(g, sX, 4, 2560)
    srd(g, sWQ, 12, 7864320)
    srd(g, sWS, 14, WS_SIZE)
    g(f"s_cmp_lt_u32 s{sWave}, 2")
    g("s_cbranch_scc0 attn_nosent")
    g(f"s_mul_i32 s{sT0}, s2, 72")
    g(f"v_add_u32 v{vT2}, s{sT0}, v0")
    g(f"v_cmp_gt_u32 vcc, 72, v0")
    g(f"s_mov_b64 s[{sEx}:{sEx+1}], vcc")
    g(f"v_cmp_gt_u32 vcc, {WS_SENT_N}, v{vT2}")
    g(f"s_and_b64 s[{sEx}:{sEx+1}], s[{sEx}:{sEx+1}], vcc")
    g(f"v_lshlrev_b32 v{vT2}, 4, v{vT2}")
    for c in range(4):
        g(f"v_mov_b32 v{vAcc+c}, -1")
    g(f"s_mov_b64 s[{sEx+2}:{sEx+3}], exec")
    g(f"s_mov_b64 exec, s[{sEx}:{sEx+1}]")
    g("s_cbranch_execz attn_sent_done")
    g(f"s_mov_b32 s{sT0}, {WS_HP}")
    g(f"buffer_store_dwordx4 v[{vAcc}:{vAcc+3}], v{vT2}, s[{sWS}:{sWS+3}], s{sT0} offen")
    g.label("attn_sent_done")
    g(f"s_mov_b64 exec, s[{sEx+2}:{sEx+3}]")
    g.label("attn_nosent")
    g(f"s_mul_i32 s{sT0}, s{sB}, 1280")
    vXd = 36
    for j in range(5):
        g(f"buffer_load_dword v{vXd+j}, v{vT}, s[{sX}:{sX+3}], s{sT0} offen offset:{j*256}")
    for j in range(20):
        g(f"s_add_u32 s{sOff}, s{sWqb}, {j*12288}")
        r = vRing + 4 * j
        g(f"buffer_load_dwordx3 v[{r}:{r+2}], v{vWo}, s[{sWQ}:{sWQ+3}], s{sOff} offen")
    srd(g, sK, 8, 201326592)
    srd(g, sV, 10, 201326592)

    def kv_load(t, base):
        s = sK if t < 32 else sV
        i = t % 32
        r = vRing + 4 * (t % NBUF)
        g(f"s_add_u32 s{sOff}, s{base}, {i*768}")
        g(f"buffer_load_dwordx3 v[{r}:{r+2}], v{vKV}, s[{s}:{s+3}], s{sOff} offen{NT}")

    stamp(g, 2)
    g(f"s_waitcnt vmcnt(20)")
    stamp(g, 4)
    xe = list(range(16, 26))
    for j in range(5):
        g(f"v_lshlrev_b32 v{xe[2*j]}, 16, v{vXd+j}")
        g(f"v_and_b32 v{xe[2*j+1]}, 0xffff0000, v{vXd+j}")
    vMb, vSd = 26, 27
    ln_stats(g, xe, 640, vMb, vSd, 28, 29, 31)
    for r in xe:
        ln_apply(g, r, vMb, vSd, 28, 29)
    g(f"v_lshlrev_b32 v{vT}, 3, v{vLane}")
    for j in range(5):
        g(f"ds_write_b64 v{vT}, v[{xe[2*j]}:{xe[2*j+1]}] offset:{XN + j*512}")
    g(f"v_lshrrev_b32 v{vT}, 5, v0")
    g(f"v_mul_u32_u24 v{vT}, 80, v{vT}")
    g("s_waitcnt lgkmcnt(0)")
    xr = 16
    for j in range(5):
        g(f"ds_read_b128 v[{xr+4*j}:{xr+4*j+3}], v{vT} offset:{XN + j*16}")
    for c in range(6):
        g(f"v_mov_b32 v{vAcc+c}, 0")
    g("s_waitcnt lgkmcnt(0)")
    stamp(g, 5)
    for j in range(20):
        if PRIO:
            g(f"s_waitcnt vmcnt({19 - j})")
        else:
            g(f"s_waitcnt vmcnt({19 - j + min(j, NBUF)})")
        r = vRing + 4 * j
        for c in range(3):
            g(f"v_lshlrev_b32 v{36}, 16, v{r+c}")
            g(f"v_and_b32 v{37}, 0xffff0000, v{r+c}")
            g(f"v_fmac_f32 v{vAcc+2*c}, v{36}, v{xr+j}")
            g(f"v_fmac_f32 v{vAcc+2*c+1}, v{37}, v{xr+j}")
        if j < NBUF and not PRIO:
            kv_load(j, sCur)
    if PRIO:
        g("s_setprio 0")
        for j in range(NBUF):
            kv_load(j, sCur)
    stamp(g, 6)
    g(f"v_lshrrev_b32 v{vT3}, 5, v0")
    g(f"v_mul_u32_u24 v{vT}, 768, v{vT3}")
    g(f"v_mul_u32_u24 v{vT2}, 24, v{vL32}")
    g(f"v_add_u32 v{vPA}, v{vT}, v{vT2}")
    for c in range(3):
        g(f"ds_write_b64 v{vPA}, v[{vAcc+2*c}:{vAcc+2*c+1}] offset:{QP + c*8}")
    g("s_waitcnt lgkmcnt(0)")
    g("s_barrier")
    g(f"s_cmp_lt_u32 s{sWave}, 3")
    g("s_cbranch_scc0 attn_q2_skip")
    g(f"v_lshlrev_b32 v{vT}, 2, v0")
    rr = 10
    for r in range(32):
        g(f"ds_read_b32 v{rr+r}, v{vT} offset:{QP + r*768}")
    g("s_waitcnt lgkmcnt(0)")
    for r in range(1, 32):
        g(f"v_add_f32 v{rr}, v{rr}, v{rr+r}")
    g(f"v_cvt_pk_bf16_f32 v{rr}, v{rr}, v{rr}")
    g(f"v_lshlrev_b32 v{vT}, 1, v0")
    g(f"ds_write_b16 v{vT}, v{rr} offset:{QB}")
    g("s_waitcnt lgkmcnt(0)")
    g.label("attn_q2_skip")
    g("s_barrier")
    g(f"v_mul_u32_u24 v{vT}, 12, v{vL32}")
    for c in range(3):
        g(f"ds_read_b32 v{vQ+c}, v{vT} offset:{QB + 4*c}")
    g(f"v_bfrev_b32 v{vT2}, v{vL32}")
    g(f"v_lshrrev_b32 v{vT2}, 26, v{vT2}")
    g(f"v_lshlrev_b32 v{vT3}, 6, v{vHalf}")
    g(f"s_lshl_b32 s{sT0}, s{sWave}, 7")
    g(f"v_add_u32 v{vPr}, s{sT0}, v{vT3}")
    g(f"v_add_u32 v{vPw}, v{vPr}, v{vT2}")
    for c in range(6):
        g(f"v_mov_b32 v{vAcc+c}, 0")
    g(f"v_mov_b32 v{vMr}, 0xff800000")
    g(f"v_mov_b32 v{vLr}, 0")
    g("s_waitcnt lgkmcnt(0)")
    stamp(g, 1)

    g.label("attn_loop")
    g(f"s_mov_b64 s[{sEx}:{sEx+1}], exec")
    g("s_mov_b64 exec, 1")
    g(f"v_mov_b32 v{vT2}, 1")
    g(f"v_mov_b32 v{vT3}, 0")
    g(f"ds_add_rtn_u32 v{vS+1}, v{vT3}, v{vT2} offset:{CNT}")
    g(f"s_mov_b64 exec, s[{sEx}:{sEx+1}]")
    for t in range(32):
        i5 = t
        r = vRing + 4 * (t % NBUF)
        P = vP + (t & 1)
        g(f"s_waitcnt vmcnt({NBUF-1})")
        g(f"v_dot2_f32_bf16 v{P}, v{r}, v{vQ}, 0")
        g(f"v_dot2_f32_bf16 v{P}, v{r+1}, v{vQ+1}, v{P}")
        g(f"v_dot2_f32_bf16 v{P}, v{r+2}, v{vQ+2}, v{P}")
        kv_load(t + NBUF, sCur)
        if i5 & 1:
            g(f"v_permlane16_swap_b32 v{vP}, v{vP+1}")
            g(f"v_add_f32 v{vLA+((i5>>1)&1)}, v{vP}, v{vP+1}")
        if (i5 & 3) == 3:
            d = vLB + ((i5 >> 2) & 1)
            g(f"v_add_f32_dpp v{d}, v{vLA}, v{vLA} row_ror:8 row_mask:0xf bank_mask:0x3")
            g(f"v_add_f32_dpp v{d}, v{vLA+1}, v{vLA+1} row_ror:8 row_mask:0xf bank_mask:0xc")
        if (i5 & 7) == 7:
            d = vLC + ((i5 >> 3) & 1)
            g(f"v_add_f32_dpp v{d}, v{vLB}, v{vLB} row_shl:4 row_mask:0xf bank_mask:0x5")
            g(f"v_add_f32_dpp v{d}, v{vLB+1}, v{vLB+1} row_shr:4 row_mask:0xf bank_mask:0xa")
        if (i5 & 15) == 15:
            d = vLD + ((i5 >> 4) & 1)
            g(f"v_add_f32_dpp v{vT2}, v{vLC}, v{vLC} quad_perm:[2,3,0,1] row_mask:0xf bank_mask:0xf")
            g(f"v_add_f32_dpp v{vT3}, v{vLC+1}, v{vLC+1} quad_perm:[2,3,0,1] row_mask:0xf bank_mask:0xf")
            g(f"v_cndmask_b32 v{d}, v{vT2}, v{vT3}, s[{sM1}:{sM1+1}]")
        if i5 == 31:
            g(f"v_add_f32_dpp v{vT2}, v{vLD}, v{vLD} quad_perm:[1,0,3,2] row_mask:0xf bank_mask:0xf")
            g(f"v_add_f32_dpp v{vT3}, v{vLD+1}, v{vLD+1} quad_perm:[1,0,3,2] row_mask:0xf bank_mask:0xf")
            g(f"v_cndmask_b32 v{vS}, v{vT2}, v{vT3}, s[{sM0}:{sM0+1}]")
    bf16r(g, vS, vS)
    g(f"v_mul_f32 v{vS}, {SCALE:#x}, v{vS}")
    bf16r(g, vS, vS)
    vCm, vAl = vLA, vLA + 1
    g(f"v_mov_b32 v{vCm}, v{vS}")
    allreduce(g, "v_max_f32", vCm, vT2)
    g(f"v_max_f32 v{vCm}, v{vCm}, v{vMr}")
    g(f"v_sub_f32 v{vAl}, v{vMr}, v{vCm}")
    g(f"v_mul_f32 v{vAl}, {LOG2E:#x}, v{vAl}")
    g(f"v_exp_f32 v{vAl}, v{vAl}")
    g(f"v_sub_f32 v{vS}, v{vS}, v{vCm}")
    g(f"v_mul_f32 v{vS}, {LOG2E:#x}, v{vS}")
    g(f"v_exp_f32 v{vS}, v{vS}")
    g(f"v_mov_b32 v{vMr}, v{vCm}")
    g(f"v_fma_f32 v{vLr}, v{vLr}, v{vAl}, v{vS}")
    g(f"v_cvt_pk_bf16_f32 v{vT}, v{vS}, v{vS}")
    g(f"ds_write_b16 v{vPw}, v{vT} offset:{PW}")
    for c in range(6):
        g(f"v_mul_f32 v{vAcc+c}, v{vAcc+c}, v{vAl}")
    g("s_waitcnt lgkmcnt(0)")
    g(f"ds_read_b128 v[{vPPa}:{vPPa+3}], v{vPr} offset:{PW}")
    g(f"ds_read_b128 v[{vPPb}:{vPPb+3}], v{vPr} offset:{PW+16}")
    g(f"v_readfirstlane_b32 s{sNextIdx}, v{vS+1}")
    g(f"s_mul_i32 s{sNext}, s{sNextIdx}, 24576")
    g(f"s_add_u32 s{sNext}, s{sNext}, s{sKV}")
    g(f"s_cmp_lt_u32 s{sNextIdx}, 32")
    g(f"s_cselect_b32 s{sNext}, s{sNext}, 0x80000000")
    for j in range(16):
        t = 32 + 2 * j
        q4 = j // 4
        PP = (vPPa if (q4 & 1) == 0 else vPPb) + (j % 4)
        if j % 4 == 0:
            if q4 + 1 < 4:
                g("s_waitcnt lgkmcnt(1)")
            else:
                g("s_waitcnt lgkmcnt(0)")
        ra = vRing + 4 * (t % NBUF)
        rb = vRing + 4 * ((t + 1) % NBUF)
        g(f"s_waitcnt vmcnt({NBUF-2})")
        for c in range(3):
            g(f"v_perm_b32 v{vPm}, v{rb+c}, v{ra+c}, s{sSelLo}")
            g(f"v_perm_b32 v{vPm+1}, v{rb+c}, v{ra+c}, s{sSelHi}")
            g(f"v_dot2_f32_bf16 v{vAcc+2*c}, v{vPm}, v{PP}, v{vAcc+2*c}")
            g(f"v_dot2_f32_bf16 v{vAcc+2*c+1}, v{vPm+1}, v{PP}, v{vAcc+2*c+1}")
        for tt in (t + NBUF, t + 1 + NBUF):
            if tt < 64:
                kv_load(tt, sCur)
            else:
                kv_load(tt - 64, sNext)
        if j % 4 == 3 and q4 + 2 < 4:
            d = vPPa if (q4 & 1) == 0 else vPPb
            g(f"ds_read_b128 v[{d}:{d+3}], v{vPr} offset:{PW + (q4+2)*16}")
    g(f"s_mov_b32 s{sCur}, s{sNext}")
    g(f"s_cmp_lt_u32 s{sNextIdx}, 32")
    g("s_cbranch_scc1 attn_loop")
    stamp(g, 3)
    allreduce(g, "v_add_f32", vLr, vT2)
    for c in range(3):
        g(f"ds_write_b64 v{vPA}, v[{vAcc+2*c}:{vAcc+2*c+1}] offset:{QP + c*8}")
    g(f"s_lshl_b32 s{sT0}, s{sWave}, 3")
    g(f"v_mov_b32 v{vT}, s{sT0}")
    g(f"ds_write_b64 v{vT}, v[{vMr}:{vMr+1}] offset:{ML}")
    g("s_waitcnt vmcnt(0) lgkmcnt(0)")
    g("s_barrier")
    g(f"s_cmp_lt_u32 s{sWave}, 3")
    g("s_cbranch_scc0 attn_pref" if PREF else "s_cbranch_scc0 attn_end")
    rm = vRing
    ro = vRing + 32
    g(f"v_mov_b32 v{vT}, 0")
    for w in range(0, 16, 2):
        g(f"ds_read_b128 v[{rm+2*w}:{rm+2*w+3}], v{vT} offset:{ML + 8*w}")
    g(f"v_lshlrev_b32 v{vT}, 2, v0")
    for r in range(32):
        g(f"ds_read_b32 v{ro+r}, v{vT} offset:{QP + r*768}")
    g("s_waitcnt lgkmcnt(0)")
    vMM, vLL, vO, vF = 16, 17, 18, 19
    g(f"v_max_f32 v{vMM}, v{rm}, v{rm+2}")
    for w in range(2, 16):
        g(f"v_max_f32 v{vMM}, v{vMM}, v{rm+2*w}")
    g(f"v_mov_b32 v{vLL}, 0")
    g(f"v_mov_b32 v{vO}, 0")
    for w in range(16):
        g(f"v_sub_f32 v{vF}, v{rm+2*w}, v{vMM}")
        g(f"v_mul_f32 v{vF}, {LOG2E:#x}, v{vF}")
        g(f"v_exp_f32 v{vF}, v{vF}")
        g(f"v_add_f32 v{vT2}, v{ro+2*w}, v{ro+2*w+1}")
        g(f"v_fmac_f32 v{vLL}, v{vF}, v{rm+2*w+1}")
        g(f"v_fmac_f32 v{vO}, v{vF}, v{vT2}")
    g(f"s_mul_i32 s{sT0}, s{sRec}, 768")
    g(f"buffer_store_dword v{vO}, v{vT}, s[{sWS}:{sWS+3}], s{sT0} offen offset:{WS_PART}")
    g(f"v_mov_b32 v{vT}, 0")
    g(f"s_lshl_b32 s{sT0}, s{sRec}, 3")
    g(f"s_add_u32 s{sT0}, s{sT0}, {WS_ML}")
    g(f"buffer_store_dwordx2 v[{vMM}:{vMM+1}], v{vT}, s[{sWS}:{sWS+3}], s{sT0} offen")
    stamp(g, 7)
    if STAMPS:
        g("v_mov_b32 v100, s70")
        g("v_mov_b32 v101, s84")
        g("s_lshl_b32 s62, s2, 3")
        g("s_add_u32 s62, s62, 0xA0000")
        g("v_mov_b32 v102, 0")
        g(f"buffer_store_dwordx2 v[100:101], v102, s[{sWS}:{sWS+3}], s62 offen")
        g("s_cmp_eq_u32 s2, STAMP_WG".replace("STAMP_WG", str(STAMP_WG)))
        g("s_cbranch_scc0 attn_end")
        g(f"s_cmp_eq_u32 s{sWave}, 0")
        g("s_cbranch_scc0 attn_end")
    stamp_flush(g, 8, 100)
    if PREF:
        g("s_endpgm")
        g.label("attn_pref")
        g("s_load_dwordx2 s[4:5], s[0:1], 32")
        g("s_load_dwordx2 s[6:7], s[0:1], 48")
        g("s_load_dwordx2 s[8:9], s[0:1], 64")
        g(f"s_sub_u32 s{sT0}, s{sWave}, 3")
        g(f"v_lshlrev_b32 v{vT}, 4, v{vLane}")
        g("s_waitcnt lgkmcnt(0)")
        srd(g, 16, 4, 7864320)
        srd(g, 20, 6, 1966080)
        srd(g, 24, 8, 1966080)
        g(f"s_cmp_lt_u32 s{sT0}, 10")
        g("s_cbranch_scc0 attn_pref2")
        g(f"s_mul_i32 s{sT1}, s2, 30720")
        g(f"s_mul_i32 s{sOff}, s{sT0}, 3072")
        g(f"s_add_u32 s{sT1}, s{sT1}, s{sOff}")
        for i in range(3):
            g(f"buffer_load_dwordx4 v[{vRing+4*i}:{vRing+4*i+3}], v{vT}, s[16:19], s{sT1} offen offset:{i*1024}")
        g("s_endpgm")
        g.label("attn_pref2")
        g(f"s_mul_i32 s{sT1}, s2, 7680")
        g(f"s_cmp_eq_u32 s{sT0}, 10")
        g("s_cbranch_scc0 attn_pref3")
        for i in range(8):
            g(f"s_add_u32 s{sOff}, s{sT1}, {i*1024}")
            g(f"buffer_load_dwordx4 v[{vRing+4*i}:{vRing+4*i+3}], v{vT}, s[20:23], s{sOff} offen")
        g("s_endpgm")
        g.label("attn_pref3")
        g(f"s_cmp_eq_u32 s{sT0}, 11")
        g("s_cbranch_scc0 attn_end")
        for i in range(8):
            g(f"s_add_u32 s{sOff}, s{sT1}, {i*1024}")
            g(f"buffer_load_dwordx4 v[{vRing+4*i}:{vRing+4*i+3}], v{vT}, s[24:27], s{sOff} offen")
    g.label("attn_end", pad=False)
    g("s_endpgm")
    return L, nv, 60


def k_wo(g):
    L = "wo_kernel"
    header(g, L)
    sWO, sWS = 16, 20
    sRb, sCb, sWave, sT0, sT1, sOff = 24, 25, 26, 27, 28, 29
    OC, RED, RED2 = 0, 8192, 24576
    vLane, vT, vT2, vT3 = 1, 2, 3, 4
    vWoOff = 5
    vAcc = 8
    vW = 24
    vC = 72
    vOo, vMo = 144, 150
    nv = 160
    g("s_cmp_ge_u32 s2, 160")
    g("s_cbranch_scc1 wo_end")
    stamp(g, 0)
    g("s_load_dwordx2 s[4:5], s[0:1], 32")
    g("s_load_dwordx2 s[6:7], s[0:1], 96")
    g(f"v_and_b32 v{vLane}, 63, v0")
    g(f"v_lshrrev_b32 v{vT}, 6, v0")
    g(f"v_readfirstlane_b32 s{sWave}, v{vT}")
    g(f"s_mul_i32 s{sRb}, s2, 3277")
    g(f"s_lshr_b32 s{sRb}, s{sRb}, 16")
    g(f"s_mul_i32 s{sT0}, s{sRb}, 20")
    g(f"s_sub_u32 s{sCb}, s2, s{sT0}")
    g(f"v_lshrrev_b32 v{vT}, 2, v{vLane}")
    g(f"v_mul_u32_u24 v{vWoOff}, 1280, v{vT}")
    g(f"v_and_b32 v{vT2}, 3, v{vLane}")
    g(f"v_lshlrev_b32 v{vT2}, 4, v{vT2}")
    g(f"v_add_u32 v{vWoOff}, v{vWoOff}, v{vT2}")
    for k in range(3):
        g(f"v_add_u32 v{vT}, {k*256}, v0")
        g(f"v_mul_u32_u24 v{vT2}, 43691, v{vT}")
        g(f"v_lshrrev_b32 v{vT2}, 23, v{vT2}")
        g(f"v_mul_u32_u24 v{vT3}, 192, v{vT2}")
        g(f"v_sub_u32 v{vT3}, v{vT}, v{vT3}")
        g(f"v_lshlrev_b32 v{vMo+k}, 12, v{vT2}")
        g(f"v_lshlrev_b32 v{vT3}, 2, v{vT3}")
        g(f"v_add_u32 v{vOo+k}, v{vMo+k}, v{vT3}")
    g("s_waitcnt lgkmcnt(0)")
    srd(g, sWO, 4, 7864320)
    srd(g, sWS, 6, WS_SIZE)
    for b in range(2):
        g(f"s_lshl_b32 s{sT0}, s{sRb}, 14")
        if b:
            g(f"s_add_u32 s{sT0}, s{sT0}, {32*4096}")
        for k in range(3):
            base = vC + (b * 3 + k) * 12
            for s in range(4):
                g(f"buffer_load_dword v{base+s}, v{vOo+k}, s[{sWS}:{sWS+3}], s{sT0} offen offset:{s*1024}")
            for s in range(4):
                g(f"buffer_load_dwordx2 v[{base+4+2*s}:{base+5+2*s}], v{vMo+k}, s[{sWS}:{sWS+3}], s{sT0} offen offset:{s*1024+768}")
    g(f"s_mul_i32 s{sT0}, s{sRb}, {768*1280}")
    g(f"s_mul_i32 s{sT1}, s{sWave}, {192*1280}")
    g(f"s_add_u32 s{sT0}, s{sT0}, s{sT1}")
    g(f"s_lshl_b32 s{sT1}, s{sCb}, 6")
    g(f"s_add_u32 s{sT0}, s{sT0}, s{sT1}")
    for i in range(12):
        g(f"s_add_u32 s{sOff}, s{sT0}, {i*16*1280}")
        g(f"buffer_load_dwordx4 v[{vW+4*i}:{vW+4*i+3}], v{vWoOff}, s[{sWO}:{sWO+3}], s{sOff} offen")
    stamp(g, 1)
    g("s_waitcnt vmcnt(12)")
    stamp(g, 2)
    vM, vF, vNum, vDen, vR, vE = 6, 7, 152, 153, 154, 155
    for b in range(2):
        for k in range(3):
            base = vC + (b * 3 + k) * 12
            m = [base + 4 + 2 * s for s in range(4)]
            l = [base + 5 + 2 * s for s in range(4)]
            g(f"v_max_f32 v{vM}, v{m[0]}, v{m[1]}")
            g(f"v_max3_f32 v{vM}, v{vM}, v{m[2]}, v{m[3]}")
            for s in range(4):
                g(f"v_sub_f32 v{vF}, v{m[s]}, v{vM}")
                g(f"v_mul_f32 v{vF}, {LOG2E:#x}, v{vF}")
                g(f"v_exp_f32 v{vF}, v{vF}")
                if s == 0:
                    g(f"v_mul_f32 v{vNum}, v{vF}, v{base+s}")
                    g(f"v_mul_f32 v{vDen}, v{vF}, v{l[s]}")
                else:
                    g(f"v_fmac_f32 v{vNum}, v{vF}, v{base+s}")
                    g(f"v_fmac_f32 v{vDen}, v{vF}, v{l[s]}")
            divide(g, vF, vNum, vDen, vR, vE)
            bf16r(g, vF, vF)
            g(f"v_lshlrev_b32 v{vT}, 3, v0")
            g(f"ds_write_b32 v{vT}, v{vF} offset:{OC + k*2048 + b*4}")
    g("s_waitcnt lgkmcnt(0)")
    g("s_barrier")
    stamp(g, 3)
    g(f"v_lshrrev_b32 v{vT}, 2, v{vLane}")
    g(f"s_mul_i32 s{sT0}, s{sWave}, 192")
    g(f"v_add_u32 v{vT}, s{sT0}, v{vT}")
    g(f"v_lshlrev_b32 v{vT}, 3, v{vT}")
    vOv = vC
    for i in range(12):
        g(f"ds_read_b64 v[{vOv+2*i}:{vOv+2*i+1}], v{vT} offset:{OC + i*128}")
    for c in range(16):
        g(f"v_mov_b32 v{vAcc+c}, 0")
    g("s_waitcnt lgkmcnt(0)")
    for i in range(12):
        g(f"s_waitcnt vmcnt({11-i})")
        for c in range(4):
            r = vW + 4 * i + c
            g(f"v_lshlrev_b32 v{vT2}, 16, v{r}")
            g(f"v_and_b32 v{vT3}, 0xffff0000, v{r}")
            g(f"v_fmac_f32 v{vAcc+2*c}, v{vT2}, v{vOv+2*i}")
            g(f"v_fmac_f32 v{vAcc+2*c+1}, v{vT3}, v{vOv+2*i}")
            g(f"v_fmac_f32 v{vAcc+8+2*c}, v{vT2}, v{vOv+2*i+1}")
            g(f"v_fmac_f32 v{vAcc+8+2*c+1}, v{vT3}, v{vOv+2*i+1}")
    stamp(g, 4)
    wave_reduce_64(g, vAcc, vLane, sWave, RED, RED2, vT, vT2, vT3, vW, sT0)
    g("s_barrier")
    g(f"s_cmp_eq_u32 s{sWave}, 0")
    g("s_cbranch_scc0 wo_end")
    g(f"v_lshlrev_b32 v{vT}, 2, v{vLane}")
    for w in range(4):
        g(f"ds_read_b32 v{vW+w}, v{vT} offset:{RED2 + w*256}")
    g("s_waitcnt lgkmcnt(0)")
    g(f"v_add_f32 v{vW}, v{vW}, v{vW+1}")
    g(f"v_add_f32 v{vW+2}, v{vW+2}, v{vW+3}")
    g(f"v_add_f32 v{vW}, v{vW}, v{vW+2}")
    g(f"v_lshrrev_b32 v{vT}, 5, v{vLane}")
    g(f"v_mul_u32_u24 v{vT}, 2560, v{vT}")
    g(f"v_and_b32 v{vT2}, 31, v{vLane}")
    g(f"v_lshlrev_b32 v{vT2}, 2, v{vT2}")
    g(f"v_add_u32 v{vT}, v{vT}, v{vT2}")
    g(f"s_mul_i32 s{sT0}, s{sRb}, 5120")
    g(f"s_lshl_b32 s{sT1}, s{sCb}, 7")
    g(f"s_add_u32 s{sT0}, s{sT0}, s{sT1}")
    g(f"s_add_u32 s{sT0}, s{sT0}, {WS_HP}")
    g(f"buffer_store_dword v{vW}, v{vT}, s[{sWS}:{sWS+3}], s{sT0} offen")
    stamp(g, 7)
    if STAMPS:
        g("s_cmp_eq_u32 s2, STAMP_WG".replace("STAMP_WG", str(STAMP_WG)))
        g("s_cbranch_scc0 wo_end")
    if STAMPS:
        g(f"s_cmp_eq_u32 s{sWave}, 0")
        g("s_cbranch_scc0 wo_end")
    stamp_flush(g, 8, 100 if "wo_end" != "fin_end" else 60)
    g.label("wo_end", pad=False)
    g("s_endpgm")
    return L, nv, 40


def wave_reduce_64(g, vAcc, vLane, sWave, RED, RED2, vT, vT2, vT3, vTmp, sT0):
    g(f"v_lshlrev_b32 v{vT}, 6, v0")
    for q in range(4):
        g(f"ds_write_b128 v{vT}, v[{vAcc+4*q}:{vAcc+4*q+3}] offset:{RED + 16*q}")
    g(f"v_bfe_u32 v{vT2}, v{vLane}, 3, 2")
    g(f"v_lshlrev_b32 v{vT2}, 6, v{vT2}")
    g(f"v_lshrrev_b32 v{vT3}, 5, v{vLane}")
    g(f"v_lshlrev_b32 v{vT3}, 5, v{vT3}")
    g(f"v_add_u32 v{vT2}, v{vT2}, v{vT3}")
    g(f"v_and_b32 v{vT3}, 7, v{vLane}")
    g(f"v_lshlrev_b32 v{vT3}, 2, v{vT3}")
    g(f"v_add_u32 v{vT2}, v{vT2}, v{vT3}")
    g(f"s_lshl_b32 s{sT0}, s{sWave}, 12")
    g(f"v_add_u32 v{vT2}, s{sT0}, v{vT2}")
    g("s_waitcnt lgkmcnt(0)")
    for r in range(16):
        g(f"ds_read_b32 v{vTmp+r}, v{vT2} offset:{RED + r*256}")
    g("s_waitcnt lgkmcnt(0)")
    for r in range(1, 16):
        g(f"v_add_f32 v{vTmp}, v{vTmp}, v{vTmp+r}")
    g(f"v_lshlrev_b32 v{vT}, 2, v0")
    g(f"ds_write_b32 v{vT}, v{vTmp} offset:{RED2}")
    g("s_waitcnt lgkmcnt(0)")


def k_ffn(g):
    L = "ffn_kernel"
    header(g, L)
    sX, sW1, sB1, sW2, sWS = 16, 20, 24, 28, 32
    sWave, sT0, sT1, sOff = 36, 37, 38, 39
    sMk = 40
    H, HN, RED, RED2, H1, R3 = 0, 5120, 10240, 30720, 32000, 32768
    vLane, vT, vT2, vT3 = 1, 2, 3, 4
    vAcc = 8
    vW1 = 24
    vW2 = 56
    vHP = 88
    vX = 120
    vH = 124
    vB1 = 122
    vS = 128
    nv = 160
    g("s_cmp_ge_u32 s2, 48")
    g("s_cbranch_scc1 ffn_end")
    stamp(g, 0)
    g("s_load_dwordx2 s[4:5], s[0:1], 0")
    g("s_load_dwordx4 s[8:11], s[0:1], 48")
    g("s_load_dwordx2 s[12:13], s[0:1], 64")
    g("s_load_dwordx2 s[14:15], s[0:1], 96")
    g(f"v_and_b32 v{vLane}, 63, v0")
    g(f"v_lshrrev_b32 v{vT}, 6, v0")
    g(f"v_readfirstlane_b32 s{sWave}, v{vT}")
    g("s_waitcnt lgkmcnt(0)")
    srd(g, sX, 4, 2560)
    srd(g, sW1, 8, 1966080)
    srd(g, sB1, 10, 3072)
    srd(g, sW2, 12, 1966080)
    srd(g, sWS, 14, WS_SIZE)
    g(f"v_lshlrev_b32 v{vT}, 4, v0")
    for rb in range(8):
        g(f"s_mov_b32 s{sOff}, {WS_HP + rb*5120}")
        g(f"buffer_load_dwordx4 v[{vHP+4*rb}:{vHP+4*rb+3}], v{vT}, s[{sWS}:{sWS+3}], s{sOff} offen")
    g(f"v_lshlrev_b32 v{vT2}, 3, v0")
    g(f"buffer_load_dwordx2 v[{vX}:{vX+1}], v{vT2}, s[{sX}:{sX+3}], 0 offen")
    g(f"v_and_b32 v{vT2}, 31, v{vLane}")
    g(f"v_lshlrev_b32 v{vT2}, 1, v{vT2}")
    g(f"s_lshl_b32 s{sT0}, s2, 6")
    g(f"buffer_load_ushort v{vB1}, v{vT2}, s[{sB1}:{sB1+3}], s{sT0} offen")
    g(f"v_lshrrev_b32 v{vT}, 2, v{vLane}")
    g(f"v_mul_u32_u24 v{vT}, 3072, v{vT}")
    g(f"v_and_b32 v{vT2}, 3, v{vLane}")
    g(f"v_lshlrev_b32 v{vT2}, 4, v{vT2}")
    g(f"v_add_u32 v{vT}, v{vT}, v{vT2}")
    g(f"s_mul_i32 s{sT1}, s{sWave}, {128*3072}")
    g(f"s_add_u32 s{sT1}, s{sT1}, s{sT0}")
    for i in range(8):
        g(f"s_add_u32 s{sOff}, s{sT1}, {i*16*3072}")
        g(f"buffer_load_dwordx4 v[{vW1+4*i}:{vW1+4*i+3}], v{vT}, s[{sW1}:{sW1+3}], s{sOff} offen")
    vRG, vCC = 5, 6
    g(f"v_mul_u32_u24 v{vRG}, 52429, v0")
    g(f"v_lshrrev_b32 v{vRG}, 22, v{vRG}")
    g(f"v_mul_u32_u24 v{vT}, 80, v{vRG}")
    g(f"v_sub_u32 v{vCC}, v0, v{vT}")
    g(f"v_mul_u32_u24 v{vT}, {8*1280}, v{vRG}")
    g(f"v_lshlrev_b32 v{vT2}, 4, v{vCC}")
    g(f"v_add_u32 v{vT}, v{vT}, v{vT2}")
    g(f"s_mul_i32 s{sT1}, s2, {32*1280}")
    for i in range(8):
        g(f"s_add_u32 s{sOff}, s{sT1}, {i*1280}")
        g(f"buffer_load_dwordx4 v[{vW2+4*i}:{vW2+4*i+3}], v{vT}, s[{sW2}:{sW2+3}], s{sOff} offen")
    stamp(g, 1)
    g("s_waitcnt vmcnt(17)")
    stamp(g, 2)
    for c in range(4):
        g(f"v_add_f32 v{vH+c}, v{vHP+c}, v{vHP+4+c}")
        for rb in range(2, 8):
            g(f"v_add_f32 v{vH+c}, v{vH+c}, v{vHP+4*rb+c}")
    bf16r2(g, vH, vH + 1, vT)
    bf16r2(g, vH + 2, vH + 3, vT)
    g(f"v_lshlrev_b32 v{vT}, 16, v{vX}")
    g(f"v_add_f32 v{vH}, v{vH}, v{vT}")
    g(f"v_and_b32 v{vT}, 0xffff0000, v{vX}")
    g(f"v_add_f32 v{vH+1}, v{vH+1}, v{vT}")
    g(f"v_lshlrev_b32 v{vT}, 16, v{vX+1}")
    g(f"v_add_f32 v{vH+2}, v{vH+2}, v{vT}")
    g(f"v_and_b32 v{vT}, 0xffff0000, v{vX+1}")
    g(f"v_add_f32 v{vH+3}, v{vH+3}, v{vT}")
    bf16r2(g, vH, vH + 1, vT)
    bf16r2(g, vH + 2, vH + 3, vT)
    g(f"v_lshlrev_b32 v{vT}, 4, v0")
    g(f"ds_write_b128 v{vT}, v[{vH}:{vH+3}] offset:{H}")
    g("s_cmp_eq_u32 s2, 0")
    g("s_cbranch_scc0 ffn_nohh")
    g(f"s_mov_b32 s{sOff}, {WS_HH}")
    g(f"buffer_store_dwordx4 v[{vH}:{vH+3}], v{vT}, s[{sWS}:{sWS+3}], s{sOff} offen")
    g.label("ffn_nohh")
    g("s_waitcnt lgkmcnt(0)")
    g("s_barrier")
    g(f"v_lshlrev_b32 v{vT}, 2, v{vLane}")
    for b in range(2):
        for j in range(10):
            g(f"ds_read_b32 v{vS+10*b+j}, v{vT} offset:{H + b*2560 + j*256}")
    g("s_waitcnt lgkmcnt(0)")
    vMb0, vSd0, vMb1, vSd1 = 148, 149, 150, 151
    ln_stats(g, list(range(vS, vS + 10)), 640, vMb0, vSd0, 152, 153, 154)
    ln_stats(g, list(range(vS + 10, vS + 20)), 640, vMb1, vSd1, 152, 153, 154)
    g(f"v_cmp_le_u32 vcc, 160, v0")
    g(f"s_mov_b64 s[{sMk}:{sMk+1}], vcc")
    g(f"v_cndmask_b32 v{vMb0}, v{vMb0}, v{vMb1}, s[{sMk}:{sMk+1}]")
    g(f"v_cndmask_b32 v{vSd0}, v{vSd0}, v{vSd1}, s[{sMk}:{sMk+1}]")
    for c in range(4):
        ln_apply(g, vH + c, vMb0, vSd0, 152, 153)
    g(f"v_cndmask_b32 v{vT2}, 0, 1, s[{sMk}:{sMk+1}]")
    g(f"v_mul_u32_u24 v{vT3}, 160, v{vT2}")
    g(f"v_sub_u32 v{vT3}, v0, v{vT3}")
    g(f"v_lshlrev_b32 v{vT3}, 5, v{vT3}")
    g(f"v_lshlrev_b32 v{vT2}, 2, v{vT2}")
    g(f"v_add_u32 v{vT3}, v{vT3}, v{vT2}")
    for c in range(4):
        g(f"ds_write_b32 v{vT3}, v{vH+c} offset:{HN + c*8}")
    g("s_waitcnt lgkmcnt(0)")
    g("s_barrier")
    stamp(g, 3)
    g(f"v_lshrrev_b32 v{vT}, 2, v{vLane}")
    g(f"s_lshl_b32 s{sT0}, s{sWave}, 7")
    g(f"v_add_u32 v{vT}, s{sT0}, v{vT}")
    g(f"v_lshlrev_b32 v{vT}, 3, v{vT}")
    vOv = vHP
    for i in range(8):
        g(f"ds_read_b64 v[{vOv+2*i}:{vOv+2*i+1}], v{vT} offset:{HN + i*128}")
    for c in range(16):
        g(f"v_mov_b32 v{vAcc+c}, 0")
    g("s_waitcnt lgkmcnt(0)")
    g("s_waitcnt vmcnt(8)")
    for i in range(8):
        for c in range(4):
            r = vW1 + 4 * i + c
            g(f"v_lshlrev_b32 v{vT2}, 16, v{r}")
            g(f"v_and_b32 v{vT3}, 0xffff0000, v{r}")
            g(f"v_fmac_f32 v{vAcc+2*c}, v{vT2}, v{vOv+2*i}")
            g(f"v_fmac_f32 v{vAcc+2*c+1}, v{vT3}, v{vOv+2*i}")
            g(f"v_fmac_f32 v{vAcc+8+2*c}, v{vT2}, v{vOv+2*i+1}")
            g(f"v_fmac_f32 v{vAcc+8+2*c+1}, v{vT3}, v{vOv+2*i+1}")
    stamp(g, 4)
    wave_reduce_64(g, vAcc, vLane, sWave, RED, RED2, vT, vT2, vT3, vW1, sT0)
    g("s_barrier")
    g(f"s_cmp_eq_u32 s{sWave}, 0")
    g("s_cbranch_scc0 ffn_h1_skip")
    g(f"v_lshlrev_b32 v{vT}, 2, v{vLane}")
    for w in range(5):
        g(f"ds_read_b32 v{vW1+w}, v{vT} offset:{RED2 + w*256}")
    g("s_waitcnt lgkmcnt(0)")
    for w in range(1, 5):
        g(f"v_add_f32 v{vW1}, v{vW1}, v{vW1+w}")
    bf16r(g, vW1, vW1)
    g(f"v_lshlrev_b32 v{vB1}, 16, v{vB1}")
    g(f"v_add_f32 v{vW1}, v{vW1}, v{vB1}")
    bf16r(g, vW1, vW1)
    g(f"v_max_f32 v{vW1}, 0, v{vW1}")
    g(f"v_mul_f32 v{vW1}, v{vW1}, v{vW1}")
    bf16r(g, vW1, vW1)
    g(f"v_and_b32 v{vT}, 31, v{vLane}")
    g(f"v_lshlrev_b32 v{vT}, 3, v{vT}")
    g(f"v_lshrrev_b32 v{vT2}, 5, v{vLane}")
    g(f"v_lshlrev_b32 v{vT2}, 2, v{vT2}")
    g(f"v_add_u32 v{vT}, v{vT}, v{vT2}")
    g(f"ds_write_b32 v{vT}, v{vW1} offset:{H1}")
    g("s_waitcnt lgkmcnt(0)")
    g.label("ffn_h1_skip")
    g("s_barrier")
    stamp(g, 5)
    g(f"v_lshlrev_b32 v{vT}, 6, v{vRG}")
    for i in range(8):
        g(f"ds_read_b64 v[{vOv+2*i}:{vOv+2*i+1}], v{vT} offset:{H1 + i*8}")
    for c in range(16):
        g(f"v_mov_b32 v{vAcc+c}, 0")
    g("s_waitcnt lgkmcnt(0)")
    g("s_waitcnt vmcnt(0)")
    for i in range(8):
        for c in range(4):
            r = vW2 + 4 * i + c
            g(f"v_lshlrev_b32 v{vT2}, 16, v{r}")
            g(f"v_and_b32 v{vT3}, 0xffff0000, v{r}")
            g(f"v_fmac_f32 v{vAcc+2*c}, v{vT2}, v{vOv+2*i}")
            g(f"v_fmac_f32 v{vAcc+2*c+1}, v{vT3}, v{vOv+2*i}")
            g(f"v_fmac_f32 v{vAcc+8+2*c}, v{vT2}, v{vOv+2*i+1}")
            g(f"v_fmac_f32 v{vAcc+8+2*c+1}, v{vT3}, v{vOv+2*i+1}")
    stamp(g, 6)
    g(f"v_mul_u32_u24 v{vT}, 5120, v{vRG}")
    g(f"v_lshlrev_b32 v{vT2}, 5, v{vCC}")
    g(f"v_add_u32 v{vT}, v{vT}, v{vT2}")
    for b in range(2):
        for q in range(2):
            r = vAcc + 8 * b + 4 * q
            g(f"ds_write_b128 v{vT}, v[{r}:{r+3}] offset:{R3 + b*2560 + q*16}")
    g("s_waitcnt lgkmcnt(0)")
    g("s_barrier")
    g(f"v_lshlrev_b32 v{vT}, 4, v0")
    for rg in range(4):
        g(f"ds_read_b128 v[{vW1+4*rg}:{vW1+4*rg+3}], v{vT} offset:{R3 + rg*5120}")
    g("s_waitcnt lgkmcnt(0)")
    for c in range(4):
        g(f"v_add_f32 v{vW1+c}, v{vW1+c}, v{vW1+4+c}")
        g(f"v_add_f32 v{vW1+8+c}, v{vW1+8+c}, v{vW1+12+c}")
        g(f"v_add_f32 v{vW1+c}, v{vW1+c}, v{vW1+8+c}")
    g(f"s_mul_i32 s{sT0}, s2, 5120")
    g(f"s_add_u32 s{sT0}, s{sT0}, {WS_FP}")
    g(f"buffer_store_dwordx4 v[{vW1}:{vW1+3}], v{vT}, s[{sWS}:{sWS+3}], s{sT0} offen")
    stamp(g, 7)
    if STAMPS:
        g("s_cmp_eq_u32 s2, STAMP_WG".replace("STAMP_WG", str(STAMP_WG)))
        g("s_cbranch_scc0 ffn_end")
    if STAMPS:
        g(f"s_cmp_eq_u32 s{sWave}, 0")
        g("s_cbranch_scc0 ffn_end")
    stamp_flush(g, 8, 100 if "ffn_end" != "fin_end" else 60)
    g.label("ffn_end", pad=False)
    g("s_endpgm")
    return L, nv, 48


def k_fin(g):
    L = "fin_kernel"
    header(g, L)
    sB2, sOut, sWS = 16, 20, 24
    sT0, sOff = 28, 29
    vE, vT, vH, vB = 1, 2, 3, 4
    vP = 8
    nv = 64
    g("s_cmp_ge_u32 s2, 20")
    g("s_cbranch_scc1 fin_end")
    stamp(g, 0)
    g("s_load_dwordx2 s[4:5], s[0:1], 72")
    g("s_load_dwordx2 s[6:7], s[0:1], 80")
    g("s_load_dwordx2 s[8:9], s[0:1], 96")
    g(f"s_lshl_b32 s{sT0}, s2, 6")
    g(f"v_add_u32 v{vE}, s{sT0}, v0")
    g(f"v_lshlrev_b32 v{vT}, 2, v{vE}")
    g("s_waitcnt lgkmcnt(0)")
    srd(g, sB2, 4, 1280)
    srd(g, sOut, 6, 2560)
    srd(g, sWS, 8, WS_SIZE)
    for j in range(48):
        g(f"s_mov_b32 s{sOff}, {WS_FP + j*5120}")
        g(f"buffer_load_dword v{vP+j}, v{vT}, s[{sWS}:{sWS+3}], s{sOff} offen")
    g(f"s_mov_b32 s{sOff}, {WS_HH}")
    g(f"buffer_load_dword v{vH}, v{vT}, s[{sWS}:{sWS+3}], s{sOff} offen")
    g(f"s_cmp_ge_u32 s2, 10")
    g(f"s_cselect_b32 s{sT0}, 640, 0")
    g(f"v_subrev_u32 v{vT}, s{sT0}, v{vE}")
    g(f"v_lshlrev_b32 v{vT}, 1, v{vT}")
    g(f"buffer_load_ushort v{vB}, v{vT}, s[{sB2}:{sB2+3}], 0 offen")
    g("s_waitcnt vmcnt(0)")
    for j in range(1, 48):
        g(f"v_add_f32 v{vP}, v{vP}, v{vP+j}")
    bf16r(g, vP, vP)
    g(f"v_lshlrev_b32 v{vB}, 16, v{vB}")
    g(f"v_add_f32 v{vP}, v{vP}, v{vB}")
    bf16r(g, vP, vP)
    g(f"v_add_f32 v{vP}, v{vP}, v{vH}")
    g(f"v_cvt_pk_bf16_f32 v{vP}, v{vP}, v{vP}")
    g(f"v_lshlrev_b32 v{vT}, 1, v{vE}")
    g(f"buffer_store_short v{vP}, v{vT}, s[{sOut}:{sOut+3}], 0 offen")
    stamp(g, 7)
    if STAMPS:
        g("s_cmp_eq_u32 s2, STAMP_WG".replace("STAMP_WG", str(STAMP_WG)))
        g("s_cbranch_scc0 fin_end")
    stamp_flush(g, 8, 100 if "fin_end" != "fin_end" else 60)
    g.label("fin_end", pad=False)
    g("s_endpgm")
    return L, nv, 40


def poll(g, name, issue, regs, vt):
    g.label(name)
    issue()
    g("s_waitcnt vmcnt(0)")
    rs = list(regs)
    g(f"v_max3_u32 v{vt}, v{rs[0]}, v{rs[1]}, v{rs[2]}")
    k = 3
    while k < len(rs):
        if k + 1 < len(rs):
            g(f"v_max3_u32 v{vt}, v{vt}, v{rs[k]}, v{rs[k+1]}")
            k += 2
        else:
            g(f"v_max_u32 v{vt}, v{vt}, v{rs[k]}")
            k += 1
    g(f"v_cmp_eq_u32 vcc, -1, v{vt}")
    g(f"s_cbranch_vccz {name}_done")
    g("s_sleep 2")
    g(f"s_branch {name}")
    g.label(name + "_done")


def half_reduce(g, v, t):
    op = "v_add_f32"
    g(f"{op}_dpp v{v}, v{v}, v{v} quad_perm:[1,0,3,2] row_mask:0xf bank_mask:0xf")
    g(f"{op}_dpp v{v}, v{v}, v{v} quad_perm:[2,3,0,1] row_mask:0xf bank_mask:0xf")
    g(f"{op}_dpp v{v}, v{v}, v{v} row_half_mirror row_mask:0xf bank_mask:0xf")
    g(f"{op}_dpp v{v}, v{v}, v{v} row_mirror row_mask:0xf bank_mask:0xf")
    g(f"v_mov_b32 v{t}, v{v}")
    g(f"v_permlane16_swap_b32 v{v}, v{t}")
    g(f"{op} v{v}, v{v}, v{t}")


def gemv_step(g, vW, vAcc, o0, o1, t2, t3):
    for c in range(4):
        r = vW + c
        g(f"v_lshlrev_b32 v{t2}, 16, v{r}")
        g(f"v_and_b32 v{t3}, 0xffff0000, v{r}")
        g(f"v_fmac_f32 v{vAcc+2*c}, v{t2}, v{o0}")
        g(f"v_fmac_f32 v{vAcc+2*c+1}, v{t3}, v{o0}")
        g(f"v_fmac_f32 v{vAcc+8+2*c}, v{t2}, v{o1}")
        g(f"v_fmac_f32 v{vAcc+8+2*c+1}, v{t3}, v{o1}")


def k_tail(g):
    L = "tail_kernel"
    header(g, L)
    sWave, sT0, sT1, sOff = 36, 37, 38, 39
    vLane, vT, vT2, vT3 = 1, 2, 3, 4
    g("s_cmp_ge_u32 s2, 228")
    g("s_cbranch_scc1 tail_end")
    stamp(g, 0)
    g("s_load_dwordx2 s[14:15], s[0:1], 96")
    g(f"v_and_b32 v{vLane}, 63, v0")
    g(f"v_lshrrev_b32 v{vT}, 6, v0")
    g(f"v_readfirstlane_b32 s{sWave}, v{vT}")
    g("s_cmp_ge_u32 s2, 208")
    g("s_cbranch_scc1 tail_fin")
    g("s_cmp_ge_u32 s2, 160")
    g("s_cbranch_scc1 tail_ffn")

    sWO, sWS = 16, 20
    sRb, sCb = 24, 25
    OC, RED, RED2 = 0, 8192, 32768
    vWoOff, vOo, vMo, vB = 5, 6, 7, 40
    vAcc = 8
    vML = 24
    vM, vF, vDen, vR = 32, 33, 34, 35
    vN = 36
    vO = 44
    vW = 60
    vOv = 92
    g("s_load_dwordx2 s[4:5], s[0:1], 32")
    g(f"s_mul_i32 s{sRb}, s2, 3277")
    g(f"s_lshr_b32 s{sRb}, s{sRb}, 16")
    g(f"s_mul_i32 s{sT0}, s{sRb}, 20")
    g(f"s_sub_u32 s{sCb}, s2, s{sT0}")
    g(f"v_lshrrev_b32 v{vT}, 2, v{vLane}")
    g(f"v_mul_u32_u24 v{vWoOff}, 1280, v{vT}")
    g(f"v_and_b32 v{vT2}, 3, v{vLane}")
    g(f"v_lshlrev_b32 v{vT2}, 4, v{vT2}")
    g(f"v_add_u32 v{vWoOff}, v{vWoOff}, v{vT2}")
    g(f"v_cmp_le_u32 vcc, 192, v0")
    g(f"v_cndmask_b32 v{vB}, 0, 1, vcc")
    g(f"v_mul_u32_u24 v{vT}, 192, v{vB}")
    g(f"v_sub_u32 v{vT}, v0, v{vT}")
    g(f"v_mul_u32_u24 v{vT2}, 1366, v{vT}")
    g(f"v_lshrrev_b32 v{vT2}, 16, v{vT2}")
    g(f"v_mul_u32_u24 v{vT3}, 48, v{vT2}")
    g(f"v_sub_u32 v{vT3}, v{vT}, v{vT3}")
    g(f"v_lshlrev_b32 v{vB}, 5, v{vB}")
    g(f"v_add_u32 v{vT2}, v{vT2}, v{vB}")
    g(f"v_lshlrev_b32 v{vMo}, 5, v{vT2}")
    g(f"v_mul_u32_u24 v{vOo}, 3072, v{vT2}")
    g(f"v_lshlrev_b32 v{vT3}, 4, v{vT3}")
    g(f"v_add_u32 v{vOo}, v{vOo}, v{vT3}")
    g("s_waitcnt lgkmcnt(0)")
    srd(g, sWS, 14, WS_SIZE)
    srd(g, sWO, 4, 7864320)
    g(f"s_mul_i32 s{sT0}, s{sRb}, {4*3072}")
    for sp in range(4):
        g(f"buffer_load_dwordx4 v[{vO+4*sp}:{vO+4*sp+3}], v{vOo}, s[{sWS}:{sWS+3}], s{sT0} offen offset:{WS_PART + sp*768}")
    g(f"s_lshl_b32 s{sT0}, s{sRb}, 7")
    g(f"s_add_u32 s{sT0}, s{sT0}, {WS_ML}")
    for q in range(2):
        g(f"buffer_load_dwordx4 v[{vML+4*q}:{vML+4*q+3}], v{vMo}, s[{sWS}:{sWS+3}], s{sT0} offen offset:{q*16}")
    g("s_barrier")
    g(f"s_mul_i32 s{sT0}, s{sRb}, {768*1280}")
    g(f"s_mul_i32 s{sT1}, s{sWave}, {128*1280}")
    g(f"s_add_u32 s{sT0}, s{sT0}, s{sT1}")
    g(f"s_lshl_b32 s{sT1}, s{sCb}, 6")
    g(f"s_add_u32 s{sT0}, s{sT0}, s{sT1}")
    for i in range(8):
        g(f"s_add_u32 s{sOff}, s{sT0}, {i*16*1280}")
        g(f"buffer_load_dwordx4 v[{vW+4*i}:{vW+4*i+3}], v{vWoOff}, s[{sWO}:{sWO+3}], s{sOff} offen")
    for c in range(16):
        g(f"v_mov_b32 v{vAcc+c}, 0")
    stamp(g, 1)
    g("s_waitcnt vmcnt(8)")
    stamp(g, 2)
    g(f"v_max_f32 v{vM}, v{vML}, v{vML+2}")
    g(f"v_max3_f32 v{vM}, v{vM}, v{vML+4}, v{vML+6}")
    for sp in range(4):
        g(f"v_sub_f32 v{vF}, v{vML+2*sp}, v{vM}")
        g(f"v_mul_f32 v{vF}, {LOG2E:#x}, v{vF}")
        g(f"v_exp_f32 v{vF}, v{vF}")
        if sp == 0:
            g(f"v_mul_f32 v{vDen}, v{vF}, v{vML+1}")
            for c in range(4):
                g(f"v_mul_f32 v{vN+c}, v{vF}, v{vO+c}")
        else:
            g(f"v_fmac_f32 v{vDen}, v{vF}, v{vML+2*sp+1}")
            for c in range(4):
                g(f"v_fmac_f32 v{vN+c}, v{vF}, v{vO+4*sp+c}")
    g(f"v_rcp_f32 v{vR}, v{vDen}")
    for c in range(4):
        g(f"v_mul_f32 v{vO+c}, v{vN+c}, v{vR}")
        g(f"v_fma_f32 v{vN+c}, -v{vO+c}, v{vDen}, v{vN+c}")
        g(f"v_fma_f32 v{vO+c}, v{vN+c}, v{vR}, v{vO+c}")
    bf16r2(g, vO, vO + 1, vT)
    bf16r2(g, vO + 2, vO + 3, vT)
    g(f"v_lshlrev_b32 v{vT}, 4, v0")
    g(f"ds_write_b128 v{vT}, v[{vO}:{vO+3}] offset:{OC}")
    g(f"v_lshrrev_b32 v{vT}, 2, v{vLane}")
    g(f"s_lshl_b32 s{sT0}, s{sWave}, 7")
    g(f"v_add_u32 v{vT}, s{sT0}, v{vT}")
    g(f"v_lshlrev_b32 v{vT}, 2, v{vT}")
    g("s_waitcnt lgkmcnt(0)")
    stamp(g, 6)
    g("s_barrier")
    stamp(g, 3)
    for i in range(8):
        g(f"ds_read_b32 v{vOv+2*i}, v{vT} offset:{OC + i*64}")
        g(f"ds_read_b32 v{vOv+2*i+1}, v{vT} offset:{OC + 3072 + i*64}")
    g("s_waitcnt lgkmcnt(0)")
    for i in range(8):
        g(f"s_waitcnt vmcnt({7-i})")
        gemv_step(g, vW + 4 * i, vAcc, vOv + 2 * i, vOv + 2 * i + 1, vT2, vT3)
    stamp(g, 4)
    wave_reduce_64(g, vAcc, vLane, sWave, RED, RED2, vT, vT2, vT3, vW, sT0)
    g("s_barrier")
    if STAMPS == 2:
        stamp(g, 5)
        g(f"s_cmp_eq_u32 s2, {STAMP_WG}")
        g("s_cbranch_scc0 wo_nostamp")
        g("s_load_dwordx2 s[60:61], s[0:1], 88")
        g("s_waitcnt lgkmcnt(0)")
        srd(g, 64, 60, 256)
        g(f"s_lshl_b32 s62, s{sWave}, 5")
        for i in range(8):
            g(f"v_mov_b32 v100, s{70+2*i}")
            g(f"v_mov_b32 v101, {i*4}")
            g(f"buffer_store_dword v100, v101, s[64:67], s62 offen")
        g("s_waitcnt vmcnt(0)")
        g.label("wo_nostamp")
    g(f"s_cmp_eq_u32 s{sWave}, 0")
    g("s_cbranch_scc0 tail_end")
    g(f"v_lshlrev_b32 v{vT}, 2, v{vLane}")
    for w in range(6):
        g(f"ds_read_b32 v{vW+w}, v{vT} offset:{RED2 + w*256}")
    g(f"v_lshrrev_b32 v{vT}, 5, v{vLane}")
    g(f"v_mul_u32_u24 v{vT}, 2560, v{vT}")
    g(f"v_and_b32 v{vT2}, 31, v{vLane}")
    g(f"v_lshlrev_b32 v{vT2}, 2, v{vT2}")
    g(f"v_add_u32 v{vT}, v{vT}, v{vT2}")
    g(f"s_mul_i32 s{sT0}, s{sRb}, 5120")
    g(f"s_lshl_b32 s{sT1}, s{sCb}, 7")
    g(f"s_add_u32 s{sT0}, s{sT0}, s{sT1}")
    g(f"s_add_u32 s{sT0}, s{sT0}, {WS_HP}")
    g("s_waitcnt lgkmcnt(0)")
    g(f"v_add_f32 v{vW}, v{vW}, v{vW+1}")
    g(f"v_add_f32 v{vW+2}, v{vW+2}, v{vW+3}")
    g(f"v_add_f32 v{vW+4}, v{vW+4}, v{vW+5}")
    g(f"v_add_f32 v{vW}, v{vW}, v{vW+2}")
    g(f"v_add_f32 v{vW}, v{vW}, v{vW+4}")
    g(f"buffer_store_dword v{vW}, v{vT}, s[{sWS}:{sWS+3}], s{sT0} offen sc1")
    stamp(g, 7)
    if STAMPS == 1:
        g(f"s_cmp_eq_u32 s2, {STAMP_WG}")
        g("s_cbranch_scc0 tail_end")
        stamp_flush(g, 8, 100, 0)
    g("s_endpgm")

    g.label("tail_ffn")
    g(f"s_cmp_eq_u32 s{sWave}, 5")
    g("s_cbranch_scc1 tail_end")
    sX, sW1, sB1, sW2, sWS = 16, 20, 24, 28, 32
    sFb = 40
    sMk = 42
    SUM, SUM2, HN, RED, RED2, H1, R3 = 0, 64, 5120, 10240, 30720, 32000, 32768
    vAcc = 8
    vW1 = 24
    vW2 = 56
    vHP = 88
    vX = 120
    vB1 = 122
    vH = 124
    vRG, vCC = 5, 6
    vHa = 7
    vS = 128
    vMb, vSd = 136, 137
    g("s_load_dwordx2 s[4:5], s[0:1], 0")
    g("s_load_dwordx4 s[8:11], s[0:1], 48")
    g("s_load_dwordx2 s[12:13], s[0:1], 64")
    g(f"s_sub_u32 s{sFb}, s2, 160")
    g(f"v_lshlrev_b32 v{vHa}, 4, v0")
    g("s_waitcnt lgkmcnt(0)")
    srd(g, sX, 4, 2560)
    srd(g, sW1, 8, 1966080)
    srd(g, sB1, 10, 3072)
    srd(g, sW2, 12, 1966080)
    srd(g, sWS, 14, WS_SIZE)
    g(f"v_lshlrev_b32 v{vT2}, 3, v0")
    g(f"buffer_load_dwordx2 v[{vX}:{vX+1}], v{vT2}, s[{sX}:{sX+3}], 0 offen")
    g(f"v_and_b32 v{vT2}, 31, v{vLane}")
    g(f"v_lshlrev_b32 v{vT2}, 1, v{vT2}")
    g(f"s_lshl_b32 s{sT0}, s{sFb}, 6")
    g(f"buffer_load_ushort v{vB1}, v{vT2}, s[{sB1}:{sB1+3}], s{sT0} offen")
    g(f"v_lshrrev_b32 v{vT}, 2, v{vLane}")
    g(f"v_mul_u32_u24 v{vT}, 3072, v{vT}")
    g(f"v_and_b32 v{vT2}, 3, v{vLane}")
    g(f"v_lshlrev_b32 v{vT2}, 4, v{vT2}")
    g(f"v_add_u32 v{vT}, v{vT}, v{vT2}")
    g(f"s_mul_i32 s{sT1}, s{sWave}, {128*3072}")
    g(f"s_add_u32 s{sT1}, s{sT1}, s{sT0}")
    for i in range(8):
        g(f"s_add_u32 s{sOff}, s{sT1}, {i*16*3072}")
        g(f"buffer_load_dwordx4 v[{vW1+4*i}:{vW1+4*i+3}], v{vT}, s[{sW1}:{sW1+3}], s{sOff} offen")
    g(f"v_mul_u32_u24 v{vRG}, 52429, v0")
    g(f"v_lshrrev_b32 v{vRG}, 22, v{vRG}")
    g(f"v_mul_u32_u24 v{vT}, 80, v{vRG}")
    g(f"v_sub_u32 v{vCC}, v0, v{vT}")
    g(f"v_mul_u32_u24 v{vT}, {8*1280}, v{vRG}")
    g(f"v_lshlrev_b32 v{vT2}, 4, v{vCC}")
    g(f"v_add_u32 v{vT}, v{vT}, v{vT2}")
    g(f"s_mul_i32 s{sT1}, s{sFb}, {32*1280}")
    for i in range(8):
        g(f"s_add_u32 s{sOff}, s{sT1}, {i*1280}")
        g(f"buffer_load_dwordx4 v[{vW2+4*i}:{vW2+4*i+3}], v{vT}, s[{sW2}:{sW2+3}], s{sOff} offen")
    g(f"v_cmp_le_u32 vcc, 160, v0")
    g(f"s_mov_b64 s[{sMk}:{sMk+1}], vcc")
    vBt, vSw, vSr, vHNa = 138, 139, 140, 141
    g(f"v_cndmask_b32 v{vBt}, 0, 1, s[{sMk}:{sMk+1}]")
    g(f"v_lshrrev_b32 v{vT}, 5, v0")
    g(f"v_mul_u32_u24 v{vT2}, 3, v{vBt}")
    g(f"v_add_u32 v{vT}, v{vT}, v{vT2}")
    g(f"v_lshlrev_b32 v{vSw}, 2, v{vT}")
    g(f"v_lshlrev_b32 v{vSr}, 5, v{vBt}")
    g(f"v_mul_u32_u24 v{vT3}, 160, v{vBt}")
    g(f"v_sub_u32 v{vT3}, v0, v{vT3}")
    g(f"v_lshlrev_b32 v{vT3}, 5, v{vT3}")
    g(f"v_lshlrev_b32 v{vT2}, 2, v{vBt}")
    g(f"v_add_u32 v{vHNa}, v{vT3}, v{vT2}")
    stamp(g, 1)

    def issue_hp():
        for rb in range(8):
            g(f"s_mov_b32 s{sOff}, {WS_HP + rb*5120}")
            g(f"buffer_load_dwordx4 v[{vHP+4*rb}:{vHP+4*rb+3}], v{vHa}, s[{sWS}:{sWS+3}], s{sOff} offen sc1")
    poll(g, "ffn_poll", issue_hp, range(vHP, vHP + 32), vT)
    stamp(g, 2)
    for c in range(4):
        g(f"v_add_f32 v{vH+c}, v{vHP+c}, v{vHP+4+c}")
        g(f"v_add_f32 v{vT}, v{vHP+8+c}, v{vHP+12+c}")
        g(f"v_add_f32 v{vT2}, v{vHP+16+c}, v{vHP+20+c}")
        g(f"v_add_f32 v{vT3}, v{vHP+24+c}, v{vHP+28+c}")
        g(f"v_add_f32 v{vH+c}, v{vH+c}, v{vT}")
        g(f"v_add_f32 v{vT2}, v{vT2}, v{vT3}")
        g(f"v_add_f32 v{vH+c}, v{vH+c}, v{vT2}")
    bf16r2(g, vH, vH + 1, vT)
    bf16r2(g, vH + 2, vH + 3, vT)
    g(f"v_lshlrev_b32 v{vT}, 16, v{vX}")
    g(f"v_add_f32 v{vH}, v{vH}, v{vT}")
    g(f"v_and_b32 v{vT}, 0xffff0000, v{vX}")
    g(f"v_add_f32 v{vH+1}, v{vH+1}, v{vT}")
    g(f"v_lshlrev_b32 v{vT}, 16, v{vX+1}")
    g(f"v_add_f32 v{vH+2}, v{vH+2}, v{vT}")
    g(f"v_and_b32 v{vT}, 0xffff0000, v{vX+1}")
    g(f"v_add_f32 v{vH+3}, v{vH+3}, v{vT}")
    bf16r2(g, vH, vH + 1, vT)
    bf16r2(g, vH + 2, vH + 3, vT)
    g(f"s_cmp_eq_u32 s{sFb}, 0")
    g("s_cbranch_scc0 ffn_nohh")
    g(f"s_mov_b32 s{sOff}, {WS_HH}")
    g(f"buffer_store_dwordx4 v[{vH}:{vH+3}], v{vHa}, s[{sWS}:{sWS+3}], s{sOff} offen sc1")
    g.label("ffn_nohh")
    g(f"v_add_f32 v{vT}, v{vH}, v{vH+1}")
    g(f"v_add_f32 v{vT2}, v{vH+2}, v{vH+3}")
    g(f"v_add_f32 v{vT}, v{vT}, v{vT2}")
    half_reduce(g, vT, vT2)
    g(f"ds_write_b32 v{vSw}, v{vT} offset:{SUM}")
    g("s_waitcnt lgkmcnt(0)")
    g("s_barrier")
    g(f"ds_read_b128 v[{vS}:{vS+3}], v{vSr} offset:{SUM}")
    g(f"ds_read_b32 v{vS+4}, v{vSr} offset:{SUM+16}")
    g("s_waitcnt lgkmcnt(0)")
    g(f"v_add_f32 v{vS}, v{vS}, v{vS+1}")
    g(f"v_add_f32 v{vS+2}, v{vS+2}, v{vS+3}")
    g(f"v_add_f32 v{vS}, v{vS}, v{vS+4}")
    g(f"v_add_f32 v{vS}, v{vS}, v{vS+2}")
    g(f"v_mul_f32 v{vS+5}, {INV640:#x}, v{vS}")
    g(f"v_sub_f32 v{vT2}, v{vH}, v{vS+5}")
    g(f"v_mul_f32 v{vT}, v{vT2}, v{vT2}")
    for c in range(1, 4):
        g(f"v_sub_f32 v{vT2}, v{vH+c}, v{vS+5}")
        g(f"v_fmac_f32 v{vT}, v{vT2}, v{vT2}")
    half_reduce(g, vT, vT2)
    g(f"ds_write_b32 v{vSw}, v{vT} offset:{SUM2}")
    bf16r(g, vMb, vS + 5)
    g("s_waitcnt lgkmcnt(0)")
    g("s_barrier")
    g(f"ds_read_b128 v[{vS}:{vS+3}], v{vSr} offset:{SUM2}")
    g(f"ds_read_b32 v{vS+4}, v{vSr} offset:{SUM2+16}")
    for c in range(4):
        g(f"v_sub_f32 v{vH+c}, v{vH+c}, v{vMb}")
    bf16r2(g, vH, vH + 1, vT)
    bf16r2(g, vH + 2, vH + 3, vT)
    g("s_waitcnt lgkmcnt(0)")
    g(f"v_add_f32 v{vS}, v{vS}, v{vS+1}")
    g(f"v_add_f32 v{vS+2}, v{vS+2}, v{vS+3}")
    g(f"v_add_f32 v{vS}, v{vS}, v{vS+4}")
    g(f"v_add_f32 v{vS}, v{vS}, v{vS+2}")
    g(f"v_mul_f32 v{vS}, {INV640:#x}, v{vS}")
    bf16r(g, vS, vS)
    g(f"v_add_f32 v{vS}, {EPS:#x}, v{vS}")
    bf16r(g, vS, vS)
    g(f"v_sqrt_f32 v{vS}, v{vS}")
    bf16r(g, vSd, vS)
    g(f"v_rcp_f32 v{vS+1}, v{vSd}")
    for c in range(4):
        g(f"v_mul_f32 v{vS+2}, v{vH+c}, v{vS+1}")
        g(f"v_fma_f32 v{vH+c}, -v{vS+2}, v{vSd}, v{vH+c}")
        g(f"v_fma_f32 v{vH+c}, v{vH+c}, v{vS+1}, v{vS+2}")
    bf16r2(g, vH, vH + 1, vT)
    bf16r2(g, vH + 2, vH + 3, vT)
    for c in range(4):
        g(f"ds_write_b32 v{vHNa}, v{vH+c} offset:{HN + c*8}")
    g(f"v_lshrrev_b32 v{vT}, 2, v{vLane}")
    g(f"s_lshl_b32 s{sT0}, s{sWave}, 7")
    g(f"v_add_u32 v{vT}, s{sT0}, v{vT}")
    g(f"v_lshlrev_b32 v{vT}, 3, v{vT}")
    for c in range(16):
        g(f"v_mov_b32 v{vAcc+c}, 0")
    g("s_waitcnt lgkmcnt(0)")
    g("s_barrier")
    stamp(g, 3)
    vOv = vHP
    for i in range(8):
        g(f"ds_read_b64 v[{vOv+2*i}:{vOv+2*i+1}], v{vT} offset:{HN + i*128}")
    for i in range(8):
        g(f"s_waitcnt lgkmcnt({7-i})")
        gemv_step(g, vW1 + 4 * i, vAcc, vOv + 2 * i, vOv + 2 * i + 1, vT2, vT3)
    stamp(g, 4)
    wave_reduce_64(g, vAcc, vLane, sWave, RED, RED2, vT, vT2, vT3, vW1, sT0)
    g("s_barrier")
    g(f"s_cmp_eq_u32 s{sWave}, 0")
    g("s_cbranch_scc0 ffn_h1_skip")
    g(f"v_lshlrev_b32 v{vT}, 2, v{vLane}")
    for w in range(5):
        g(f"ds_read_b32 v{vW1+w}, v{vT} offset:{RED2 + w*256}")
    g(f"v_lshlrev_b32 v{vB1}, 16, v{vB1}")
    g(f"v_and_b32 v{vT}, 31, v{vLane}")
    g(f"v_lshlrev_b32 v{vT}, 3, v{vT}")
    g(f"v_lshrrev_b32 v{vT2}, 5, v{vLane}")
    g(f"v_lshlrev_b32 v{vT2}, 2, v{vT2}")
    g(f"v_add_u32 v{vT}, v{vT}, v{vT2}")
    g("s_waitcnt lgkmcnt(0)")
    g(f"v_add_f32 v{vW1}, v{vW1}, v{vW1+1}")
    g(f"v_add_f32 v{vW1+2}, v{vW1+2}, v{vW1+3}")
    g(f"v_add_f32 v{vW1}, v{vW1}, v{vW1+4}")
    g(f"v_add_f32 v{vW1}, v{vW1}, v{vW1+2}")
    bf16r(g, vW1, vW1)
    g(f"v_add_f32 v{vW1}, v{vW1}, v{vB1}")
    bf16r(g, vW1, vW1)
    g(f"v_max_f32 v{vW1}, 0, v{vW1}")
    g(f"v_mul_f32 v{vW1}, v{vW1}, v{vW1}")
    bf16r(g, vW1, vW1)
    g(f"ds_write_b32 v{vT}, v{vW1} offset:{H1}")
    g("s_waitcnt lgkmcnt(0)")
    g.label("ffn_h1_skip")
    g(f"v_lshlrev_b32 v{vT}, 6, v{vRG}")
    for c in range(16):
        g(f"v_mov_b32 v{vAcc+c}, 0")
    g("s_barrier")
    stamp(g, 5)
    for i in range(0, 8, 2):
        g(f"ds_read_b128 v[{vOv+2*i}:{vOv+2*i+3}], v{vT} offset:{H1 + i*8}")
    g("s_waitcnt lgkmcnt(0)")
    for i in range(8):
        gemv_step(g, vW2 + 4 * i, vAcc, vOv + 2 * i, vOv + 2 * i + 1, vT2, vT3)
    stamp(g, 6)
    g(f"v_mul_u32_u24 v{vT}, 5120, v{vRG}")
    g(f"v_lshlrev_b32 v{vT2}, 5, v{vCC}")
    g(f"v_add_u32 v{vT}, v{vT}, v{vT2}")
    for b in range(2):
        for q in range(2):
            r = vAcc + 8 * b + 4 * q
            g(f"ds_write_b128 v{vT}, v[{r}:{r+3}] offset:{R3 + b*2560 + q*16}")
    g("s_waitcnt lgkmcnt(0)")
    g("s_barrier")
    for rg in range(4):
        g(f"ds_read_b128 v[{vW1+4*rg}:{vW1+4*rg+3}], v{vHa} offset:{R3 + rg*5120}")
    g(f"s_mul_i32 s{sT0}, s{sFb}, 5120")
    g(f"s_add_u32 s{sT0}, s{sT0}, {WS_FP}")
    g("s_waitcnt lgkmcnt(0)")
    for c in range(4):
        g(f"v_add_f32 v{vW1+c}, v{vW1+c}, v{vW1+4+c}")
        g(f"v_add_f32 v{vW1+8+c}, v{vW1+8+c}, v{vW1+12+c}")
        g(f"v_add_f32 v{vW1+c}, v{vW1+c}, v{vW1+8+c}")
    g(f"buffer_store_dwordx4 v[{vW1}:{vW1+3}], v{vHa}, s[{sWS}:{sWS+3}], s{sT0} offen sc1")
    stamp(g, 7)
    if STAMPS == 1:
        g(f"s_cmp_eq_u32 s2, 160")
        g("s_cbranch_scc0 tail_end")
        g(f"s_cmp_eq_u32 s{sWave}, 0")
        g("s_cbranch_scc0 tail_end")
        stamp_flush(g, 8, 100, 32)
    g("s_endpgm")

    g.label("tail_fin")
    sB2, sOut, sWS = 16, 20, 24
    sFi = 28
    FL = 0
    vE, vHh, vB2 = 5, 6, 7
    vP = 8
    g("s_load_dwordx2 s[4:5], s[0:1], 72")
    g("s_load_dwordx2 s[6:7], s[0:1], 80")
    g(f"s_sub_u32 s{sFi}, s2, 208")
    g(f"s_lshl_b32 s{sT0}, s{sFi}, 6")
    g(f"v_add_u32 v{vE}, s{sT0}, v{vLane}")
    g(f"v_lshlrev_b32 v{vT3}, 2, v{vE}")
    g("s_waitcnt lgkmcnt(0)")
    srd(g, sB2, 4, 1280)
    srd(g, sOut, 6, 2560)
    srd(g, sWS, 14, WS_SIZE)
    g(f"s_cmp_ge_u32 s{sFi}, 10")
    g(f"s_cselect_b32 s{sT0}, 640, 0")
    g(f"v_subrev_u32 v{vT}, s{sT0}, v{vE}")
    g(f"v_lshlrev_b32 v{vT}, 1, v{vT}")
    g(f"buffer_load_ushort v{vB2}, v{vT}, s[{sB2}:{sB2+3}], 0 offen")
    g(f"s_mul_i32 s{sT1}, s{sWave}, {8*5120}")
    g(f"s_add_u32 s{sT1}, s{sT1}, {WS_FP}")

    def issue_fp():
        for j in range(8):
            g(f"s_add_u32 s{sOff}, s{sT1}, {j*5120}")
            g(f"buffer_load_dword v{vP+j}, v{vT3}, s[{sWS}:{sWS+3}], s{sOff} offen sc1")
        g(f"s_mov_b32 s{sOff}, {WS_HH}")
        g(f"buffer_load_dword v{vP+8}, v{vT3}, s[{sWS}:{sWS+3}], s{sOff} offen sc1")
    poll(g, "fin_poll", issue_fp, range(vP, vP + 9), vT)
    stamp(g, 2)
    g(f"v_add_f32 v{vP}, v{vP}, v{vP+1}")
    g(f"v_add_f32 v{vP+2}, v{vP+2}, v{vP+3}")
    g(f"v_add_f32 v{vP+4}, v{vP+4}, v{vP+5}")
    g(f"v_add_f32 v{vP+6}, v{vP+6}, v{vP+7}")
    g(f"v_add_f32 v{vP}, v{vP}, v{vP+2}")
    g(f"v_add_f32 v{vP+4}, v{vP+4}, v{vP+6}")
    g(f"v_add_f32 v{vP}, v{vP}, v{vP+4}")
    g(f"v_lshlrev_b32 v{vT}, 2, v0")
    g(f"ds_write_b32 v{vT}, v{vP} offset:{FL}")
    g("s_waitcnt lgkmcnt(0)")
    g("s_barrier")
    g(f"s_cmp_eq_u32 s{sWave}, 0")
    g("s_cbranch_scc0 tail_end")
    for w in range(1, 6):
        g(f"ds_read_b32 v{vP+w}, v{vT} offset:{FL + w*256}")
    g(f"v_lshlrev_b32 v{vB2}, 16, v{vB2}")
    g("s_waitcnt lgkmcnt(0)")
    g(f"v_add_f32 v{vP}, v{vP}, v{vP+1}")
    g(f"v_add_f32 v{vP+2}, v{vP+2}, v{vP+3}")
    g(f"v_add_f32 v{vP+4}, v{vP+4}, v{vP+5}")
    g(f"v_add_f32 v{vP}, v{vP}, v{vP+2}")
    g(f"v_add_f32 v{vP}, v{vP}, v{vP+4}")
    bf16r(g, vP, vP)
    g(f"v_add_f32 v{vP}, v{vP}, v{vB2}")
    bf16r(g, vP, vP)
    g(f"v_add_f32 v{vP}, v{vP}, v{vP+8}")
    g(f"v_cvt_pk_bf16_f32 v{vP}, v{vP}, v{vP}")
    g(f"v_lshlrev_b32 v{vT}, 1, v{vE}")
    g(f"buffer_store_short v{vP}, v{vT}, s[{sOut}:{sOut+3}], 0 offen")
    stamp(g, 7)
    if STAMPS == 1:
        g(f"s_cmp_eq_u32 s2, 208")
        g("s_cbranch_scc0 tail_end")
        stamp_flush(g, 8, 100, 64)
    g.label("tail_end", pad=False)
    g("s_endpgm")
    return L, 144, 48


def build(NBUF=16, nt=True, PRIO=0, PREF=0):
    g = Gen()
    head = open(f"cdna_kernels/{NAME}.s.ref").read().split("; Override launch")[0]
    g.raw(head.rstrip("\n"))
    g.raw("; @launch kernel=attn_kernel grid=(256,1,1) block=(1024,1,1) lds=98304")
    g.raw("; @launch kernel=tail_kernel grid=(228,1,1) block=(384,1,1) lds=53248")
    g.raw('.amdgcn_target "amdgcn-amd-amdhsa--gfx950"')
    g.raw(".text")
    descs = []
    for fn, kw in ((k_attn, dict(NBUF=NBUF, nt=nt, PRIO=PRIO, PREF=PREF)), (k_tail, {})):
        g.wr = {}
        g.store_data = {}
        descs.append(fn(g, **kw))
    g.raw('.section .rodata,"a"')
    for L, nv, ns in descs:
        g.raw(".p2align 6")
        g.raw(descriptor(L, nv, ns).rstrip("\n"))
    return g.text()


if __name__ == "__main__":
    import struct
    import numpy as np
    assert struct.unpack("<I", struct.pack("<f", 192 ** -0.5))[0] == SCALE, hex(struct.unpack("<I", struct.pack("<f", 192 ** -0.5))[0])
    assert struct.unpack("<I", struct.pack("<f", 1 / 640))[0] == INV640
    assert struct.unpack("<I", struct.pack("<f", 1e-5))[0] == EPS
    for r in range(768):
        assert (r * 43691) >> 23 == r // 192
    for t in range(320):
        assert (t * 52429) >> 22 == t // 80
    for r in range(192):
        assert (r * 1366) >> 16 == r // 48
    for w in range(160):
        assert (w * 3277) >> 16 == w // 20
    out = sys.argv[1] if len(sys.argv) > 1 else f"cdna_kernels/{NAME}.s"
    kw = {}
    for a in sys.argv[2:]:
        k, v = a.split("=")
        if k == "STAMPS":
            STAMPS = int(v)
        elif k == "STAMP_WG":
            STAMP_WG = int(v)
        else:
            kw[k] = int(v)
    open(out, "w").write(build(**kw))
    print("wrote", out)
```

```python
import sys
from asmgen import Gen

NAME = "sequential_preLN__mha_block_cached__dense_activation_squared_relu__decode"

WS_PART = 0
WS_ML = 0x30000
WS_HP = 0x40000
WS_FP = 0x4A000
WS_HH = 0x86000
WS_SIZE = 0x100000

LOG2E = 0x3FB8AA3B
SCALE = 0x3D93CD3A
INV640 = 0x3ACCCCCD
EPS = 0x3727C5AC

STAMPS = 0
STAMP_WG = 0
SB = 84


def srd(g, d, base, size):
    g(f"s_mov_b32 s{d}, s{base}")
    g(f"s_and_b32 s{d+1}, s{base+1}, 0xffff")
    g(f"s_mov_b32 s{d+2}, {size}")
    g(f"s_mov_b32 s{d+3}, 0x00020000")


def allreduce(g, op, v, t):
    g(f"{op}_dpp v{v}, v{v}, v{v} quad_perm:[1,0,3,2] row_mask:0xf bank_mask:0xf")
    g(f"{op}_dpp v{v}, v{v}, v{v} quad_perm:[2,3,0,1] row_mask:0xf bank_mask:0xf")
    g(f"{op}_dpp v{v}, v{v}, v{v} row_half_mirror row_mask:0xf bank_mask:0xf")
    g(f"{op}_dpp v{v}, v{v}, v{v} row_mirror row_mask:0xf bank_mask:0xf")
    g(f"v_mov_b32 v{t}, v{v}")
    g(f"v_permlane16_swap_b32 v{v}, v{t}")
    g(f"{op} v{v}, v{v}, v{t}")
    g(f"v_mov_b32 v{t}, v{v}")
    g(f"v_permlane32_swap_b32 v{v}, v{t}")
    g(f"{op} v{v}, v{v}, v{t}")


def half_reduce(g, v, t):
    op = "v_add_f32"
    g(f"{op}_dpp v{v}, v{v}, v{v} quad_perm:[1,0,3,2] row_mask:0xf bank_mask:0xf")
    g(f"{op}_dpp v{v}, v{v}, v{v} quad_perm:[2,3,0,1] row_mask:0xf bank_mask:0xf")
    g(f"{op}_dpp v{v}, v{v}, v{v} row_half_mirror row_mask:0xf bank_mask:0xf")
    g(f"{op}_dpp v{v}, v{v}, v{v} row_mirror row_mask:0xf bank_mask:0xf")
    g(f"v_mov_b32 v{t}, v{v}")
    g(f"v_permlane16_swap_b32 v{v}, v{t}")
    g(f"{op} v{v}, v{v}, v{t}")


def bf16r(g, dst, src):
    g(f"v_cvt_pk_bf16_f32 v{dst}, v{src}, v{src}")
    g(f"v_lshlrev_b32 v{dst}, 16, v{dst}")


def bf16r2(g, a, b, t):
    g(f"v_cvt_pk_bf16_f32 v{t}, v{a}, v{b}")
    g(f"v_lshlrev_b32 v{a}, 16, v{t}")
    g(f"v_and_b32 v{b}, 0xffff0000, v{t}")


def ln_stats(g, xe, mb, sd, t0, t1, t2):
    g(f"v_add_f32 v{t0}, v{xe[0]}, v{xe[1]}")
    for r in xe[2:]:
        g(f"v_add_f32 v{t0}, v{t0}, v{r}")
    allreduce(g, "v_add_f32", t0, t1)
    g(f"v_mul_f32 v{t0}, {INV640:#x}, v{t0}")
    g(f"v_sub_f32 v{t1}, v{xe[0]}, v{t0}")
    g(f"v_mul_f32 v{t2}, v{t1}, v{t1}")
    for r in xe[1:]:
        g(f"v_sub_f32 v{t1}, v{r}, v{t0}")
        g(f"v_fmac_f32 v{t2}, v{t1}, v{t1}")
    allreduce(g, "v_add_f32", t2, t1)
    g(f"v_mul_f32 v{t2}, {INV640:#x}, v{t2}")
    bf16r(g, mb, t0)
    bf16r(g, t2, t2)
    g(f"v_add_f32 v{t2}, {EPS:#x}, v{t2}")
    bf16r(g, t2, t2)
    g(f"v_sqrt_f32 v{t2}, v{t2}")
    bf16r(g, sd, t2)


def ln_apply(g, x, mb, sd, r, e):
    g(f"v_sub_f32 v{x}, v{x}, v{mb}")
    bf16r(g, x, x)
    g(f"v_mov_b32 v{e}, v{x}")
    g(f"v_rcp_f32 v{r}, v{sd}")
    g(f"v_mul_f32 v{x}, v{e}, v{r}")
    g(f"v_fma_f32 v{e}, -v{x}, v{sd}, v{e}")
    g(f"v_fma_f32 v{x}, v{e}, v{r}, v{x}")
    bf16r(g, x, x)


def stamp(g, idx):
    if not STAMPS:
        return
    g(f"s_memrealtime s[{SB+2*idx}:{SB+1+2*idx}]")
    g("s_waitcnt lgkmcnt(0)")


def stamp_flush(g, sDbg, base):
    for i in range(8):
        g(f"v_mov_b32 v100, s{SB+2*i}")
        g(f"v_mov_b32 v101, {base + i*4}")
        g(f"buffer_store_dword v100, v101, s[{sDbg}:{sDbg+3}], 0 offen")
    g("s_waitcnt vmcnt(0)")


def poll(g, name, issue, regs, vt):
    g.label(name)
    issue()
    g("s_waitcnt vmcnt(0)")
    rs = list(regs)
    g(f"v_max3_u32 v{vt}, v{rs[0]}, v{rs[1]}, v{rs[2]}")
    k = 3
    while k < len(rs):
        if k + 1 < len(rs):
            g(f"v_max3_u32 v{vt}, v{vt}, v{rs[k]}, v{rs[k+1]}")
            k += 2
        else:
            g(f"v_max_u32 v{vt}, v{vt}, v{rs[k]}")
            k += 1
    g(f"v_cmp_eq_u32 vcc, -1, v{vt}")
    g(f"s_cbranch_vccz {name}_done")
    g("s_sleep 2")
    g(f"s_branch {name}")
    g.label(name + "_done")


def light_poll(g, name, loads, vt, sleep=4):
    g.label(name)
    for vd, va, sr, so in loads:
        g(f"buffer_load_dword v{vd}, v{va}, s[{sr}:{sr+3}], {so} offen sc1")
    g("s_waitcnt vmcnt(0)")
    rs = [x[0] for x in loads]
    g(f"v_mov_b32 v{vt}, v{rs[0]}")
    for r in rs[1:]:
        g(f"v_max_u32 v{vt}, v{vt}, v{r}")
    g(f"v_cmp_eq_u32 vcc, -1, v{vt}")
    g(f"s_cbranch_vccz {name}_done")
    g(f"s_sleep {sleep}")
    g(f"s_branch {name}")
    g.label(name + "_done")


def wait_init(g, name, sDbg, vt, st):
    g(f"v_mov_b32 v{vt+1}, 0")
    g.label(name)
    g(f"buffer_load_dword v{vt}, v{vt+1}, s[{sDbg}:{sDbg+3}], 0 offen sc1")
    g("s_waitcnt vmcnt(0)")
    g(f"v_readfirstlane_b32 s{st}, v{vt}")
    g(f"s_cmp_ge_u32 s{st}, 256")
    g(f"s_cbranch_scc1 {name}_done")
    g("s_sleep 4")
    g(f"s_branch {name}")
    g.label(name + "_done")


def gemv_step(g, vW, vAcc, o0, o1, t2, t3):
    for c in range(4):
        r = vW + c
        g(f"v_lshlrev_b32 v{t2}, 16, v{r}")
        g(f"v_and_b32 v{t3}, 0xffff0000, v{r}")
        g(f"v_fmac_f32 v{vAcc+2*c}, v{t2}, v{o0}")
        g(f"v_fmac_f32 v{vAcc+2*c+1}, v{t3}, v{o0}")
        g(f"v_fmac_f32 v{vAcc+8+2*c}, v{t2}, v{o1}")
        g(f"v_fmac_f32 v{vAcc+8+2*c+1}, v{t3}, v{o1}")


def wave_reduce_64(g, vAcc, vLane, sWave, RED, RED2, vT, vT2, vT3, vTmp, sT0):
    g(f"v_lshlrev_b32 v{vT}, 6, v0")
    if RED >= 65536 - 64:
        raise ValueError
    for q in range(4):
        g(f"ds_write_b128 v{vT}, v[{vAcc+4*q}:{vAcc+4*q+3}] offset:{RED + 16*q}")
    g(f"v_bfe_u32 v{vT2}, v{vLane}, 3, 2")
    g(f"v_lshlrev_b32 v{vT2}, 6, v{vT2}")
    g(f"v_lshrrev_b32 v{vT3}, 5, v{vLane}")
    g(f"v_lshlrev_b32 v{vT3}, 5, v{vT3}")
    g(f"v_add_u32 v{vT2}, v{vT2}, v{vT3}")
    g(f"v_and_b32 v{vT3}, 7, v{vLane}")
    g(f"v_lshlrev_b32 v{vT3}, 2, v{vT3}")
    g(f"v_add_u32 v{vT2}, v{vT2}, v{vT3}")
    g(f"s_lshl_b32 s{sT0}, s{sWave}, 12")
    g(f"v_add_u32 v{vT2}, s{sT0}, v{vT2}")
    g("s_waitcnt lgkmcnt(0)")
    for r in range(16):
        g(f"ds_read_b32 v{vTmp+r}, v{vT2} offset:{RED + r*256}")
    g(f"v_lshlrev_b32 v{vT}, 2, v0")
    g(f"v_add_u32 v{vT}, {RED2}, v{vT}")
    g("s_waitcnt lgkmcnt(0)")
    for st in (1, 2, 4, 8):
        for r in range(0, 16, 2 * st):
            g(f"v_add_f32 v{vTmp+r}, v{vTmp+r}, v{vTmp+r+st}")
    g(f"ds_write_b32 v{vT}, v{vTmp}")
    g("s_waitcnt lgkmcnt(0)")


def kernel(g, NBUF=16, nt=True):
    L = NAME + "_kernel"
    g.raw(f".globl {L}")
    g.raw(".p2align 8")
    g.raw(f".type {L},@function")
    g.raw(f"{L}:")
    NT = " nt" if nt else ""
    assert 64 % NBUF == 0
    sX, sK, sV, sWQ, sWS, sDbg = 16, 20, 24, 28, 32, 80
    sWave, sH, sB, sS, sT0, sT1, sKV, sOff, sSelLo, sSelHi = 36, 37, 38, 39, 40, 41, 42, 43, 44, 45
    sM1, sM0, sWqb, sRec = 46, 48, 50, 51
    sCur, sNext, sNextIdx = 52, 53, 54
    sEx = 56
    pWO, pW1, pB1, pW2, pB2, pOut, pDbg = 64, 68, 70, 72, 74, 76, 78
    XN, QB, ML, CNT, PW, QP = 0, 2560, 3072, 3328, 4096, 8192
    RL = 32768
    vLane, vL32, vHalf, vKV, vT = 1, 2, 3, 4, 5
    vQ = 6
    vPA = 9
    vAcc = 10
    vS = 16
    vMr, vLr = 18, 19
    vP = 20
    vLA, vLB, vLC, vLD = 22, 24, 26, 28
    vT2, vT3 = 30, 31
    vPm = 32
    vPw, vPr = 34, 35
    vPPa, vPPb = 36, 40
    vRing = 44
    NPOOL = max(NBUF, 20)
    nv = 128

    g("s_cmp_ge_u32 s2, 256")
    g("s_cbranch_scc1 L_end")
    stamp(g, 0)
    g("s_load_dwordx2 s[4:5], s[0:1], 0")
    g("s_load_dwordx4 s[8:11], s[0:1], 8")
    g("s_load_dwordx2 s[12:13], s[0:1], 24")
    g("s_load_dwordx2 s[14:15], s[0:1], 96")
    g("s_load_dwordx16 s[64:79], s[0:1], 32")
    g(f"v_and_b32 v{vLane}, 63, v0")
    g(f"v_and_b32 v{vL32}, 31, v0")
    g(f"v_bfe_u32 v{vHalf}, v0, 5, 1")
    g(f"v_lshrrev_b32 v{vT}, 6, v0")
    g(f"v_readfirstlane_b32 s{sWave}, v{vT}")
    g(f"s_and_b32 s{sT0}, s2, 7")
    g(f"s_lshr_b32 s{sT1}, s2, 3")
    g(f"s_lshl_b32 s{sH}, s{sT0}, 2")
    g(f"s_and_b32 s{sT0}, s{sT1}, 3")
    g(f"s_add_u32 s{sH}, s{sH}, s{sT0}")
    g(f"s_lshr_b32 s{sT1}, s{sT1}, 2")
    g(f"s_lshr_b32 s{sB}, s{sT1}, 2")
    g(f"s_and_b32 s{sS}, s{sT1}, 3")
    g(f"s_lshl_b32 s{sRec}, s{sB}, 5")
    g(f"s_add_u32 s{sRec}, s{sRec}, s{sH}")
    g(f"s_lshl_b32 s{sRec}, s{sRec}, 2")
    g(f"s_add_u32 s{sRec}, s{sRec}, s{sS}")
    g(f"s_mul_i32 s{sKV}, s{sRec}, 786432")
    g(f"s_mov_b32 s{sSelLo}, 0x05040100")
    g(f"s_mov_b32 s{sSelHi}, 0x07060302")
    g(f"s_mov_b32 s{sM1}, 0xcccccccc")
    g(f"s_mov_b32 s{sM1+1}, 0xcccccccc")
    g(f"s_mov_b32 s{sM0}, 0xaaaaaaaa")
    g(f"s_mov_b32 s{sM0+1}, 0xaaaaaaaa")
    g(f"s_mul_i32 s{sWqb}, s{sWave}, 491520")
    g(f"s_mul_i32 s{sT0}, s{sH}, 384")
    g(f"s_add_u32 s{sWqb}, s{sWqb}, s{sT0}")
    g(f"s_mul_i32 s{sCur}, s{sWave}, 24576")
    g(f"s_add_u32 s{sCur}, s{sCur}, s{sKV}")
    g(f"v_mul_u32_u24 v{vT2}, 12, v{vL32}")
    g(f"v_mul_u32_u24 v{vKV}, 384, v{vHalf}")
    g(f"v_add_u32 v{vKV}, v{vKV}, v{vT2}")
    vWo = 42
    g(f"v_mul_u32_u24 v{vWo}, 245760, v{vHalf}")
    g(f"v_add_u32 v{vWo}, v{vWo}, v{vT2}")
    g(f"v_lshlrev_b32 v{vT}, 2, v{vLane}")
    g(f"v_mov_b32 v{vT2}, 16")
    g(f"v_mov_b32 v{vT3}, 0")
    g(f"ds_write_b32 v{vT3}, v{vT2} offset:{CNT}")
    g("s_waitcnt lgkmcnt(0)")
    srd(g, sX, 4, 2560)
    srd(g, sWQ, 12, 7864320)
    srd(g, sWS, 14, WS_SIZE)
    g(f"s_mul_i32 s{sT0}, s{sB}, 1280")
    vXd = 36
    for j in range(5):
        g(f"buffer_load_dword v{vXd+j}, v{vT}, s[{sX}:{sX+3}], s{sT0} offen offset:{j*256}")
    g(f"s_cmp_lt_u32 s{sWave}, 5")
    g("s_cbranch_scc0 L_nosent")
    for c in range(4):
        g(f"v_mov_b32 v{vAcc+c}, -1")
    g(f"v_lshlrev_b32 v{vT2}, 2, v0")
    g(f"s_cmp_lt_u32 s{sWave}, 3")
    g("s_cbranch_scc0 L_sent_norec")
    g(f"s_mul_i32 s{sT0}, s{sRec}, 768")
    g(f"buffer_store_dword v{vAcc}, v{vT2}, s[{sWS}:{sWS+3}], s{sT0} offen offset:{WS_PART} sc1")
    g(f"v_mov_b32 v{vT3}, 0")
    g(f"s_lshl_b32 s{sT0}, s{sRec}, 3")
    g(f"s_add_u32 s{sT0}, s{sT0}, {WS_ML}")
    g(f"buffer_store_dwordx2 v[{vAcc}:{vAcc+1}], v{vT3}, s[{sWS}:{sWS+3}], s{sT0} offen sc1")
    g.label("L_sent_norec")
    g("s_cmp_lt_u32 s2, 160")
    g("s_cbranch_scc0 L_sent_nohp")
    g(f"s_cmp_eq_u32 s{sWave}, 0")
    g("s_cbranch_scc0 L_nosent")
    g(f"s_mul_i32 s{sT0}, s2, 3277")
    g(f"s_lshr_b32 s{sT0}, s{sT0}, 16")
    g(f"s_mul_i32 s{sT1}, s{sT0}, 20")
    g(f"s_sub_u32 s{sT1}, s2, s{sT1}")
    g(f"s_mul_i32 s{sT0}, s{sT0}, 5120")
    g(f"s_lshl_b32 s{sT1}, s{sT1}, 7")
    g(f"s_add_u32 s{sT0}, s{sT0}, s{sT1}")
    g(f"s_add_u32 s{sT0}, s{sT0}, {WS_HP}")
    g(f"v_mul_u32_u24 v{vT2}, 2560, v{vHalf}")
    g(f"v_lshlrev_b32 v{vT3}, 2, v{vL32}")
    g(f"v_add_u32 v{vT2}, v{vT2}, v{vT3}")
    g(f"buffer_store_dword v{vAcc}, v{vT2}, s[{sWS}:{sWS+3}], s{sT0} offen sc1")
    g("s_branch L_nosent")
    g.label("L_sent_nohp")
    g("s_cmp_lt_u32 s2, 208")
    g("s_cbranch_scc0 L_nosent")
    g(f"v_lshlrev_b32 v{vT2}, 4, v0")
    g(f"s_sub_u32 s{sT0}, s2, 160")
    g(f"s_mul_i32 s{sT0}, s{sT0}, 5120")
    g(f"s_add_u32 s{sT0}, s{sT0}, {WS_FP}")
    g(f"buffer_store_dwordx4 v[{vAcc}:{vAcc+3}], v{vT2}, s[{sWS}:{sWS+3}], s{sT0} offen sc1")
    g("s_cmp_eq_u32 s2, 160")
    g("s_cbranch_scc0 L_nosent")
    g(f"s_mov_b32 s{sT0}, {WS_HH}")
    g(f"buffer_store_dwordx4 v[{vAcc}:{vAcc+3}], v{vT2}, s[{sWS}:{sWS+3}], s{sT0} offen sc1")
    g.label("L_nosent")
    for j in range(20):
        g(f"s_add_u32 s{sOff}, s{sWqb}, {j*12288}")
        r = vRing + 4 * j
        g(f"buffer_load_dwordx3 v[{r}:{r+2}], v{vWo}, s[{sWQ}:{sWQ+3}], s{sOff} offen")
    srd(g, sK, 8, 201326592)
    srd(g, sV, 10, 201326592)
    srd(g, sDbg, pDbg, 256)

    def kv_load(t, base):
        s = sK if t < 32 else sV
        i = t % 32
        r = vRing + 4 * (t % NBUF)
        g(f"s_add_u32 s{sOff}, s{base}, {i*768}")
        g(f"buffer_load_dwordx3 v[{r}:{r+2}], v{vKV}, s[{s}:{s+3}], s{sOff} offen{NT}")

    g(f"s_waitcnt vmcnt(20)")
    xe = list(range(16, 26))
    for j in range(5):
        g(f"v_lshlrev_b32 v{xe[2*j]}, 16, v{vXd+j}")
        g(f"v_and_b32 v{xe[2*j+1]}, 0xffff0000, v{vXd+j}")
    vMb, vSd = 26, 27
    ln_stats(g, xe, vMb, vSd, 28, 29, 31)
    for r in xe:
        ln_apply(g, r, vMb, vSd, 28, 29)
    g(f"v_lshlrev_b32 v{vT}, 3, v{vLane}")
    for j in range(5):
        g(f"ds_write_b64 v{vT}, v[{xe[2*j]}:{xe[2*j+1]}] offset:{XN + j*512}")
    g(f"v_lshrrev_b32 v{vT}, 5, v0")
    g(f"v_mul_u32_u24 v{vT}, 80, v{vT}")
    g("s_waitcnt lgkmcnt(0)")
    xr = 16
    for j in range(5):
        g(f"ds_read_b128 v[{xr+4*j}:{xr+4*j+3}], v{vT} offset:{XN + j*16}")
    for c in range(6):
        g(f"v_mov_b32 v{vAcc+c}, 0")
    g("s_waitcnt lgkmcnt(0)")
    for j in range(20):
        g(f"s_waitcnt vmcnt({19 - j + min(j, NBUF)})")
        r = vRing + 4 * j
        for c in range(3):
            g(f"v_lshlrev_b32 v{36}, 16, v{r+c}")
            g(f"v_and_b32 v{37}, 0xffff0000, v{r+c}")
            g(f"v_fmac_f32 v{vAcc+2*c}, v{36}, v{xr+j}")
            g(f"v_fmac_f32 v{vAcc+2*c+1}, v{37}, v{xr+j}")
        if j < NBUF:
            kv_load(j, sCur)
    g(f"v_lshrrev_b32 v{vT3}, 5, v0")
    g(f"v_mul_u32_u24 v{vT}, 768, v{vT3}")
    g(f"v_mul_u32_u24 v{vT2}, 24, v{vL32}")
    g(f"v_add_u32 v{vPA}, v{vT}, v{vT2}")
    for c in range(3):
        g(f"ds_write_b64 v{vPA}, v[{vAcc+2*c}:{vAcc+2*c+1}] offset:{QP + c*8}")
    g("s_waitcnt lgkmcnt(0)")
    g("s_barrier")
    g(f"s_cmp_lt_u32 s{sWave}, 3")
    g("s_cbranch_scc0 L_q2_skip")
    g(f"v_lshlrev_b32 v{vT}, 2, v0")
    rr = 10
    for r in range(32):
        g(f"ds_read_b32 v{rr+r}, v{vT} offset:{QP + r*768}")
    g("s_waitcnt lgkmcnt(0)")
    for st in (1, 2, 4, 8, 16):
        for r in range(0, 32, 2 * st):
            g(f"v_add_f32 v{rr+r}, v{rr+r}, v{rr+r+st}")
    g(f"v_cvt_pk_bf16_f32 v{rr}, v{rr}, v{rr}")
    g(f"v_lshlrev_b32 v{vT}, 1, v0")
    g(f"ds_write_b16 v{vT}, v{rr} offset:{QB}")
    g("s_waitcnt lgkmcnt(0)")
    g.label("L_q2_skip")
    g(f"s_cmp_eq_u32 s{sWave}, 15")
    g("s_cbranch_scc0 L_noinit")
    g(f"s_mov_b64 s[{sEx}:{sEx+1}], exec")
    g("s_mov_b64 exec, 1")
    g(f"v_mov_b32 v{vT2}, 1")
    g(f"v_mov_b32 v{vT3}, 0")
    g(f"buffer_atomic_add v{vT2}, v{vT3}, s[{sDbg}:{sDbg+3}], 0 offen sc1")
    g(f"s_mov_b64 exec, s[{sEx}:{sEx+1}]")
    g.label("L_noinit")
    g("s_barrier")
    g(f"v_mul_u32_u24 v{vT}, 12, v{vL32}")
    for c in range(3):
        g(f"ds_read_b32 v{vQ+c}, v{vT} offset:{QB + 4*c}")
    g(f"v_bfrev_b32 v{vT2}, v{vL32}")
    g(f"v_lshrrev_b32 v{vT2}, 26, v{vT2}")
    g(f"v_lshlrev_b32 v{vT3}, 6, v{vHalf}")
    g(f"s_lshl_b32 s{sT0}, s{sWave}, 7")
    g(f"v_add_u32 v{vPr}, s{sT0}, v{vT3}")
    g(f"v_add_u32 v{vPw}, v{vPr}, v{vT2}")
    for c in range(6):
        g(f"v_mov_b32 v{vAcc+c}, 0")
    g(f"v_mov_b32 v{vMr}, 0xff800000")
    g(f"v_mov_b32 v{vLr}, 0")
    g("s_waitcnt lgkmcnt(0)")
    stamp(g, 1)

    g.label("L_loop")
    g(f"s_mov_b64 s[{sEx}:{sEx+1}], exec")
    g("s_mov_b64 exec, 1")
    g(f"v_mov_b32 v{vT2}, 1")
    g(f"v_mov_b32 v{vT3}, 0")
    g(f"ds_add_rtn_u32 v{vS+1}, v{vT3}, v{vT2} offset:{CNT}")
    g(f"s_mov_b64 exec, s[{sEx}:{sEx+1}]")
    for t in range(32):
        i5 = t
        r = vRing + 4 * (t % NBUF)
        P = vP + (t & 1)
        g(f"s_waitcnt vmcnt({NBUF-1})")
        g(f"v_dot2_f32_bf16 v{P}, v{r}, v{vQ}, 0")
        g(f"v_dot2_f32_bf16 v{P}, v{r+1}, v{vQ+1}, v{P}")
        g(f"v_dot2_f32_bf16 v{P}, v{r+2}, v{vQ+2}, v{P}")
        kv_load(t + NBUF, sCur)
        if i5 & 1:
            g(f"v_permlane16_swap_b32 v{vP}, v{vP+1}")
            g(f"v_add_f32 v{vLA+((i5>>1)&1)}, v{vP}, v{vP+1}")
        if (i5 & 3) == 3:
            d = vLB + ((i5 >> 2) & 1)
            g(f"v_add_f32_dpp v{d}, v{vLA}, v{vLA} row_ror:8 row_mask:0xf bank_mask:0x3")
            g(f"v_add_f32_dpp v{d}, v{vLA+1}, v{vLA+1} row_ror:8 row_mask:0xf bank_mask:0xc")
        if (i5 & 7) == 7:
            d = vLC + ((i5 >> 3) & 1)
            g(f"v_add_f32_dpp v{d}, v{vLB}, v{vLB} row_shl:4 row_mask:0xf bank_mask:0x5")
            g(f"v_add_f32_dpp v{d}, v{vLB+1}, v{vLB+1} row_shr:4 row_mask:0xf bank_mask:0xa")
        if (i5 & 15) == 15:
            d = vLD + ((i5 >> 4) & 1)
            g(f"v_add_f32_dpp v{vT2}, v{vLC}, v{vLC} quad_perm:[2,3,0,1] row_mask:0xf bank_mask:0xf")
            g(f"v_add_f32_dpp v{vT3}, v{vLC+1}, v{vLC+1} quad_perm:[2,3,0,1] row_mask:0xf bank_mask:0xf")
            g(f"v_cndmask_b32 v{d}, v{vT2}, v{vT3}, s[{sM1}:{sM1+1}]")
        if i5 == 31:
            g(f"v_add_f32_dpp v{vT2}, v{vLD}, v{vLD} quad_perm:[1,0,3,2] row_mask:0xf bank_mask:0xf")
            g(f"v_add_f32_dpp v{vT3}, v{vLD+1}, v{vLD+1} quad_perm:[1,0,3,2] row_mask:0xf bank_mask:0xf")
            g(f"v_cndmask_b32 v{vS}, v{vT2}, v{vT3}, s[{sM0}:{sM0+1}]")
    bf16r(g, vS, vS)
    g(f"v_mul_f32 v{vS}, {SCALE:#x}, v{vS}")
    bf16r(g, vS, vS)
    vCm, vAl = vLA, vLA + 1
    g(f"v_mov_b32 v{vCm}, v{vS}")
    allreduce(g, "v_max_f32", vCm, vT2)
    g(f"v_max_f32 v{vCm}, v{vCm}, v{vMr}")
    g(f"v_sub_f32 v{vAl}, v{vMr}, v{vCm}")
    g(f"v_mul_f32 v{vAl}, {LOG2E:#x}, v{vAl}")
    g(f"v_exp_f32 v{vAl}, v{vAl}")
    g(f"v_sub_f32 v{vS}, v{vS}, v{vCm}")
    g(f"v_mul_f32 v{vS}, {LOG2E:#x}, v{vS}")
    g(f"v_exp_f32 v{vS}, v{vS}")
    g(f"v_mov_b32 v{vMr}, v{vCm}")
    g(f"v_fma_f32 v{vLr}, v{vLr}, v{vAl}, v{vS}")
    g(f"v_cvt_pk_bf16_f32 v{vT}, v{vS}, v{vS}")
    g(f"ds_write_b16 v{vPw}, v{vT} offset:{PW}")
    for c in range(6):
        g(f"v_mul_f32 v{vAcc+c}, v{vAcc+c}, v{vAl}")
    g("s_waitcnt lgkmcnt(0)")
    g(f"ds_read_b128 v[{vPPa}:{vPPa+3}], v{vPr} offset:{PW}")
    g(f"ds_read_b128 v[{vPPb}:{vPPb+3}], v{vPr} offset:{PW+16}")
    g(f"v_readfirstlane_b32 s{sNextIdx}, v{vS+1}")
    g(f"s_mul_i32 s{sNext}, s{sNextIdx}, 24576")
    g(f"s_add_u32 s{sNext}, s{sNext}, s{sKV}")
    g(f"s_cmp_lt_u32 s{sNextIdx}, 32")
    g(f"s_cselect_b32 s{sNext}, s{sNext}, 0x80000000")
    for j in range(16):
        t = 32 + 2 * j
        q4 = j // 4
        PP = (vPPa if (q4 & 1) == 0 else vPPb) + (j % 4)
        if j % 4 == 0:
            g("s_waitcnt lgkmcnt(1)" if q4 + 1 < 4 else "s_waitcnt lgkmcnt(0)")
        ra = vRing + 4 * (t % NBUF)
        rb = vRing + 4 * ((t + 1) % NBUF)
        g(f"s_waitcnt vmcnt({NBUF-2})")
        for c in range(3):
            g(f"v_perm_b32 v{vPm}, v{rb+c}, v{ra+c}, s{sSelLo}")
            g(f"v_perm_b32 v{vPm+1}, v{rb+c}, v{ra+c}, s{sSelHi}")
            g(f"v_dot2_f32_bf16 v{vAcc+2*c}, v{vPm}, v{PP}, v{vAcc+2*c}")
            g(f"v_dot2_f32_bf16 v{vAcc+2*c+1}, v{vPm+1}, v{PP}, v{vAcc+2*c+1}")
        for tt in (t + NBUF, t + 1 + NBUF):
            if tt < 64:
                kv_load(tt, sCur)
            else:
                kv_load(tt - 64, sNext)
        if j % 4 == 3 and q4 + 2 < 4:
            d = vPPa if (q4 & 1) == 0 else vPPb
            g(f"ds_read_b128 v[{d}:{d+3}], v{vPr} offset:{PW + (q4+2)*16}")
    g(f"s_mov_b32 s{sCur}, s{sNext}")
    g(f"s_cmp_lt_u32 s{sNextIdx}, 32")
    g("s_cbranch_scc1 L_loop")
    allreduce(g, "v_add_f32", vLr, vT2)
    for c in range(3):
        g(f"ds_write_b64 v{vPA}, v[{vAcc+2*c}:{vAcc+2*c+1}] offset:{QP + c*8}")
    g(f"s_lshl_b32 s{sT0}, s{sWave}, 3")
    g(f"v_mov_b32 v{vT}, s{sT0}")
    g(f"ds_write_b64 v{vT}, v[{vMr}:{vMr+1}] offset:{ML}")
    g("s_waitcnt vmcnt(0) lgkmcnt(0)")
    g("s_barrier")
    stamp(g, 2)
    g(f"s_cmp_lt_u32 s{sWave}, 3")
    g("s_cbranch_scc0 L_roles")
    rm = vRing
    ro = vRing + 32
    g(f"v_mov_b32 v{vT}, 0")
    for w in range(0, 16, 2):
        g(f"ds_read_b128 v[{rm+2*w}:{rm+2*w+3}], v{vT} offset:{ML + 8*w}")
    g(f"v_lshlrev_b32 v{vT}, 2, v0")
    for r in range(32):
        g(f"ds_read_b32 v{ro+r}, v{vT} offset:{QP + r*768}")
    g("s_waitcnt lgkmcnt(0)")
    vMM, vLL, vO, vF = 16, 17, 18, 19
    g(f"v_max_f32 v{vMM}, v{rm}, v{rm+2}")
    for w in range(2, 16):
        g(f"v_max_f32 v{vMM}, v{vMM}, v{rm+2*w}")
    g(f"v_mov_b32 v{vLL}, 0")
    g(f"v_mov_b32 v{vO}, 0")
    for w in range(16):
        g(f"v_sub_f32 v{vF}, v{rm+2*w}, v{vMM}")
        g(f"v_mul_f32 v{vF}, {LOG2E:#x}, v{vF}")
        g(f"v_exp_f32 v{vF}, v{vF}")
        g(f"v_add_f32 v{vT2}, v{ro+2*w}, v{ro+2*w+1}")
        g(f"v_fmac_f32 v{vLL}, v{vF}, v{rm+2*w+1}")
        g(f"v_fmac_f32 v{vO}, v{vF}, v{vT2}")
    g(f"s_mul_i32 s{sT0}, s{sRec}, 768")
    g(f"buffer_store_dword v{vO}, v{vT}, s[{sWS}:{sWS+3}], s{sT0} offen offset:{WS_PART} sc1")
    g(f"v_mov_b32 v{vT}, 0")
    g(f"s_lshl_b32 s{sT0}, s{sRec}, 3")
    g(f"s_add_u32 s{sT0}, s{sT0}, {WS_ML}")
    g(f"buffer_store_dwordx2 v[{vMM}:{vMM+1}], v{vT}, s[{sWS}:{sWS+3}], s{sT0} offen sc1")
    stamp(g, 3)
    if STAMPS:
        g(f"v_mov_b32 v100, s{SB}")
        g(f"v_mov_b32 v101, s{SB+6}")
        g("s_lshl_b32 s62, s2, 3")
        g("s_add_u32 s62, s62, 0xA0000")
        g("v_mov_b32 v102, 0")
        g(f"buffer_store_dwordx2 v[100:101], v102, s[{sWS}:{sWS+3}], s62 offen")

    g.label("L_roles")
    vT, vT2, vT3 = 2, 3, 4
    g("s_cmp_ge_u32 s2, 228")
    g("s_cbranch_scc1 L_end")
    g("s_cmp_ge_u32 s2, 208")
    g("s_cbranch_scc1 L_fin")
    g("s_cmp_ge_u32 s2, 160")
    g("s_cbranch_scc1 L_ffn")
    sWO = 16
    sRb, sCb = 24, 25
    OC, RED, RED2 = RL, RL + 8192, RL + 8192 + 65536
    vWoOff, vOo, vMo, vB = 5, 6, 7, 40
    vAcc = 8
    vML = 24
    vM, vF, vDen, vR = 32, 33, 34, 35
    vN = 36
    vO = 44
    vW = 60
    vOv = 72
    vTmp = 80
    g(f"s_mul_i32 s{sRb}, s2, 3277")
    g(f"s_lshr_b32 s{sRb}, s{sRb}, 16")
    g(f"s_mul_i32 s{sT0}, s{sRb}, 20")
    g(f"s_sub_u32 s{sCb}, s2, s{sT0}")
    srd(g, sWO, pWO, 7864320)
    g(f"v_lshrrev_b32 v{vT}, 2, v{vLane}")
    g(f"v_mul_u32_u24 v{vWoOff}, 1280, v{vT}")
    g(f"v_and_b32 v{vT2}, 3, v{vLane}")
    g(f"v_lshlrev_b32 v{vT2}, 4, v{vT2}")
    g(f"v_add_u32 v{vWoOff}, v{vWoOff}, v{vT2}")
    g(f"s_mul_i32 s{sT0}, s{sRb}, {768*1280}")
    g(f"s_mul_i32 s{sT1}, s{sWave}, {48*1280}")
    g(f"s_add_u32 s{sT0}, s{sT0}, s{sT1}")
    g(f"s_lshl_b32 s{sT1}, s{sCb}, 6")
    g(f"s_add_u32 s{sT0}, s{sT0}, s{sT1}")
    for i in range(3):
        g(f"s_add_u32 s{sOff}, s{sT0}, {i*16*1280}")
        g(f"buffer_load_dwordx4 v[{vW+4*i}:{vW+4*i+3}], v{vWoOff}, s[{sWO}:{sWO+3}], s{sOff} offen")
    for c in range(16):
        g(f"v_mov_b32 v{vAcc+c}, 0")
    g(f"s_cmp_eq_u32 s{sWave}, 0")
    g("s_cbranch_scc0 L_wo_nolight")
    wait_init(g, "L_wo_init", sDbg, vM, sT0)
    g(f"v_lshrrev_b32 v{vT}, 5, v{vLane}")
    g(f"v_lshlrev_b32 v{vT}, 10, v{vT}")
    g(f"v_and_b32 v{vT2}, 31, v{vLane}")
    g(f"v_lshlrev_b32 v{vT2}, 2, v{vT2}")
    g(f"v_add_u32 v{vT2}, v{vT}, v{vT2}")
    g(f"s_lshl_b32 s{sT1}, s{sRb}, 7")
    g(f"s_add_u32 s{sT1}, s{sT1}, {WS_ML}")
    light_poll(g, "L_wo_light", [(vM, vT2, sWS, f"s{sT1}")], vT)
    g.label("L_wo_nolight")
    g("s_barrier")
    g(f"s_cmp_lt_u32 s{sWave}, 6")
    g("s_cbranch_scc0 L_wo_nocomb")
    g(f"v_cmp_le_u32 vcc, 192, v0")
    g(f"v_cndmask_b32 v{vB}, 0, 1, vcc")
    g(f"v_mul_u32_u24 v{vT}, 192, v{vB}")
    g(f"v_sub_u32 v{vT}, v0, v{vT}")
    g(f"v_mul_u32_u24 v{vT2}, 1366, v{vT}")
    g(f"v_lshrrev_b32 v{vT2}, 16, v{vT2}")
    g(f"v_mul_u32_u24 v{vT3}, 48, v{vT2}")
    g(f"v_sub_u32 v{vT3}, v{vT}, v{vT3}")
    g(f"v_lshlrev_b32 v{vB}, 5, v{vB}")
    g(f"v_add_u32 v{vT2}, v{vT2}, v{vB}")
    g(f"v_lshlrev_b32 v{vMo}, 5, v{vT2}")
    g(f"v_mul_u32_u24 v{vOo}, 3072, v{vT2}")
    g(f"v_lshlrev_b32 v{vT3}, 4, v{vT3}")
    g(f"v_add_u32 v{vOo}, v{vOo}, v{vT3}")
    g(f"s_mul_i32 s{sT0}, s{sRb}, {4*3072}")
    g(f"s_lshl_b32 s{sT1}, s{sRb}, 7")
    g(f"s_add_u32 s{sT1}, s{sT1}, {WS_ML}")

    def issue_rec():
        for sp in range(4):
            g(f"buffer_load_dwordx4 v[{vO+4*sp}:{vO+4*sp+3}], v{vOo}, s[{sWS}:{sWS+3}], s{sT0} offen offset:{WS_PART + sp*768} sc1")
        for q in range(2):
            g(f"buffer_load_dwordx4 v[{vML+4*q}:{vML+4*q+3}], v{vMo}, s[{sWS}:{sWS+3}], s{sT1} offen offset:{q*16} sc1")
    poll(g, "L_wo_poll", issue_rec, list(range(vO, vO + 16)) + list(range(vML, vML + 8)), vT)
    stamp(g, 4)
    g(f"v_max_f32 v{vM}, v{vML}, v{vML+2}")
    g(f"v_max3_f32 v{vM}, v{vM}, v{vML+4}, v{vML+6}")
    for sp in range(4):
        g(f"v_sub_f32 v{vF}, v{vML+2*sp}, v{vM}")
        g(f"v_mul_f32 v{vF}, {LOG2E:#x}, v{vF}")
        g(f"v_exp_f32 v{vF}, v{vF}")
        if sp == 0:
            g(f"v_mul_f32 v{vDen}, v{vF}, v{vML+1}")
            for c in range(4):
                g(f"v_mul_f32 v{vN+c}, v{vF}, v{vO+c}")
        else:
            g(f"v_fmac_f32 v{vDen}, v{vF}, v{vML+2*sp+1}")
            for c in range(4):
                g(f"v_fmac_f32 v{vN+c}, v{vF}, v{vO+4*sp+c}")
    g(f"v_rcp_f32 v{vR}, v{vDen}")
    for c in range(4):
        g(f"v_mul_f32 v{vO+c}, v{vN+c}, v{vR}")
        g(f"v_fma_f32 v{vN+c}, -v{vO+c}, v{vDen}, v{vN+c}")
        g(f"v_fma_f32 v{vO+c}, v{vN+c}, v{vR}, v{vO+c}")
    bf16r2(g, vO, vO + 1, vT)
    bf16r2(g, vO + 2, vO + 3, vT)
    g(f"v_lshlrev_b32 v{vT}, 4, v0")
    g(f"ds_write_b128 v{vT}, v[{vO}:{vO+3}] offset:{OC}")
    g.label("L_wo_nocomb")
    g(f"v_lshrrev_b32 v{vT}, 2, v{vLane}")
    g(f"s_mul_i32 s{sT0}, s{sWave}, 48")
    g(f"v_add_u32 v{vT}, s{sT0}, v{vT}")
    g(f"v_lshlrev_b32 v{vT}, 2, v{vT}")
    g("s_waitcnt lgkmcnt(0)")
    g("s_barrier")
    for i in range(3):
        g(f"ds_read_b32 v{vOv+2*i}, v{vT} offset:{OC + i*64}")
        g(f"ds_read_b32 v{vOv+2*i+1}, v{vT} offset:{OC + 3072 + i*64}")
    g("s_waitcnt vmcnt(0) lgkmcnt(0)")
    for i in range(3):
        gemv_step(g, vW + 4 * i, vAcc, vOv + 2 * i, vOv + 2 * i + 1, vT2, vT3)
    wave_reduce_64(g, vAcc, vLane, sWave, RED, RED2, vT, vT2, vT3, vTmp, sT0)
    g("s_barrier")
    g(f"s_cmp_eq_u32 s{sWave}, 0")
    g("s_cbranch_scc0 L_end")
    g(f"v_lshlrev_b32 v{vT}, 2, v{vLane}")
    g(f"v_add_u32 v{vT}, {RED2}, v{vT}")
    for w in range(16):
        g(f"ds_read_b32 v{vTmp+w}, v{vT} offset:{w*256}")
    g(f"v_lshrrev_b32 v{vT}, 5, v{vLane}")
    g(f"v_mul_u32_u24 v{vT}, 2560, v{vT}")
    g(f"v_and_b32 v{vT2}, 31, v{vLane}")
    g(f"v_lshlrev_b32 v{vT2}, 2, v{vT2}")
    g(f"v_add_u32 v{vT}, v{vT}, v{vT2}")
    g(f"s_mul_i32 s{sT0}, s{sRb}, 5120")
    g(f"s_lshl_b32 s{sT1}, s{sCb}, 7")
    g(f"s_add_u32 s{sT0}, s{sT0}, s{sT1}")
    g(f"s_add_u32 s{sT0}, s{sT0}, {WS_HP}")
    g("s_waitcnt lgkmcnt(0)")
    for st in (1, 2, 4, 8):
        for r in range(0, 16, 2 * st):
            g(f"v_add_f32 v{vTmp+r}, v{vTmp+r}, v{vTmp+r+st}")
    g(f"buffer_store_dword v{vTmp}, v{vT}, s[{sWS}:{sWS+3}], s{sT0} offen sc1")
    stamp(g, 7)
    if STAMPS:
        g(f"s_cmp_eq_u32 s2, {STAMP_WG}")
        g("s_cbranch_scc0 L_end")
        stamp_flush(g, sDbg, 32)
    g("s_endpgm")

    g.label("L_ffn")
    g(f"s_cmp_ge_u32 s{sWave}, 5")
    g("s_cbranch_scc1 L_end")
    sX2, sW1, sB1, sW2 = 16, 20, 24, 28
    sFb = 60
    sMk = 62
    SUM, SUM2, HN, RED, RED2, H1, R3 = [RL + x for x in (0, 64, 5120, 10240, 30720, 32000, 32768)]
    vRG, vCC, vHa = 5, 6, 7
    vS = 8
    vMb, vSd, vBt, vSw, vSr, vHNa = 16, 17, 18, 19, 20, 21
    vW1 = 24
    vW2 = 56
    vHP = 88
    vAcc = 88
    vOv = 104
    vX = 120
    vB1 = 122
    vH = 124
    g(f"s_sub_u32 s{sFb}, s2, 160")
    g(f"v_lshlrev_b32 v{vHa}, 4, v0")
    srd(g, sX2, 4, 2560)
    srd(g, sW1, pW1, 1966080)
    srd(g, sB1, pB1, 3072)
    srd(g, sW2, pW2, 1966080)
    g(f"v_lshlrev_b32 v{vT2}, 3, v0")
    g(f"buffer_load_dwordx2 v[{vX}:{vX+1}], v{vT2}, s[{sX2}:{sX2+3}], 0 offen")
    g(f"v_and_b32 v{vT2}, 31, v{vLane}")
    g(f"v_lshlrev_b32 v{vT2}, 1, v{vT2}")
    g(f"s_lshl_b32 s{sT0}, s{sFb}, 6")
    g(f"buffer_load_ushort v{vB1}, v{vT2}, s[{sB1}:{sB1+3}], s{sT0} offen")
    g(f"v_lshrrev_b32 v{vT}, 2, v{vLane}")
    g(f"v_mul_u32_u24 v{vT}, 3072, v{vT}")
    g(f"v_and_b32 v{vT2}, 3, v{vLane}")
    g(f"v_lshlrev_b32 v{vT2}, 4, v{vT2}")
    g(f"v_add_u32 v{vT}, v{vT}, v{vT2}")
    g(f"s_mul_i32 s{sT1}, s{sWave}, {128*3072}")
    g(f"s_add_u32 s{sT1}, s{sT1}, s{sT0}")
    for i in range(8):
        g(f"s_add_u32 s{sOff}, s{sT1}, {i*16*3072}")
        g(f"buffer_load_dwordx4 v[{vW1+4*i}:{vW1+4*i+3}], v{vT}, s[{sW1}:{sW1+3}], s{sOff} offen")
    g(f"v_mul_u32_u24 v{vRG}, 52429, v0")
    g(f"v_lshrrev_b32 v{vRG}, 22, v{vRG}")
    g(f"v_mul_u32_u24 v{vT}, 80, v{vRG}")
    g(f"v_sub_u32 v{vCC}, v0, v{vT}")
    g(f"v_mul_u32_u24 v{vT}, {8*1280}, v{vRG}")
    g(f"v_lshlrev_b32 v{vT2}, 4, v{vCC}")
    g(f"v_add_u32 v{vT}, v{vT}, v{vT2}")
    g(f"s_mul_i32 s{sT1}, s{sFb}, {32*1280}")
    for i in range(8):
        g(f"s_add_u32 s{sOff}, s{sT1}, {i*1280}")
        g(f"buffer_load_dwordx4 v[{vW2+4*i}:{vW2+4*i+3}], v{vT}, s[{sW2}:{sW2+3}], s{sOff} offen")
    g(f"v_cmp_le_u32 vcc, 160, v0")
    g(f"s_mov_b64 s[{sMk}:{sMk+1}], vcc")
    g(f"v_cndmask_b32 v{vBt}, 0, 1, s[{sMk}:{sMk+1}]")
    g(f"v_lshrrev_b32 v{vT}, 5, v0")
    g(f"v_mul_u32_u24 v{vT2}, 3, v{vBt}")
    g(f"v_add_u32 v{vT}, v{vT}, v{vT2}")
    g(f"v_lshlrev_b32 v{vSw}, 2, v{vT}")
    g(f"v_lshlrev_b32 v{vSr}, 5, v{vBt}")
    g(f"v_mul_u32_u24 v{vT3}, 160, v{vBt}")
    g(f"v_sub_u32 v{vT3}, v0, v{vT3}")
    g(f"v_lshlrev_b32 v{vT3}, 5, v{vT3}")
    g(f"v_lshlrev_b32 v{vT2}, 2, v{vBt}")
    g(f"v_add_u32 v{vHNa}, v{vT3}, v{vT2}")
    g(f"s_cmp_eq_u32 s{sWave}, 0")
    g("s_cbranch_scc0 L_ffn_nolight")
    wait_init(g, "L_ffn_init", sDbg, vS, sT0)
    la = [vS + 3, vS + 4, vS + 5]
    for k in range(3):
        g(f"v_add_u32 v{vT}, {k*64}, v{vLane}")
        g(f"v_min_u32 v{vT}, 159, v{vT}")
        g(f"v_mul_u32_u24 v{vT2}, 3277, v{vT}")
        g(f"v_lshrrev_b32 v{vT2}, 16, v{vT2}")
        g(f"v_mul_u32_u24 v{vT3}, 20, v{vT2}")
        g(f"v_sub_u32 v{vT3}, v{vT}, v{vT3}")
        g(f"v_mul_u32_u24 v{vT2}, 5120, v{vT2}")
        g(f"v_lshlrev_b32 v{vT3}, 7, v{vT3}")
        g(f"v_add_u32 v{la[k]}, v{vT2}, v{vT3}")
    g(f"s_mov_b32 s{sT1}, {WS_HP}")
    light_poll(g, "L_ffn_light", [(vS + k, la[k], sWS, f"s{sT1}") for k in range(3)], vT)
    g.label("L_ffn_nolight")
    g("s_barrier")

    def issue_hp():
        for rb in range(8):
            g(f"s_mov_b32 s{sOff}, {WS_HP + rb*5120}")
            g(f"buffer_load_dwordx4 v[{vHP+4*rb}:{vHP+4*rb+3}], v{vHa}, s[{sWS}:{sWS+3}], s{sOff} offen sc1")
    poll(g, "L_ffn_poll", issue_hp, range(vHP, vHP + 32), vT)
    stamp(g, 4)
    for c in range(4):
        g(f"v_add_f32 v{vH+c}, v{vHP+c}, v{vHP+4+c}")
        g(f"v_add_f32 v{vT}, v{vHP+8+c}, v{vHP+12+c}")
        g(f"v_add_f32 v{vT2}, v{vHP+16+c}, v{vHP+20+c}")
        g(f"v_add_f32 v{vT3}, v{vHP+24+c}, v{vHP+28+c}")
        g(f"v_add_f32 v{vH+c}, v{vH+c}, v{vT}")
        g(f"v_add_f32 v{vT2}, v{vT2}, v{vT3}")
        g(f"v_add_f32 v{vH+c}, v{vH+c}, v{vT2}")
    bf16r2(g, vH, vH + 1, vT)
    bf16r2(g, vH + 2, vH + 3, vT)
    g(f"v_lshlrev_b32 v{vT}, 16, v{vX}")
    g(f"v_add_f32 v{vH}, v{vH}, v{vT}")
    g(f"v_and_b32 v{vT}, 0xffff0000, v{vX}")
    g(f"v_add_f32 v{vH+1}, v{vH+1}, v{vT}")
    g(f"v_lshlrev_b32 v{vT}, 16, v{vX+1}")
    g(f"v_add_f32 v{vH+2}, v{vH+2}, v{vT}")
    g(f"v_and_b32 v{vT}, 0xffff0000, v{vX+1}")
    g(f"v_add_f32 v{vH+3}, v{vH+3}, v{vT}")
    bf16r2(g, vH, vH + 1, vT)
    bf16r2(g, vH + 2, vH + 3, vT)
    g(f"s_cmp_eq_u32 s{sFb}, 0")
    g("s_cbranch_scc0 L_ffn_nohh")
    g(f"s_mov_b32 s{sOff}, {WS_HH}")
    g(f"buffer_store_dwordx4 v[{vH}:{vH+3}], v{vHa}, s[{sWS}:{sWS+3}], s{sOff} offen sc1")
    g.label("L_ffn_nohh")
    g(f"v_add_f32 v{vT}, v{vH}, v{vH+1}")
    g(f"v_add_f32 v{vT2}, v{vH+2}, v{vH+3}")
    g(f"v_add_f32 v{vT}, v{vT}, v{vT2}")
    half_reduce(g, vT, vT2)
    g(f"ds_write_b32 v{vSw}, v{vT} offset:{SUM}")
    g("s_waitcnt lgkmcnt(0)")
    g("s_barrier")
    g(f"ds_read_b128 v[{vS}:{vS+3}], v{vSr} offset:{SUM}")
    g(f"ds_read_b32 v{vS+4}, v{vSr} offset:{SUM+16}")
    g("s_waitcnt lgkmcnt(0)")
    g(f"v_add_f32 v{vS}, v{vS}, v{vS+1}")
    g(f"v_add_f32 v{vS+2}, v{vS+2}, v{vS+3}")
    g(f"v_add_f32 v{vS}, v{vS}, v{vS+4}")
    g(f"v_add_f32 v{vS}, v{vS}, v{vS+2}")
    g(f"v_mul_f32 v{vS+5}, {INV640:#x}, v{vS}")
    g(f"v_sub_f32 v{vT2}, v{vH}, v{vS+5}")
    g(f"v_mul_f32 v{vT}, v{vT2}, v{vT2}")
    for c in range(1, 4):
        g(f"v_sub_f32 v{vT2}, v{vH+c}, v{vS+5}")
        g(f"v_fmac_f32 v{vT}, v{vT2}, v{vT2}")
    half_reduce(g, vT, vT2)
    g(f"ds_write_b32 v{vSw}, v{vT} offset:{SUM2}")
    bf16r(g, vMb, vS + 5)
    g("s_waitcnt lgkmcnt(0)")
    g("s_barrier")
    g(f"ds_read_b128 v[{vS}:{vS+3}], v{vSr} offset:{SUM2}")
    g(f"ds_read_b32 v{vS+4}, v{vSr} offset:{SUM2+16}")
    for c in range(4):
        g(f"v_sub_f32 v{vH+c}, v{vH+c}, v{vMb}")
    bf16r2(g, vH, vH + 1, vT)
    bf16r2(g, vH + 2, vH + 3, vT)
    g("s_waitcnt lgkmcnt(0)")
    g(f"v_add_f32 v{vS}, v{vS}, v{vS+1}")
    g(f"v_add_f32 v{vS+2}, v{vS+2}, v{vS+3}")
    g(f"v_add_f32 v{vS}, v{vS}, v{vS+4}")
    g(f"v_add_f32 v{vS}, v{vS}, v{vS+2}")
    g(f"v_mul_f32 v{vS}, {INV640:#x}, v{vS}")
    bf16r(g, vS, vS)
    g(f"v_add_f32 v{vS}, {EPS:#x}, v{vS}")
    bf16r(g, vS, vS)
    g(f"v_sqrt_f32 v{vS}, v{vS}")
    bf16r(g, vSd, vS)
    g(f"v_rcp_f32 v{vS+1}, v{vSd}")
    for c in range(4):
        g(f"v_mul_f32 v{vS+2}, v{vH+c}, v{vS+1}")
        g(f"v_fma_f32 v{vH+c}, -v{vS+2}, v{vSd}, v{vH+c}")
        g(f"v_fma_f32 v{vH+c}, v{vH+c}, v{vS+1}, v{vS+2}")
    bf16r2(g, vH, vH + 1, vT)
    bf16r2(g, vH + 2, vH + 3, vT)
    for c in range(4):
        g(f"ds_write_b32 v{vHNa}, v{vH+c} offset:{HN + c*8}")
    g(f"v_lshrrev_b32 v{vT}, 2, v{vLane}")
    g(f"s_lshl_b32 s{sT0}, s{sWave}, 7")
    g(f"v_add_u32 v{vT}, s{sT0}, v{vT}")
    g(f"v_lshlrev_b32 v{vT}, 3, v{vT}")
    for c in range(16):
        g(f"v_mov_b32 v{vAcc+c}, 0")
    g("s_waitcnt lgkmcnt(0)")
    g("s_barrier")
    stamp(g, 5)
    for i in range(8):
        g(f"ds_read_b64 v[{vOv+2*i}:{vOv+2*i+1}], v{vT} offset:{HN + i*128}")
    for i in range(8):
        g(f"s_waitcnt lgkmcnt({7-i})")
        gemv_step(g, vW1 + 4 * i, vAcc, vOv + 2 * i, vOv + 2 * i + 1, vT2, vT3)
    wave_reduce_64(g, vAcc, vLane, sWave, RED, RED2, vT, vT2, vT3, vW1, sT0)
    g("s_barrier")
    g(f"s_cmp_eq_u32 s{sWave}, 0")
    g("s_cbranch_scc0 L_ffn_h1_skip")
    g(f"v_lshlrev_b32 v{vT}, 2, v{vLane}")
    for w in range(5):
        g(f"ds_read_b32 v{vW1+w}, v{vT} offset:{RED2 + w*256}")
    g(f"v_lshlrev_b32 v{vB1}, 16, v{vB1}")
    g(f"v_and_b32 v{vT}, 31, v{vLane}")
    g(f"v_lshlrev_b32 v{vT}, 3, v{vT}")
    g(f"v_lshrrev_b32 v{vT2}, 5, v{vLane}")
    g(f"v_lshlrev_b32 v{vT2}, 2, v{vT2}")
    g(f"v_add_u32 v{vT}, v{vT}, v{vT2}")
    g("s_waitcnt lgkmcnt(0)")
    g(f"v_add_f32 v{vW1}, v{vW1}, v{vW1+1}")
    g(f"v_add_f32 v{vW1+2}, v{vW1+2}, v{vW1+3}")
    g(f"v_add_f32 v{vW1}, v{vW1}, v{vW1+4}")
    g(f"v_add_f32 v{vW1}, v{vW1}, v{vW1+2}")
    bf16r(g, vW1, vW1)
    g(f"v_add_f32 v{vW1}, v{vW1}, v{vB1}")
    bf16r(g, vW1, vW1)
    g(f"v_max_f32 v{vW1}, 0, v{vW1}")
    g(f"v_mul_f32 v{vW1}, v{vW1}, v{vW1}")
    bf16r(g, vW1, vW1)
    g(f"ds_write_b32 v{vT}, v{vW1} offset:{H1}")
    g("s_waitcnt lgkmcnt(0)")
    g.label("L_ffn_h1_skip")
    g(f"v_lshlrev_b32 v{vT}, 6, v{vRG}")
    for c in range(16):
        g(f"v_mov_b32 v{vAcc+c}, 0")
    g("s_barrier")
    stamp(g, 6)
    for i in range(0, 8, 2):
        g(f"ds_read_b128 v[{vOv+2*i}:{vOv+2*i+3}], v{vT} offset:{H1 + i*8}")
    g("s_waitcnt lgkmcnt(0)")
    for i in range(8):
        gemv_step(g, vW2 + 4 * i, vAcc, vOv + 2 * i, vOv + 2 * i + 1, vT2, vT3)
    g(f"v_mul_u32_u24 v{vT}, 5120, v{vRG}")
    g(f"v_lshlrev_b32 v{vT2}, 5, v{vCC}")
    g(f"v_add_u32 v{vT}, v{vT}, v{vT2}")
    g(f"v_add_u32 v{vT}, {R3}, v{vT}")
    for b in range(2):
        for q in range(2):
            r = vAcc + 8 * b + 4 * q
            g(f"ds_write_b128 v{vT}, v[{r}:{r+3}] offset:{b*2560 + q*16}")
    g(f"v_add_u32 v{vT}, {R3}, v{vHa}")
    g("s_waitcnt lgkmcnt(0)")
    g("s_barrier")
    for rg in range(4):
        g(f"ds_read_b128 v[{vW1+4*rg}:{vW1+4*rg+3}], v{vT} offset:{rg*5120}")
    g(f"s_mul_i32 s{sT0}, s{sFb}, 5120")
    g(f"s_add_u32 s{sT0}, s{sT0}, {WS_FP}")
    g("s_waitcnt lgkmcnt(0)")
    for c in range(4):
        g(f"v_add_f32 v{vW1+c}, v{vW1+c}, v{vW1+4+c}")
        g(f"v_add_f32 v{vW1+8+c}, v{vW1+8+c}, v{vW1+12+c}")
        g(f"v_add_f32 v{vW1+c}, v{vW1+c}, v{vW1+8+c}")
    g(f"buffer_store_dwordx4 v[{vW1}:{vW1+3}], v{vHa}, s[{sWS}:{sWS+3}], s{sT0} offen sc1")
    stamp(g, 7)
    if STAMPS:
        g(f"s_cmp_eq_u32 s2, 160")
        g("s_cbranch_scc0 L_end")
        g(f"s_cmp_eq_u32 s{sWave}, 0")
        g("s_cbranch_scc0 L_end")
        stamp_flush(g, sDbg, 64)
    g("s_endpgm")

    g.label("L_fin")
    g(f"s_cmp_ge_u32 s{sWave}, 6")
    g("s_cbranch_scc1 L_end")
    sB2, sOut = 16, 20
    sFi = 28
    FL = RL
    vE, vB2 = 5, 7
    vP = 8
    g(f"s_sub_u32 s{sFi}, s2, 208")
    g(f"s_lshl_b32 s{sT0}, s{sFi}, 6")
    g(f"v_add_u32 v{vE}, s{sT0}, v{vLane}")
    g(f"v_lshlrev_b32 v{vT3}, 2, v{vE}")
    srd(g, sB2, pB2, 1280)
    srd(g, sOut, pOut, 2560)
    g(f"s_cmp_ge_u32 s{sFi}, 10")
    g(f"s_cselect_b32 s{sT0}, 640, 0")
    g(f"v_subrev_u32 v{vT}, s{sT0}, v{vE}")
    g(f"v_lshlrev_b32 v{vT}, 1, v{vT}")
    g(f"buffer_load_ushort v{vB2}, v{vT}, s[{sB2}:{sB2+3}], 0 offen")
    g(f"s_cmp_eq_u32 s{sWave}, 0")
    g("s_cbranch_scc0 L_fin_nolight")
    wait_init(g, "L_fin_init", sDbg, 20, sT0)
    g(f"v_min_u32 v{vT}, 47, v{vLane}")
    g(f"v_mul_u32_u24 v{vT2}, 5120, v{vT}")
    g(f"s_lshl_b32 s{sT1}, s{sFi}, 8")
    g(f"s_add_u32 s{sT1}, s{sT1}, {WS_FP}")
    light_poll(g, "L_fin_light", [(20, vT2, sWS, f"s{sT1}")], vT)
    g.label("L_fin_nolight")
    g("s_barrier")
    g(f"s_mul_i32 s{sT1}, s{sWave}, {8*5120}")
    g(f"s_add_u32 s{sT1}, s{sT1}, {WS_FP}")

    def issue_fp():
        for j in range(8):
            g(f"s_add_u32 s{sOff}, s{sT1}, {j*5120}")
            g(f"buffer_load_dword v{vP+j}, v{vT3}, s[{sWS}:{sWS+3}], s{sOff} offen sc1")
        g(f"s_mov_b32 s{sOff}, {WS_HH}")
        g(f"buffer_load_dword v{vP+8}, v{vT3}, s[{sWS}:{sWS+3}], s{sOff} offen sc1")
    poll(g, "L_fin_poll", issue_fp, range(vP, vP + 9), vT)
    stamp(g, 4)
    g(f"v_add_f32 v{vP}, v{vP}, v{vP+1}")
    g(f"v_add_f32 v{vP+2}, v{vP+2}, v{vP+3}")
    g(f"v_add_f32 v{vP+4}, v{vP+4}, v{vP+5}")
    g(f"v_add_f32 v{vP+6}, v{vP+6}, v{vP+7}")
    g(f"v_add_f32 v{vP}, v{vP}, v{vP+2}")
    g(f"v_add_f32 v{vP+4}, v{vP+4}, v{vP+6}")
    g(f"v_add_f32 v{vP}, v{vP}, v{vP+4}")
    g(f"v_lshlrev_b32 v{vT}, 2, v0")
    g(f"ds_write_b32 v{vT}, v{vP} offset:{FL}")
    g("s_waitcnt lgkmcnt(0)")
    g("s_barrier")
    g(f"s_cmp_eq_u32 s{sWave}, 0")
    g("s_cbranch_scc0 L_end")
    for w in range(1, 6):
        g(f"ds_read_b32 v{vP+w}, v{vT} offset:{FL + w*256}")
    g(f"v_lshlrev_b32 v{vB2}, 16, v{vB2}")
    g("s_waitcnt lgkmcnt(0)")
    g(f"v_add_f32 v{vP}, v{vP}, v{vP+1}")
    g(f"v_add_f32 v{vP+2}, v{vP+2}, v{vP+3}")
    g(f"v_add_f32 v{vP+4}, v{vP+4}, v{vP+5}")
    g(f"v_add_f32 v{vP}, v{vP}, v{vP+2}")
    g(f"v_add_f32 v{vP}, v{vP}, v{vP+4}")
    bf16r(g, vP, vP)
    g(f"v_add_f32 v{vP}, v{vP}, v{vB2}")
    bf16r(g, vP, vP)
    g(f"v_add_f32 v{vP}, v{vP}, v{vP+8}")
    g(f"v_cvt_pk_bf16_f32 v{vP}, v{vP}, v{vP}")
    g(f"v_lshlrev_b32 v{vT}, 1, v{vE}")
    g(f"buffer_store_short v{vP}, v{vT}, s[{sOut}:{sOut+3}], 0 offen")
    stamp(g, 7)
    if STAMPS:
        g(f"s_cmp_eq_u32 s2, 208")
        g("s_cbranch_scc0 L_end")
        stamp_flush(g, sDbg, 96)
    g.label("L_end", pad=False)
    g("s_endpgm")
    return L, nv, 102 if STAMPS else 84


def build(**kw):
    g = Gen()
    head = open(f"cdna_kernels/{NAME}.s.ref").read().split("; Override launch")[0]
    g.raw(head.rstrip("\n"))
    g.raw("; @launch grid=(256,1,1) block=(1024,1,1) lds=112640")
    g.raw('.amdgcn_target "amdgcn-amd-amdhsa--gfx950"')
    g.raw(".text")
    L, nv, ns = kernel(g, **kw)
    g.raw('.section .rodata,"a"')
    g.raw(".p2align 6")
    g.raw(f""".amdhsa_kernel {L}
  .amdhsa_next_free_vgpr {nv}
  .amdhsa_next_free_sgpr {ns}
  .amdhsa_accum_offset {(nv+3)//4*4}
  .amdhsa_group_segment_fixed_size 0
  .amdhsa_kernarg_size 104
  .amdhsa_user_sgpr_count 2
  .amdhsa_user_sgpr_kernarg_segment_ptr 1
  .amdhsa_system_sgpr_workgroup_id_x 1
  .amdhsa_float_denorm_mode_32 3
.end_amdhsa_kernel""")
    return g.text()


if __name__ == "__main__":
    out = sys.argv[1] if len(sys.argv) > 1 else f"cdna_kernels/{NAME}.s"
    kw = {}
    for a in sys.argv[2:]:
        k, v = a.split("=")
        if k == "STAMPS":
            STAMPS = int(v)
        elif k == "STAMP_WG":
            STAMP_WG = int(v)
        else:
            kw[k] = int(v)
    open(out, "w").write(build(**kw))
    print("wrote", out)
```

```python
import sys
from asmgen import Gen

NAME = "sequential_preLN__mha_block_cached__dense_activation_squared_relu__decode"

WS_PART = 0
WS_ML = 0x30000
WS_HP = 0x40000
WS_FP = 0x4A000
WS_HH = 0x86000
WS_SENT_N = 18240
WS_SIZE = 0x100000

LOG2E = 0x3FB8AA3B
SCALE = 0x3D93CD3A
INV640 = 0x3ACCCCCD
EPS = 0x3727C5AC


def srd(g, d, base, size):
    g(f"s_mov_b32 s{d}, s{base}")
    g(f"s_and_b32 s{d+1}, s{base+1}, 0xffff")
    g(f"s_mov_b32 s{d+2}, {size}")
    g(f"s_mov_b32 s{d+3}, 0x00020000")


def allreduce(g, op, v, t):
    g(f"{op}_dpp v{v}, v{v}, v{v} quad_perm:[1,0,3,2] row_mask:0xf bank_mask:0xf")
    g(f"{op}_dpp v{v}, v{v}, v{v} quad_perm:[2,3,0,1] row_mask:0xf bank_mask:0xf")
    g(f"{op}_dpp v{v}, v{v}, v{v} row_half_mirror row_mask:0xf bank_mask:0xf")
    g(f"{op}_dpp v{v}, v{v}, v{v} row_mirror row_mask:0xf bank_mask:0xf")
    g(f"v_mov_b32 v{t}, v{v}")
    g(f"v_permlane16_swap_b32 v{v}, v{t}")
    g(f"{op} v{v}, v{v}, v{t}")
    g(f"v_mov_b32 v{t}, v{v}")
    g(f"v_permlane32_swap_b32 v{v}, v{t}")
    g(f"{op} v{v}, v{v}, v{t}")


def bf16r(g, dst, src):
    g(f"v_cvt_pk_bf16_f32 v{dst}, v{src}, v{src}")
    g(f"v_lshlrev_b32 v{dst}, 16, v{dst}")


def bf16r2(g, a, b, t):
    g(f"v_cvt_pk_bf16_f32 v{t}, v{a}, v{b}")
    g(f"v_lshlrev_b32 v{a}, 16, v{t}")
    g(f"v_and_b32 v{b}, 0xffff0000, v{t}")


def divide(g, dst, num, den, r, e):
    g(f"v_rcp_f32 v{r}, v{den}")
    g(f"v_mul_f32 v{dst}, v{num}, v{r}")
    g(f"v_fma_f32 v{e}, -v{dst}, v{den}, v{num}")
    g(f"v_fma_f32 v{dst}, v{e}, v{r}, v{dst}")


def ln_stats(g, xe, n, mb, sd, t0, t1, t2):
    g(f"v_add_f32 v{t0}, v{xe[0]}, v{xe[1]}")
    for r in xe[2:]:
        g(f"v_add_f32 v{t0}, v{t0}, v{r}")
    allreduce(g, "v_add_f32", t0, t1)
    g(f"v_mul_f32 v{t0}, {INV640:#x}, v{t0}")
    g(f"v_sub_f32 v{t1}, v{xe[0]}, v{t0}")
    g(f"v_mul_f32 v{t2}, v{t1}, v{t1}")
    for r in xe[1:]:
        g(f"v_sub_f32 v{t1}, v{r}, v{t0}")
        g(f"v_fmac_f32 v{t2}, v{t1}, v{t1}")
    allreduce(g, "v_add_f32", t2, t1)
    g(f"v_mul_f32 v{t2}, {INV640:#x}, v{t2}")
    bf16r(g, mb, t0)
    bf16r(g, t2, t2)
    g(f"v_add_f32 v{t2}, {EPS:#x}, v{t2}")
    bf16r(g, t2, t2)
    g(f"v_sqrt_f32 v{t2}, v{t2}")
    bf16r(g, sd, t2)


def ln_apply(g, x, mb, sd, r, e):
    g(f"v_sub_f32 v{x}, v{x}, v{mb}")
    bf16r(g, x, x)
    g(f"v_mov_b32 v{e}, v{x}")
    g(f"v_rcp_f32 v{r}, v{sd}")
    g(f"v_mul_f32 v{x}, v{e}, v{r}")
    g(f"v_fma_f32 v{e}, -v{x}, v{sd}, v{e}")
    g(f"v_fma_f32 v{x}, v{e}, v{r}, v{x}")
    bf16r(g, x, x)


STAMPS = False
STAMP_WG = 0


def stamp(g, idx):
    if not STAMPS:
        return
    g(f"s_memrealtime s[{70+2*idx}:{71+2*idx}]")
    g("s_waitcnt lgkmcnt(0)")


def stamp_flush(g, n, vt=0, base=0):
    if not STAMPS:
        return
    g("s_load_dwordx2 s[60:61], s[0:1], 88")
    g("s_waitcnt lgkmcnt(0)")
    srd(g, 64, 60, 256)
    g(f"s_mov_b32 s62, 0")
    for i in range(n):
        g(f"v_mov_b32 v{vt}, s{70+2*i}")
        g(f"v_mov_b32 v{vt+1}, {base + i*4}")
        g(f"buffer_store_dword v{vt}, v{vt+1}, s[64:67], 0 offen")
    g("s_waitcnt vmcnt(0)")


def header(g, label):
    g.raw(".p2align 8")
    g.raw(f".type {label},@function")
    g.raw(f"{label}:")


def descriptor(label, nvgpr, nsgpr):
    acc = (nvgpr + 3) // 4 * 4
    if STAMPS:
        nsgpr = 100
    return f""".amdhsa_kernel {label}
  .amdhsa_next_free_vgpr {nvgpr}
  .amdhsa_next_free_sgpr {nsgpr}
  .amdhsa_accum_offset {acc}
  .amdhsa_group_segment_fixed_size 0
  .amdhsa_kernarg_size 104
  .amdhsa_user_sgpr_count 2
  .amdhsa_user_sgpr_kernarg_segment_ptr 1
  .amdhsa_system_sgpr_workgroup_id_x 1
  .amdhsa_float_denorm_mode_32 3
.end_amdhsa_kernel
"""


def k_attn(g, NBUF=16, nt=True, PRIO=0, PREF=0, CK=64):
    L = "attn_kernel"
    header(g, L)
    NT = {0: "", 1: " nt", 2: " sc1 nt", 3: " sc0 sc1 nt", 4: " sc0 nt", 5: " sc1"}[int(nt)]
    assert 64 % NBUF == 0
    sX, sK, sV, sWQ, sWS = 16, 20, 24, 28, 32
    sWave, sH, sB, sS, sT0, sT1, sKV, sOff, sSelLo, sSelHi = 36, 37, 38, 39, 40, 41, 42, 43, 44, 45
    sM1, sM0, sWqb, sRec = 46, 48, 50, 51
    sCur, sNext, sNextIdx = 52, 53, 54
    sEx = 56
    XN, QB, ML, CNT, PW, QP = 0, 2560, 3072, 3328, 4096, 8192
    vLane, vL32, vHalf, vKV, vT = 1, 2, 3, 4, 5
    vQ = 6
    vPA = 9
    vAcc = 10
    vS = 16
    vMr, vLr = 18, 19
    vP = 20
    vLA, vLB, vLC, vLD = 22, 24, 26, 28
    vT2, vT3 = 30, 31
    vPm = 32
    vPw, vPr = 34, 35
    vPPa, vPPb = 36, 40
    vRing = 44
    NPOOL = max(NBUF, 20)
    nv = vRing + 4 * NPOOL
    assert nv <= 128, nv

    g("s_cmp_ge_u32 s2, 256")
    g("s_cbranch_scc1 attn_end")
    if PRIO == 1:
        g("s_setprio 3")
    stamp(g, 0)
    g("s_load_dwordx2 s[4:5], s[0:1], 0")
    g("s_load_dwordx4 s[8:11], s[0:1], 8")
    g("s_load_dwordx2 s[12:13], s[0:1], 24")
    g("s_load_dwordx2 s[14:15], s[0:1], 96")
    g(f"v_and_b32 v{vLane}, 63, v0")
    g(f"v_and_b32 v{vL32}, 31, v0")
    g(f"v_bfe_u32 v{vHalf}, v0, 5, 1")
    g(f"v_lshrrev_b32 v{vT}, 6, v0")
    g(f"v_readfirstlane_b32 s{sWave}, v{vT}")
    g(f"s_and_b32 s{sT0}, s2, 7")
    g(f"s_lshr_b32 s{sT1}, s2, 3")
    g(f"s_lshl_b32 s{sH}, s{sT0}, 2")
    g(f"s_and_b32 s{sT0}, s{sT1}, 3")
    g(f"s_add_u32 s{sH}, s{sH}, s{sT0}")
    g(f"s_lshr_b32 s{sT1}, s{sT1}, 2")
    g(f"s_lshr_b32 s{sB}, s{sT1}, 2")
    g(f"s_and_b32 s{sS}, s{sT1}, 3")
    g(f"s_lshl_b32 s{sRec}, s{sB}, 5")
    g(f"s_add_u32 s{sRec}, s{sRec}, s{sH}")
    g(f"s_lshl_b32 s{sRec}, s{sRec}, 2")
    g(f"s_add_u32 s{sRec}, s{sRec}, s{sS}")
    g(f"s_mul_i32 s{sKV}, s{sRec}, 786432")
    g(f"s_mov_b32 s{sSelLo}, 0x05040100")
    g(f"s_mov_b32 s{sSelHi}, 0x07060302")
    g(f"s_mov_b32 s{sM1}, 0xcccccccc")
    g(f"s_mov_b32 s{sM1+1}, 0xcccccccc")
    g(f"s_mov_b32 s{sM0}, 0xaaaaaaaa")
    g(f"s_mov_b32 s{sM0+1}, 0xaaaaaaaa")
    g(f"s_mul_i32 s{sWqb}, s{sWave}, 491520")
    g(f"s_mul_i32 s{sT0}, s{sH}, 384")
    g(f"s_add_u32 s{sWqb}, s{sWqb}, s{sT0}")
    g(f"s_mul_i32 s{sCur}, s{sWave}, {CK*384}")
    g(f"s_add_u32 s{sCur}, s{sCur}, s{sKV}")
    g(f"v_mul_u32_u24 v{vT2}, 12, v{vL32}")
    g(f"v_mul_u32_u24 v{vKV}, 384, v{vHalf}")
    g(f"v_add_u32 v{vKV}, v{vKV}, v{vT2}")
    vWo = 42
    g(f"v_mul_u32_u24 v{vWo}, 245760, v{vHalf}")
    g(f"v_add_u32 v{vWo}, v{vWo}, v{vT2}")
    g(f"v_lshlrev_b32 v{vT}, 2, v{vLane}")
    g(f"v_mov_b32 v{vT2}, 16")
    g(f"v_mov_b32 v{vT3}, 0")
    g(f"ds_write_b32 v{vT3}, v{vT2} offset:{CNT}")
    if PRIO == 3:
        g(f"ds_write_b32 v{vT3}, v{vT3} offset:{CNT+4}")
        g(f"ds_write_b32 v{vT3}, v{vT3} offset:{CNT+8}")
    g("s_waitcnt lgkmcnt(0)")
    if PRIO == 3:
        g("s_barrier")
    srd(g, sX, 4, 2560)
    srd(g, sWQ, 12, 7864320)
    srd(g, sWS, 14, WS_SIZE)
    g(f"s_cmp_lt_u32 s{sWave}, 2")
    g("s_cbranch_scc0 attn_nosent")
    g(f"s_mul_i32 s{sT0}, s2, 72")
    g(f"v_add_u32 v{vT2}, s{sT0}, v0")
    g(f"v_cmp_gt_u32 vcc, 72, v0")
    g(f"s_mov_b64 s[{sEx}:{sEx+1}], vcc")
    g(f"v_cmp_gt_u32 vcc, {WS_SENT_N}, v{vT2}")
    g(f"s_and_b64 s[{sEx}:{sEx+1}], s[{sEx}:{sEx+1}], vcc")
    g(f"v_lshlrev_b32 v{vT2}, 4, v{vT2}")
    for c in range(4):
        g(f"v_mov_b32 v{vAcc+c}, -1")
    g(f"s_mov_b64 s[{sEx+2}:{sEx+3}], exec")
    g(f"s_mov_b64 exec, s[{sEx}:{sEx+1}]")
    g("s_cbranch_execz attn_sent_done")
    g(f"s_mov_b32 s{sT0}, {WS_HP}")
    g(f"buffer_store_dwordx4 v[{vAcc}:{vAcc+3}], v{vT2}, s[{sWS}:{sWS+3}], s{sT0} offen")
    g.label("attn_sent_done")
    g(f"s_mov_b64 exec, s[{sEx+2}:{sEx+3}]")
    g.label("attn_nosent")
    g(f"s_mul_i32 s{sT0}, s{sB}, 1280")
    vXd = 36
    for j in range(5):
        g(f"buffer_load_dword v{vXd+j}, v{vT}, s[{sX}:{sX+3}], s{sT0} offen offset:{j*256}")
    for j in range(20):
        g(f"s_add_u32 s{sOff}, s{sWqb}, {j*12288}")
        r = vRing + 4 * j
        g(f"buffer_load_dwordx3 v[{r}:{r+2}], v{vWo}, s[{sWQ}:{sWQ+3}], s{sOff} offen")
    srd(g, sK, 8, 201326592)
    srd(g, sV, 10, 201326592)

    def kv_load(t, base):
        s = sK if t < 32 else sV
        i = t % 32
        r = vRing + 4 * (t % NBUF)
        g(f"s_add_u32 s{sOff}, s{base}, {i*768}")
        g(f"buffer_load_dwordx3 v[{r}:{r+2}], v{vKV}, s[{s}:{s+3}], s{sOff} offen{NT}")

    stamp(g, 2)
    g(f"s_waitcnt vmcnt(20)")
    stamp(g, 4)
    xe = list(range(16, 26))
    for j in range(5):
        g(f"v_lshlrev_b32 v{xe[2*j]}, 16, v{vXd+j}")
        g(f"v_and_b32 v{xe[2*j+1]}, 0xffff0000, v{vXd+j}")
    vMb, vSd = 26, 27
    ln_stats(g, xe, 640, vMb, vSd, 28, 29, 31)
    for r in xe:
        ln_apply(g, r, vMb, vSd, 28, 29)
    g(f"v_lshlrev_b32 v{vT}, 3, v{vLane}")
    for j in range(5):
        g(f"ds_write_b64 v{vT}, v[{xe[2*j]}:{xe[2*j+1]}] offset:{XN + j*512}")
    g(f"v_lshrrev_b32 v{vT}, 5, v0")
    g(f"v_mul_u32_u24 v{vT}, 80, v{vT}")
    g("s_waitcnt lgkmcnt(0)")
    xr = 16
    for j in range(5):
        g(f"ds_read_b128 v[{xr+4*j}:{xr+4*j+3}], v{vT} offset:{XN + j*16}")
    for c in range(6):
        g(f"v_mov_b32 v{vAcc+c}, 0")
    g("s_waitcnt lgkmcnt(0)")
    stamp(g, 5)
    for j in range(20):
        if PRIO:
            g(f"s_waitcnt vmcnt({19 - j})")
        else:
            g(f"s_waitcnt vmcnt({19 - j + min(j, NBUF)})")
        r = vRing + 4 * j
        for c in range(3):
            g(f"v_lshlrev_b32 v{36}, 16, v{r+c}")
            g(f"v_and_b32 v{37}, 0xffff0000, v{r+c}")
            g(f"v_fmac_f32 v{vAcc+2*c}, v{36}, v{xr+j}")
            g(f"v_fmac_f32 v{vAcc+2*c+1}, v{37}, v{xr+j}")
        if j < NBUF and not PRIO:
            kv_load(j, sCur)
    if PRIO == 1:
        g("s_setprio 0")
        for j in range(NBUF):
            kv_load(j, sCur)
    stamp(g, 6)
    g(f"v_lshrrev_b32 v{vT3}, 5, v0")
    g(f"v_mul_u32_u24 v{vT}, 768, v{vT3}")
    g(f"v_mul_u32_u24 v{vT2}, 24, v{vL32}")
    g(f"v_add_u32 v{vPA}, v{vT}, v{vT2}")
    for c in range(3):
        g(f"ds_write_b64 v{vPA}, v[{vAcc+2*c}:{vAcc+2*c+1}] offset:{QP + c*8}")
    g("s_waitcnt lgkmcnt(0)")

    def lds_inc(off):
        g(f"s_mov_b64 s[{sEx}:{sEx+1}], exec")
        g("s_mov_b64 exec, 1")
        g(f"v_mov_b32 v{vT2}, 1")
        g(f"v_mov_b32 v{vT3}, 0")
        g(f"ds_add_u32 v{vT3}, v{vT2} offset:{off}")
        g(f"s_mov_b64 exec, s[{sEx}:{sEx+1}]")

    def lds_spin(name, off, n):
        g(f"v_mov_b32 v{vT3}, 0")
        g.label(name)
        g(f"ds_read_b32 v{vT2}, v{vT3} offset:{off}")
        g("s_waitcnt lgkmcnt(0)")
        g(f"v_readfirstlane_b32 s{sT0}, v{vT2}")
        g(f"s_cmp_ge_u32 s{sT0}, {n}")
        g(f"s_cbranch_scc1 {name}_done")
        g("s_sleep 1")
        g(f"s_branch {name}")
        g.label(name + "_done")

    if PRIO == 3:
        lds_inc(CNT + 4)
    else:
        g("s_barrier")
    if PRIO == 2:
        for j in range(NBUF):
            kv_load(j, sCur)
    g(f"s_cmp_lt_u32 s{sWave}, 3")
    g("s_cbranch_scc0 attn_q2_skip")
    if PRIO == 3:
        lds_spin("attn_spin1", CNT + 4, 16)
    g(f"v_lshlrev_b32 v{vT}, 2, v0")
    rr = 10
    for r in range(32):
        g(f"ds_read_b32 v{rr+r}, v{vT} offset:{QP + r*768}")
    g("s_waitcnt lgkmcnt(0)")
    for st in (1, 2, 4, 8, 16):
        for r in range(0, 32, 2 * st):
            g(f"v_add_f32 v{rr+r}, v{rr+r}, v{rr+r+st}")
    g(f"v_cvt_pk_bf16_f32 v{rr}, v{rr}, v{rr}")
    g(f"v_lshlrev_b32 v{vT}, 1, v0")
    g(f"ds_write_b16 v{vT}, v{rr} offset:{QB}")
    g("s_waitcnt lgkmcnt(0)")
    if PRIO == 3:
        lds_inc(CNT + 8)
    g.label("attn_q2_skip")
    if PRIO == 3:
        for j in range(NBUF):
            kv_load(j, sCur)
        lds_spin("attn_spin2", CNT + 8, 3)
    else:
        g("s_barrier")
    g(f"v_mul_u32_u24 v{vT}, 12, v{vL32}")
    for c in range(3):
        g(f"ds_read_b32 v{vQ+c}, v{vT} offset:{QB + 4*c}")
    g(f"v_bfrev_b32 v{vT2}, v{vL32}")
    g(f"v_lshrrev_b32 v{vT2}, 26, v{vT2}")
    if CK == 32:
        g(f"v_and_b32 v{vT2}, 30, v{vT2}")
    g(f"v_lshlrev_b32 v{vT3}, 6, v{vHalf}")
    g(f"s_lshl_b32 s{sT0}, s{sWave}, 7")
    g(f"v_add_u32 v{vPr}, s{sT0}, v{vT3}")
    g(f"v_add_u32 v{vPw}, v{vPr}, v{vT2}")
    for c in range(6):
        g(f"v_mov_b32 v{vAcc+c}, 0")
    g(f"v_mov_b32 v{vMr}, 0xff800000")
    g(f"v_mov_b32 v{vLr}, 0")
    g("s_waitcnt lgkmcnt(0)")
    stamp(g, 1)

    if CK == 32:
        assert NBUF == 16
        g.label("attn_loop")
        g(f"s_mov_b64 s[{sEx}:{sEx+1}], exec")
        g("s_mov_b64 exec, 1")
        g(f"v_mov_b32 v{vT2}, 1")
        g(f"v_mov_b32 v{vT3}, 0")
        g(f"ds_add_rtn_u32 v{vS+1}, v{vT3}, v{vT2} offset:{CNT}")
        g(f"s_mov_b64 exec, s[{sEx}:{sEx+1}]")

        def ld(t, base):
            sr = sK if t < 16 else sV
            i = t % 16
            r = vRing + 4 * (t % NBUF)
            g(f"s_add_u32 s{sOff}, s{base}, {i*768}")
            g(f"buffer_load_dwordx3 v[{r}:{r+2}], v{vKV}, s[{sr}:{sr+3}], s{sOff} offen{NT}")
        for t in range(16):
            r = vRing + 4 * t
            P = vP + (t & 1)
            g(f"s_waitcnt vmcnt({NBUF-1})")
            g(f"v_dot2_f32_bf16 v{P}, v{r}, v{vQ}, 0")
            g(f"v_dot2_f32_bf16 v{P}, v{r+1}, v{vQ+1}, v{P}")
            g(f"v_dot2_f32_bf16 v{P}, v{r+2}, v{vQ+2}, v{P}")
            ld(t + 16, sCur)
            if t & 1:
                g(f"v_permlane16_swap_b32 v{vP}, v{vP+1}")
                g(f"v_add_f32 v{vLA+((t>>1)&1)}, v{vP}, v{vP+1}")
            if (t & 3) == 3:
                d = vLB + ((t >> 2) & 1)
                g(f"v_add_f32_dpp v{d}, v{vLA}, v{vLA} row_ror:8 row_mask:0xf bank_mask:0x3")
                g(f"v_add_f32_dpp v{d}, v{vLA+1}, v{vLA+1} row_ror:8 row_mask:0xf bank_mask:0xc")
            if (t & 7) == 7:
                d = vLC + ((t >> 3) & 1)
                g(f"v_add_f32_dpp v{d}, v{vLB}, v{vLB} row_shl:4 row_mask:0xf bank_mask:0x5")
                g(f"v_add_f32_dpp v{d}, v{vLB+1}, v{vLB+1} row_shr:4 row_mask:0xf bank_mask:0xa")
            if t == 15:
                g(f"v_add_f32_dpp v{vT2}, v{vLC}, v{vLC} quad_perm:[2,3,0,1] row_mask:0xf bank_mask:0xf")
                g(f"v_add_f32_dpp v{vT3}, v{vLC+1}, v{vLC+1} quad_perm:[2,3,0,1] row_mask:0xf bank_mask:0xf")
                g(f"v_cndmask_b32 v{vLD}, v{vT2}, v{vT3}, s[{sM1}:{sM1+1}]")
                g(f"v_add_f32_dpp v{vS}, v{vLD}, v{vLD} quad_perm:[1,0,3,2] row_mask:0xf bank_mask:0xf")
        bf16r(g, vS, vS)
        g(f"v_mul_f32 v{vS}, {SCALE:#x}, v{vS}")
        bf16r(g, vS, vS)
        vCm, vAl = vLA, vLA + 1
        g(f"v_mov_b32 v{vCm}, v{vS}")
        allreduce(g, "v_max_f32", vCm, vT2)
        g(f"v_max_f32 v{vCm}, v{vCm}, v{vMr}")
        g(f"v_sub_f32 v{vAl}, v{vMr}, v{vCm}")
        g(f"v_mul_f32 v{vAl}, {LOG2E:#x}, v{vAl}")
        g(f"v_exp_f32 v{vAl}, v{vAl}")
        g(f"v_sub_f32 v{vS}, v{vS}, v{vCm}")
        g(f"v_mul_f32 v{vS}, {LOG2E:#x}, v{vS}")
        g(f"v_exp_f32 v{vS}, v{vS}")
        g(f"v_mov_b32 v{vMr}, v{vCm}")
        g(f"v_fma_f32 v{vLr}, v{vLr}, v{vAl}, v{vS}")
        g(f"v_cvt_pk_bf16_f32 v{vT}, v{vS}, v{vS}")
        g(f"ds_write_b16 v{vPw}, v{vT} offset:{PW}")
        for c in range(6):
            g(f"v_mul_f32 v{vAcc+c}, v{vAcc+c}, v{vAl}")
        g("s_waitcnt lgkmcnt(0)")
        g(f"ds_read_b128 v[{vPPa}:{vPPa+3}], v{vPr} offset:{PW}")
        g(f"ds_read_b128 v[{vPPb}:{vPPb+3}], v{vPr} offset:{PW+16}")
        g(f"v_readfirstlane_b32 s{sNextIdx}, v{vS+1}")
        g(f"s_mul_i32 s{sNext}, s{sNextIdx}, 12288")
        g(f"s_add_u32 s{sNext}, s{sNext}, s{sKV}")
        g(f"s_cmp_lt_u32 s{sNextIdx}, 64")
        g(f"s_cselect_b32 s{sNext}, s{sNext}, 0x80000000")
        for j in range(8):
            t = 16 + 2 * j
            q4 = j // 4
            PP = (vPPa if q4 == 0 else vPPb) + (j % 4)
            if j % 4 == 0:
                g("s_waitcnt lgkmcnt(1)" if q4 == 0 else "s_waitcnt lgkmcnt(0)")
            ra = vRing + 4 * (t % NBUF)
            rb = vRing + 4 * ((t + 1) % NBUF)
            g(f"s_waitcnt vmcnt({NBUF-2})")
            for c in range(3):
                g(f"v_perm_b32 v{vPm}, v{rb+c}, v{ra+c}, s{sSelLo}")
                g(f"v_perm_b32 v{vPm+1}, v{rb+c}, v{ra+c}, s{sSelHi}")
                g(f"v_dot2_f32_bf16 v{vAcc+2*c}, v{vPm}, v{PP}, v{vAcc+2*c}")
                g(f"v_dot2_f32_bf16 v{vAcc+2*c+1}, v{vPm+1}, v{PP}, v{vAcc+2*c+1}")
            ld(t - 16, sNext)
            ld(t + 1 - 16, sNext)
        g(f"s_mov_b32 s{sCur}, s{sNext}")
        g(f"s_cmp_lt_u32 s{sNextIdx}, 64")
        g("s_cbranch_scc1 attn_loop")
        g(f"v_mul_f32 v{vLr}, 0.5, v{vLr}")
        stamp(g, 3)
    else:
        g.label("attn_loop")
        g(f"s_mov_b64 s[{sEx}:{sEx+1}], exec")
        g("s_mov_b64 exec, 1")
        g(f"v_mov_b32 v{vT2}, 1")
        g(f"v_mov_b32 v{vT3}, 0")
        g(f"ds_add_rtn_u32 v{vS+1}, v{vT3}, v{vT2} offset:{CNT}")
        g(f"s_mov_b64 exec, s[{sEx}:{sEx+1}]")
        for t in range(32):
            i5 = t
            r = vRing + 4 * (t % NBUF)
            P = vP + (t & 1)
            g(f"s_waitcnt vmcnt({NBUF-1})")
            g(f"v_dot2_f32_bf16 v{P}, v{r}, v{vQ}, 0")
            g(f"v_dot2_f32_bf16 v{P}, v{r+1}, v{vQ+1}, v{P}")
            g(f"v_dot2_f32_bf16 v{P}, v{r+2}, v{vQ+2}, v{P}")
            kv_load(t + NBUF, sCur)
            if i5 & 1:
                g(f"v_permlane16_swap_b32 v{vP}, v{vP+1}")
                g(f"v_add_f32 v{vLA+((i5>>1)&1)}, v{vP}, v{vP+1}")
            if (i5 & 3) == 3:
                d = vLB + ((i5 >> 2) & 1)
                g(f"v_add_f32_dpp v{d}, v{vLA}, v{vLA} row_ror:8 row_mask:0xf bank_mask:0x3")
                g(f"v_add_f32_dpp v{d}, v{vLA+1}, v{vLA+1} row_ror:8 row_mask:0xf bank_mask:0xc")
            if (i5 & 7) == 7:
                d = vLC + ((i5 >> 3) & 1)
                g(f"v_add_f32_dpp v{d}, v{vLB}, v{vLB} row_shl:4 row_mask:0xf bank_mask:0x5")
                g(f"v_add_f32_dpp v{d}, v{vLB+1}, v{vLB+1} row_shr:4 row_mask:0xf bank_mask:0xa")
            if (i5 & 15) == 15:
                d = vLD + ((i5 >> 4) & 1)
                g(f"v_add_f32_dpp v{vT2}, v{vLC}, v{vLC} quad_perm:[2,3,0,1] row_mask:0xf bank_mask:0xf")
                g(f"v_add_f32_dpp v{vT3}, v{vLC+1}, v{vLC+1} quad_perm:[2,3,0,1] row_mask:0xf bank_mask:0xf")
                g(f"v_cndmask_b32 v{d}, v{vT2}, v{vT3}, s[{sM1}:{sM1+1}]")
            if i5 == 31:
                g(f"v_add_f32_dpp v{vT2}, v{vLD}, v{vLD} quad_perm:[1,0,3,2] row_mask:0xf bank_mask:0xf")
                g(f"v_add_f32_dpp v{vT3}, v{vLD+1}, v{vLD+1} quad_perm:[1,0,3,2] row_mask:0xf bank_mask:0xf")
                g(f"v_cndmask_b32 v{vS}, v{vT2}, v{vT3}, s[{sM0}:{sM0+1}]")
        bf16r(g, vS, vS)
        g(f"v_mul_f32 v{vS}, {SCALE:#x}, v{vS}")
        bf16r(g, vS, vS)
        vCm, vAl = vLA, vLA + 1
        g(f"v_mov_b32 v{vCm}, v{vS}")
        allreduce(g, "v_max_f32", vCm, vT2)
        g(f"v_max_f32 v{vCm}, v{vCm}, v{vMr}")
        g(f"v_sub_f32 v{vAl}, v{vMr}, v{vCm}")
        g(f"v_mul_f32 v{vAl}, {LOG2E:#x}, v{vAl}")
        g(f"v_exp_f32 v{vAl}, v{vAl}")
        g(f"v_sub_f32 v{vS}, v{vS}, v{vCm}")
        g(f"v_mul_f32 v{vS}, {LOG2E:#x}, v{vS}")
        g(f"v_exp_f32 v{vS}, v{vS}")
        g(f"v_mov_b32 v{vMr}, v{vCm}")
        g(f"v_fma_f32 v{vLr}, v{vLr}, v{vAl}, v{vS}")
        g(f"v_cvt_pk_bf16_f32 v{vT}, v{vS}, v{vS}")
        g(f"ds_write_b16 v{vPw}, v{vT} offset:{PW}")
        for c in range(6):
            g(f"v_mul_f32 v{vAcc+c}, v{vAcc+c}, v{vAl}")
        g("s_waitcnt lgkmcnt(0)")
        g(f"ds_read_b128 v[{vPPa}:{vPPa+3}], v{vPr} offset:{PW}")
        g(f"ds_read_b128 v[{vPPb}:{vPPb+3}], v{vPr} offset:{PW+16}")
        g(f"v_readfirstlane_b32 s{sNextIdx}, v{vS+1}")
        g(f"s_mul_i32 s{sNext}, s{sNextIdx}, 24576")
        g(f"s_add_u32 s{sNext}, s{sNext}, s{sKV}")
        g(f"s_cmp_lt_u32 s{sNextIdx}, 32")
        g(f"s_cselect_b32 s{sNext}, s{sNext}, 0x80000000")
        for j in range(16):
            t = 32 + 2 * j
            q4 = j // 4
            PP = (vPPa if (q4 & 1) == 0 else vPPb) + (j % 4)
            if j % 4 == 0:
                if q4 + 1 < 4:
                    g("s_waitcnt lgkmcnt(1)")
                else:
                    g("s_waitcnt lgkmcnt(0)")
            ra = vRing + 4 * (t % NBUF)
            rb = vRing + 4 * ((t + 1) % NBUF)
            g(f"s_waitcnt vmcnt({NBUF-2})")
            for c in range(3):
                g(f"v_perm_b32 v{vPm}, v{rb+c}, v{ra+c}, s{sSelLo}")
                g(f"v_perm_b32 v{vPm+1}, v{rb+c}, v{ra+c}, s{sSelHi}")
                g(f"v_dot2_f32_bf16 v{vAcc+2*c}, v{vPm}, v{PP}, v{vAcc+2*c}")
                g(f"v_dot2_f32_bf16 v{vAcc+2*c+1}, v{vPm+1}, v{PP}, v{vAcc+2*c+1}")
            for tt in (t + NBUF, t + 1 + NBUF):
                if tt < 64:
                    kv_load(tt, sCur)
                else:
                    kv_load(tt - 64, sNext)
            if j % 4 == 3 and q4 + 2 < 4:
                d = vPPa if (q4 & 1) == 0 else vPPb
                g(f"ds_read_b128 v[{d}:{d+3}], v{vPr} offset:{PW + (q4+2)*16}")
        g(f"s_mov_b32 s{sCur}, s{sNext}")
        g(f"s_cmp_lt_u32 s{sNextIdx}, 32")
        g("s_cbranch_scc1 attn_loop")
        stamp(g, 3)
    allreduce(g, "v_add_f32", vLr, vT2)
    for c in range(3):
        g(f"ds_write_b64 v{vPA}, v[{vAcc+2*c}:{vAcc+2*c+1}] offset:{QP + c*8}")
    g(f"s_lshl_b32 s{sT0}, s{sWave}, 3")
    g(f"v_mov_b32 v{vT}, s{sT0}")
    g(f"ds_write_b64 v{vT}, v[{vMr}:{vMr+1}] offset:{ML}")
    g("s_waitcnt vmcnt(0) lgkmcnt(0)")
    g("s_barrier")
    g(f"s_cmp_lt_u32 s{sWave}, 3")
    g("s_cbranch_scc0 attn_pref" if PREF else "s_cbranch_scc0 attn_end")
    rm = vRing
    ro = vRing + 32
    g(f"v_mov_b32 v{vT}, 0")
    for w in range(0, 16, 2):
        g(f"ds_read_b128 v[{rm+2*w}:{rm+2*w+3}], v{vT} offset:{ML + 8*w}")
    g(f"v_lshlrev_b32 v{vT}, 2, v0")
    for r in range(32):
        g(f"ds_read_b32 v{ro+r}, v{vT} offset:{QP + r*768}")
    g("s_waitcnt lgkmcnt(0)")
    vMM, vLL, vO, vF = 16, 17, 18, 19
    g(f"v_max_f32 v{vMM}, v{rm}, v{rm+2}")
    for w in range(2, 16):
        g(f"v_max_f32 v{vMM}, v{vMM}, v{rm+2*w}")
    g(f"v_mov_b32 v{vLL}, 0")
    g(f"v_mov_b32 v{vO}, 0")
    for w in range(16):
        g(f"v_sub_f32 v{vF}, v{rm+2*w}, v{vMM}")
        g(f"v_mul_f32 v{vF}, {LOG2E:#x}, v{vF}")
        g(f"v_exp_f32 v{vF}, v{vF}")
        g(f"v_add_f32 v{vT2}, v{ro+2*w}, v{ro+2*w+1}")
        g(f"v_fmac_f32 v{vLL}, v{vF}, v{rm+2*w+1}")
        g(f"v_fmac_f32 v{vO}, v{vF}, v{vT2}")
    g(f"s_mul_i32 s{sT0}, s{sRec}, 768")
    g(f"buffer_store_dword v{vO}, v{vT}, s[{sWS}:{sWS+3}], s{sT0} offen offset:{WS_PART}")
    g(f"v_mov_b32 v{vT}, 0")
    g(f"s_lshl_b32 s{sT0}, s{sRec}, 3")
    g(f"s_add_u32 s{sT0}, s{sT0}, {WS_ML}")
    g(f"buffer_store_dwordx2 v[{vMM}:{vMM+1}], v{vT}, s[{sWS}:{sWS+3}], s{sT0} offen")
    stamp(g, 7)
    if STAMPS:
        g("v_mov_b32 v100, s70")
        g("v_mov_b32 v101, s84")
        g("s_lshl_b32 s62, s2, 3")
        g("s_add_u32 s62, s62, 0xA0000")
        g("v_mov_b32 v102, 0")
        g(f"buffer_store_dwordx2 v[100:101], v102, s[{sWS}:{sWS+3}], s62 offen")
        g("s_cmp_eq_u32 s2, STAMP_WG".replace("STAMP_WG", str(STAMP_WG)))
        g("s_cbranch_scc0 attn_end")
        g(f"s_cmp_eq_u32 s{sWave}, 0")
        g("s_cbranch_scc0 attn_end")
    stamp_flush(g, 8, 100)
    if PREF:
        g("s_endpgm")
        g.label("attn_pref")
        g("s_load_dwordx2 s[4:5], s[0:1], 32")
        g("s_load_dwordx2 s[6:7], s[0:1], 48")
        g("s_load_dwordx2 s[8:9], s[0:1], 64")
        g(f"s_sub_u32 s{sT0}, s{sWave}, 3")
        g(f"v_lshlrev_b32 v{vT}, 4, v{vLane}")
        g("s_waitcnt lgkmcnt(0)")
        srd(g, 16, 4, 7864320)
        srd(g, 20, 6, 1966080)
        srd(g, 24, 8, 1966080)
        g(f"s_cmp_lt_u32 s{sT0}, 10")
        g("s_cbranch_scc0 attn_pref2")
        g(f"s_mul_i32 s{sT1}, s2, 30720")
        g(f"s_mul_i32 s{sOff}, s{sT0}, 3072")
        g(f"s_add_u32 s{sT1}, s{sT1}, s{sOff}")
        for i in range(3):
            g(f"buffer_load_dwordx4 v[{vRing+4*i}:{vRing+4*i+3}], v{vT}, s[16:19], s{sT1} offen offset:{i*1024}")
        g("s_endpgm")
        g.label("attn_pref2")
        g(f"s_mul_i32 s{sT1}, s2, 7680")
        g(f"s_cmp_eq_u32 s{sT0}, 10")
        g("s_cbranch_scc0 attn_pref3")
        for i in range(8):
            g(f"s_add_u32 s{sOff}, s{sT1}, {i*1024}")
            g(f"buffer_load_dwordx4 v[{vRing+4*i}:{vRing+4*i+3}], v{vT}, s[20:23], s{sOff} offen")
        g("s_endpgm")
        g.label("attn_pref3")
        g(f"s_cmp_eq_u32 s{sT0}, 11")
        g("s_cbranch_scc0 attn_end")
        for i in range(8):
            g(f"s_add_u32 s{sOff}, s{sT1}, {i*1024}")
            g(f"buffer_load_dwordx4 v[{vRing+4*i}:{vRing+4*i+3}], v{vT}, s[24:27], s{sOff} offen")
    g.label("attn_end", pad=False)
    g("s_endpgm")
    return L, nv, 60


def k_wo(g):
    L = "wo_kernel"
    header(g, L)
    sWO, sWS = 16, 20
    sRb, sCb, sWave, sT0, sT1, sOff = 24, 25, 26, 27, 28, 29
    OC, RED, RED2 = 0, 8192, 24576
    vLane, vT, vT2, vT3 = 1, 2, 3, 4
    vWoOff = 5
    vAcc = 8
    vW = 24
    vC = 72
    vOo, vMo = 144, 150
    nv = 160
    g("s_cmp_ge_u32 s2, 160")
    g("s_cbranch_scc1 wo_end")
    stamp(g, 0)
    g("s_load_dwordx2 s[4:5], s[0:1], 32")
    g("s_load_dwordx2 s[6:7], s[0:1], 96")
    g(f"v_and_b32 v{vLane}, 63, v0")
    g(f"v_lshrrev_b32 v{vT}, 6, v0")
    g(f"v_readfirstlane_b32 s{sWave}, v{vT}")
    g(f"s_mul_i32 s{sRb}, s2, 3277")
    g(f"s_lshr_b32 s{sRb}, s{sRb}, 16")
    g(f"s_mul_i32 s{sT0}, s{sRb}, 20")
    g(f"s_sub_u32 s{sCb}, s2, s{sT0}")
    g(f"v_lshrrev_b32 v{vT}, 2, v{vLane}")
    g(f"v_mul_u32_u24 v{vWoOff}, 1280, v{vT}")
    g(f"v_and_b32 v{vT2}, 3, v{vLane}")
    g(f"v_lshlrev_b32 v{vT2}, 4, v{vT2}")
    g(f"v_add_u32 v{vWoOff}, v{vWoOff}, v{vT2}")
    for k in range(3):
        g(f"v_add_u32 v{vT}, {k*256}, v0")
        g(f"v_mul_u32_u24 v{vT2}, 43691, v{vT}")
        g(f"v_lshrrev_b32 v{vT2}, 23, v{vT2}")
        g(f"v_mul_u32_u24 v{vT3}, 192, v{vT2}")
        g(f"v_sub_u32 v{vT3}, v{vT}, v{vT3}")
        g(f"v_lshlrev_b32 v{vMo+k}, 12, v{vT2}")
        g(f"v_lshlrev_b32 v{vT3}, 2, v{vT3}")
        g(f"v_add_u32 v{vOo+k}, v{vMo+k}, v{vT3}")
    g("s_waitcnt lgkmcnt(0)")
    srd(g, sWO, 4, 7864320)
    srd(g, sWS, 6, WS_SIZE)
    for b in range(2):
        g(f"s_lshl_b32 s{sT0}, s{sRb}, 14")
        if b:
            g(f"s_add_u32 s{sT0}, s{sT0}, {32*4096}")
        for k in range(3):
            base = vC + (b * 3 + k) * 12
            for s in range(4):
                g(f"buffer_load_dword v{base+s}, v{vOo+k}, s[{sWS}:{sWS+3}], s{sT0} offen offset:{s*1024}")
            for s in range(4):
                g(f"buffer_load_dwordx2 v[{base+4+2*s}:{base+5+2*s}], v{vMo+k}, s[{sWS}:{sWS+3}], s{sT0} offen offset:{s*1024+768}")
    g(f"s_mul_i32 s{sT0}, s{sRb}, {768*1280}")
    g(f"s_mul_i32 s{sT1}, s{sWave}, {192*1280}")
    g(f"s_add_u32 s{sT0}, s{sT0}, s{sT1}")
    g(f"s_lshl_b32 s{sT1}, s{sCb}, 6")
    g(f"s_add_u32 s{sT0}, s{sT0}, s{sT1}")
    for i in range(12):
        g(f"s_add_u32 s{sOff}, s{sT0}, {i*16*1280}")
        g(f"buffer_load_dwordx4 v[{vW+4*i}:{vW+4*i+3}], v{vWoOff}, s[{sWO}:{sWO+3}], s{sOff} offen")
    stamp(g, 1)
    g("s_waitcnt vmcnt(12)")
    stamp(g, 2)
    vM, vF, vNum, vDen, vR, vE = 6, 7, 152, 153, 154, 155
    for b in range(2):
        for k in range(3):
            base = vC + (b * 3 + k) * 12
            m = [base + 4 + 2 * s for s in range(4)]
            l = [base + 5 + 2 * s for s in range(4)]
            g(f"v_max_f32 v{vM}, v{m[0]}, v{m[1]}")
            g(f"v_max3_f32 v{vM}, v{vM}, v{m[2]}, v{m[3]}")
            for s in range(4):
                g(f"v_sub_f32 v{vF}, v{m[s]}, v{vM}")
                g(f"v_mul_f32 v{vF}, {LOG2E:#x}, v{vF}")
                g(f"v_exp_f32 v{vF}, v{vF}")
                if s == 0:
                    g(f"v_mul_f32 v{vNum}, v{vF}, v{base+s}")
                    g(f"v_mul_f32 v{vDen}, v{vF}, v{l[s]}")
                else:
                    g(f"v_fmac_f32 v{vNum}, v{vF}, v{base+s}")
                    g(f"v_fmac_f32 v{vDen}, v{vF}, v{l[s]}")
            divide(g, vF, vNum, vDen, vR, vE)
            bf16r(g, vF, vF)
            g(f"v_lshlrev_b32 v{vT}, 3, v0")
            g(f"ds_write_b32 v{vT}, v{vF} offset:{OC + k*2048 + b*4}")
    g("s_waitcnt lgkmcnt(0)")
    g("s_barrier")
    stamp(g, 3)
    g(f"v_lshrrev_b32 v{vT}, 2, v{vLane}")
    g(f"s_mul_i32 s{sT0}, s{sWave}, 192")
    g(f"v_add_u32 v{vT}, s{sT0}, v{vT}")
    g(f"v_lshlrev_b32 v{vT}, 3, v{vT}")
    vOv = vC
    for i in range(12):
        g(f"ds_read_b64 v[{vOv+2*i}:{vOv+2*i+1}], v{vT} offset:{OC + i*128}")
    for c in range(16):
        g(f"v_mov_b32 v{vAcc+c}, 0")
    g("s_waitcnt lgkmcnt(0)")
    for i in range(12):
        g(f"s_waitcnt vmcnt({11-i})")
        for c in range(4):
            r = vW + 4 * i + c
            g(f"v_lshlrev_b32 v{vT2}, 16, v{r}")
            g(f"v_and_b32 v{vT3}, 0xffff0000, v{r}")
            g(f"v_fmac_f32 v{vAcc+2*c}, v{vT2}, v{vOv+2*i}")
            g(f"v_fmac_f32 v{vAcc+2*c+1}, v{vT3}, v{vOv+2*i}")
            g(f"v_fmac_f32 v{vAcc+8+2*c}, v{vT2}, v{vOv+2*i+1}")
            g(f"v_fmac_f32 v{vAcc+8+2*c+1}, v{vT3}, v{vOv+2*i+1}")
    stamp(g, 4)
    wave_reduce_64(g, vAcc, vLane, sWave, RED, RED2, vT, vT2, vT3, vW, sT0)
    g("s_barrier")
    g(f"s_cmp_eq_u32 s{sWave}, 0")
    g("s_cbranch_scc0 wo_end")
    g(f"v_lshlrev_b32 v{vT}, 2, v{vLane}")
    for w in range(4):
        g(f"ds_read_b32 v{vW+w}, v{vT} offset:{RED2 + w*256}")
    g("s_waitcnt lgkmcnt(0)")
    g(f"v_add_f32 v{vW}, v{vW}, v{vW+1}")
    g(f"v_add_f32 v{vW+2}, v{vW+2}, v{vW+3}")
    g(f"v_add_f32 v{vW}, v{vW}, v{vW+2}")
    g(f"v_lshrrev_b32 v{vT}, 5, v{vLane}")
    g(f"v_mul_u32_u24 v{vT}, 2560, v{vT}")
    g(f"v_and_b32 v{vT2}, 31, v{vLane}")
    g(f"v_lshlrev_b32 v{vT2}, 2, v{vT2}")
    g(f"v_add_u32 v{vT}, v{vT}, v{vT2}")
    g(f"s_mul_i32 s{sT0}, s{sRb}, 5120")
    g(f"s_lshl_b32 s{sT1}, s{sCb}, 7")
    g(f"s_add_u32 s{sT0}, s{sT0}, s{sT1}")
    g(f"s_add_u32 s{sT0}, s{sT0}, {WS_HP}")
    g(f"buffer_store_dword v{vW}, v{vT}, s[{sWS}:{sWS+3}], s{sT0} offen")
    stamp(g, 7)
    if STAMPS:
        g("s_cmp_eq_u32 s2, STAMP_WG".replace("STAMP_WG", str(STAMP_WG)))
        g("s_cbranch_scc0 wo_end")
    if STAMPS:
        g(f"s_cmp_eq_u32 s{sWave}, 0")
        g("s_cbranch_scc0 wo_end")
    stamp_flush(g, 8, 100 if "wo_end" != "fin_end" else 60)
    g.label("wo_end", pad=False)
    g("s_endpgm")
    return L, nv, 40


def wave_reduce_64(g, vAcc, vLane, sWave, RED, RED2, vT, vT2, vT3, vTmp, sT0):
    g(f"v_lshlrev_b32 v{vT}, 6, v0")
    for q in range(4):
        g(f"ds_write_b128 v{vT}, v[{vAcc+4*q}:{vAcc+4*q+3}] offset:{RED + 16*q}")
    g(f"v_bfe_u32 v{vT2}, v{vLane}, 3, 2")
    g(f"v_lshlrev_b32 v{vT2}, 6, v{vT2}")
    g(f"v_lshrrev_b32 v{vT3}, 5, v{vLane}")
    g(f"v_lshlrev_b32 v{vT3}, 5, v{vT3}")
    g(f"v_add_u32 v{vT2}, v{vT2}, v{vT3}")
    g(f"v_and_b32 v{vT3}, 7, v{vLane}")
    g(f"v_lshlrev_b32 v{vT3}, 2, v{vT3}")
    g(f"v_add_u32 v{vT2}, v{vT2}, v{vT3}")
    g(f"s_lshl_b32 s{sT0}, s{sWave}, 12")
    g(f"v_add_u32 v{vT2}, s{sT0}, v{vT2}")
    g("s_waitcnt lgkmcnt(0)")
    for r in range(16):
        g(f"ds_read_b32 v{vTmp+r}, v{vT2} offset:{RED + r*256}")
    g("s_waitcnt lgkmcnt(0)")
    for r in range(1, 16):
        g(f"v_add_f32 v{vTmp}, v{vTmp}, v{vTmp+r}")
    g(f"v_lshlrev_b32 v{vT}, 2, v0")
    g(f"ds_write_b32 v{vT}, v{vTmp} offset:{RED2}")
    g("s_waitcnt lgkmcnt(0)")


def k_ffn(g):
    L = "ffn_kernel"
    header(g, L)
    sX, sW1, sB1, sW2, sWS = 16, 20, 24, 28, 32
    sWave, sT0, sT1, sOff = 36, 37, 38, 39
    sMk = 40
    H, HN, RED, RED2, H1, R3 = 0, 5120, 10240, 30720, 32000, 32768
    vLane, vT, vT2, vT3 = 1, 2, 3, 4
    vAcc = 8
    vW1 = 24
    vW2 = 56
    vHP = 88
    vX = 120
    vH = 124
    vB1 = 122
    vS = 128
    nv = 160
    g("s_cmp_ge_u32 s2, 48")
    g("s_cbranch_scc1 ffn_end")
    stamp(g, 0)
    g("s_load_dwordx2 s[4:5], s[0:1], 0")
    g("s_load_dwordx4 s[8:11], s[0:1], 48")
    g("s_load_dwordx2 s[12:13], s[0:1], 64")
    g("s_load_dwordx2 s[14:15], s[0:1], 96")
    g(f"v_and_b32 v{vLane}, 63, v0")
    g(f"v_lshrrev_b32 v{vT}, 6, v0")
    g(f"v_readfirstlane_b32 s{sWave}, v{vT}")
    g("s_waitcnt lgkmcnt(0)")
    srd(g, sX, 4, 2560)
    srd(g, sW1, 8, 1966080)
    srd(g, sB1, 10, 3072)
    srd(g, sW2, 12, 1966080)
    srd(g, sWS, 14, WS_SIZE)
    g(f"v_lshlrev_b32 v{vT}, 4, v0")
    for rb in range(8):
        g(f"s_mov_b32 s{sOff}, {WS_HP + rb*5120}")
        g(f"buffer_load_dwordx4 v[{vHP+4*rb}:{vHP+4*rb+3}], v{vT}, s[{sWS}:{sWS+3}], s{sOff} offen")
    g(f"v_lshlrev_b32 v{vT2}, 3, v0")
    g(f"buffer_load_dwordx2 v[{vX}:{vX+1}], v{vT2}, s[{sX}:{sX+3}], 0 offen")
    g(f"v_and_b32 v{vT2}, 31, v{vLane}")
    g(f"v_lshlrev_b32 v{vT2}, 1, v{vT2}")
    g(f"s_lshl_b32 s{sT0}, s2, 6")
    g(f"buffer_load_ushort v{vB1}, v{vT2}, s[{sB1}:{sB1+3}], s{sT0} offen")
    g(f"v_lshrrev_b32 v{vT}, 2, v{vLane}")
    g(f"v_mul_u32_u24 v{vT}, 3072, v{vT}")
    g(f"v_and_b32 v{vT2}, 3, v{vLane}")
    g(f"v_lshlrev_b32 v{vT2}, 4, v{vT2}")
    g(f"v_add_u32 v{vT}, v{vT}, v{vT2}")
    g(f"s_mul_i32 s{sT1}, s{sWave}, {128*3072}")
    g(f"s_add_u32 s{sT1}, s{sT1}, s{sT0}")
    for i in range(8):
        g(f"s_add_u32 s{sOff}, s{sT1}, {i*16*3072}")
        g(f"buffer_load_dwordx4 v[{vW1+4*i}:{vW1+4*i+3}], v{vT}, s[{sW1}:{sW1+3}], s{sOff} offen")
    vRG, vCC = 5, 6
    g(f"v_mul_u32_u24 v{vRG}, 52429, v0")
    g(f"v_lshrrev_b32 v{vRG}, 22, v{vRG}")
    g(f"v_mul_u32_u24 v{vT}, 80, v{vRG}")
    g(f"v_sub_u32 v{vCC}, v0, v{vT}")
    g(f"v_mul_u32_u24 v{vT}, {8*1280}, v{vRG}")
    g(f"v_lshlrev_b32 v{vT2}, 4, v{vCC}")
    g(f"v_add_u32 v{vT}, v{vT}, v{vT2}")
    g(f"s_mul_i32 s{sT1}, s2, {32*1280}")
    for i in range(8):
        g(f"s_add_u32 s{sOff}, s{sT1}, {i*1280}")
        g(f"buffer_load_dwordx4 v[{vW2+4*i}:{vW2+4*i+3}], v{vT}, s[{sW2}:{sW2+3}], s{sOff} offen")
    stamp(g, 1)
    g("s_waitcnt vmcnt(17)")
    stamp(g, 2)
    for c in range(4):
        g(f"v_add_f32 v{vH+c}, v{vHP+c}, v{vHP+4+c}")
        for rb in range(2, 8):
            g(f"v_add_f32 v{vH+c}, v{vH+c}, v{vHP+4*rb+c}")
    bf16r2(g, vH, vH + 1, vT)
    bf16r2(g, vH + 2, vH + 3, vT)
    g(f"v_lshlrev_b32 v{vT}, 16, v{vX}")
    g(f"v_add_f32 v{vH}, v{vH}, v{vT}")
    g(f"v_and_b32 v{vT}, 0xffff0000, v{vX}")
    g(f"v_add_f32 v{vH+1}, v{vH+1}, v{vT}")
    g(f"v_lshlrev_b32 v{vT}, 16, v{vX+1}")
    g(f"v_add_f32 v{vH+2}, v{vH+2}, v{vT}")
    g(f"v_and_b32 v{vT}, 0xffff0000, v{vX+1}")
    g(f"v_add_f32 v{vH+3}, v{vH+3}, v{vT}")
    bf16r2(g, vH, vH + 1, vT)
    bf16r2(g, vH + 2, vH + 3, vT)
    g(f"v_lshlrev_b32 v{vT}, 4, v0")
    g(f"ds_write_b128 v{vT}, v[{vH}:{vH+3}] offset:{H}")
    g("s_cmp_eq_u32 s2, 0")
    g("s_cbranch_scc0 ffn_nohh")
    g(f"s_mov_b32 s{sOff}, {WS_HH}")
    g(f"buffer_store_dwordx4 v[{vH}:{vH+3}], v{vT}, s[{sWS}:{sWS+3}], s{sOff} offen")
    g.label("ffn_nohh")
    g("s_waitcnt lgkmcnt(0)")
    g("s_barrier")
    g(f"v_lshlrev_b32 v{vT}, 2, v{vLane}")
    for b in range(2):
        for j in range(10):
            g(f"ds_read_b32 v{vS+10*b+j}, v{vT} offset:{H + b*2560 + j*256}")
    g("s_waitcnt lgkmcnt(0)")
    vMb0, vSd0, vMb1, vSd1 = 148, 149, 150, 151
    ln_stats(g, list(range(vS, vS + 10)), 640, vMb0, vSd0, 152, 153, 154)
    ln_stats(g, list(range(vS + 10, vS + 20)), 640, vMb1, vSd1, 152, 153, 154)
    g(f"v_cmp_le_u32 vcc, 160, v0")
    g(f"s_mov_b64 s[{sMk}:{sMk+1}], vcc")
    g(f"v_cndmask_b32 v{vMb0}, v{vMb0}, v{vMb1}, s[{sMk}:{sMk+1}]")
    g(f"v_cndmask_b32 v{vSd0}, v{vSd0}, v{vSd1}, s[{sMk}:{sMk+1}]")
    for c in range(4):
        ln_apply(g, vH + c, vMb0, vSd0, 152, 153)
    g(f"v_cndmask_b32 v{vT2}, 0, 1, s[{sMk}:{sMk+1}]")
    g(f"v_mul_u32_u24 v{vT3}, 160, v{vT2}")
    g(f"v_sub_u32 v{vT3}, v0, v{vT3}")
    g(f"v_lshlrev_b32 v{vT3}, 5, v{vT3}")
    g(f"v_lshlrev_b32 v{vT2}, 2, v{vT2}")
    g(f"v_add_u32 v{vT3}, v{vT3}, v{vT2}")
    for c in range(4):
        g(f"ds_write_b32 v{vT3}, v{vH+c} offset:{HN + c*8}")
    g("s_waitcnt lgkmcnt(0)")
    g("s_barrier")
    stamp(g, 3)
    g(f"v_lshrrev_b32 v{vT}, 2, v{vLane}")
    g(f"s_lshl_b32 s{sT0}, s{sWave}, 7")
    g(f"v_add_u32 v{vT}, s{sT0}, v{vT}")
    g(f"v_lshlrev_b32 v{vT}, 3, v{vT}")
    vOv = vHP
    for i in range(8):
        g(f"ds_read_b64 v[{vOv+2*i}:{vOv+2*i+1}], v{vT} offset:{HN + i*128}")
    for c in range(16):
        g(f"v_mov_b32 v{vAcc+c}, 0")
    g("s_waitcnt lgkmcnt(0)")
    g("s_waitcnt vmcnt(8)")
    for i in range(8):
        for c in range(4):
            r = vW1 + 4 * i + c
            g(f"v_lshlrev_b32 v{vT2}, 16, v{r}")
            g(f"v_and_b32 v{vT3}, 0xffff0000, v{r}")
            g(f"v_fmac_f32 v{vAcc+2*c}, v{vT2}, v{vOv+2*i}")
            g(f"v_fmac_f32 v{vAcc+2*c+1}, v{vT3}, v{vOv+2*i}")
            g(f"v_fmac_f32 v{vAcc+8+2*c}, v{vT2}, v{vOv+2*i+1}")
            g(f"v_fmac_f32 v{vAcc+8+2*c+1}, v{vT3}, v{vOv+2*i+1}")
    stamp(g, 4)
    wave_reduce_64(g, vAcc, vLane, sWave, RED, RED2, vT, vT2, vT3, vW1, sT0)
    g("s_barrier")
    g(f"s_cmp_eq_u32 s{sWave}, 0")
    g("s_cbranch_scc0 ffn_h1_skip")
    g(f"v_lshlrev_b32 v{vT}, 2, v{vLane}")
    for w in range(5):
        g(f"ds_read_b32 v{vW1+w}, v{vT} offset:{RED2 + w*256}")
    g("s_waitcnt lgkmcnt(0)")
    for w in range(1, 5):
        g(f"v_add_f32 v{vW1}, v{vW1}, v{vW1+w}")
    bf16r(g, vW1, vW1)
    g(f"v_lshlrev_b32 v{vB1}, 16, v{vB1}")
    g(f"v_add_f32 v{vW1}, v{vW1}, v{vB1}")
    bf16r(g, vW1, vW1)
    g(f"v_max_f32 v{vW1}, 0, v{vW1}")
    g(f"v_mul_f32 v{vW1}, v{vW1}, v{vW1}")
    bf16r(g, vW1, vW1)
    g(f"v_and_b32 v{vT}, 31, v{vLane}")
    g(f"v_lshlrev_b32 v{vT}, 3, v{vT}")
    g(f"v_lshrrev_b32 v{vT2}, 5, v{vLane}")
    g(f"v_lshlrev_b32 v{vT2}, 2, v{vT2}")
    g(f"v_add_u32 v{vT}, v{vT}, v{vT2}")
    g(f"ds_write_b32 v{vT}, v{vW1} offset:{H1}")
    g("s_waitcnt lgkmcnt(0)")
    g.label("ffn_h1_skip")
    g("s_barrier")
    stamp(g, 5)
    g(f"v_lshlrev_b32 v{vT}, 6, v{vRG}")
    for i in range(8):
        g(f"ds_read_b64 v[{vOv+2*i}:{vOv+2*i+1}], v{vT} offset:{H1 + i*8}")
    for c in range(16):
        g(f"v_mov_b32 v{vAcc+c}, 0")
    g("s_waitcnt lgkmcnt(0)")
    g("s_waitcnt vmcnt(0)")
    for i in range(8):
        for c in range(4):
            r = vW2 + 4 * i + c
            g(f"v_lshlrev_b32 v{vT2}, 16, v{r}")
            g(f"v_and_b32 v{vT3}, 0xffff0000, v{r}")
            g(f"v_fmac_f32 v{vAcc+2*c}, v{vT2}, v{vOv+2*i}")
            g(f"v_fmac_f32 v{vAcc+2*c+1}, v{vT3}, v{vOv+2*i}")
            g(f"v_fmac_f32 v{vAcc+8+2*c}, v{vT2}, v{vOv+2*i+1}")
            g(f"v_fmac_f32 v{vAcc+8+2*c+1}, v{vT3}, v{vOv+2*i+1}")
    stamp(g, 6)
    g(f"v_mul_u32_u24 v{vT}, 5120, v{vRG}")
    g(f"v_lshlrev_b32 v{vT2}, 5, v{vCC}")
    g(f"v_add_u32 v{vT}, v{vT}, v{vT2}")
    for b in range(2):
        for q in range(2):
            r = vAcc + 8 * b + 4 * q
            g(f"ds_write_b128 v{vT}, v[{r}:{r+3}] offset:{R3 + b*2560 + q*16}")
    g("s_waitcnt lgkmcnt(0)")
    g("s_barrier")
    g(f"v_lshlrev_b32 v{vT}, 4, v0")
    for rg in range(4):
        g(f"ds_read_b128 v[{vW1+4*rg}:{vW1+4*rg+3}], v{vT} offset:{R3 + rg*5120}")
    g("s_waitcnt lgkmcnt(0)")
    for c in range(4):
        g(f"v_add_f32 v{vW1+c}, v{vW1+c}, v{vW1+4+c}")
        g(f"v_add_f32 v{vW1+8+c}, v{vW1+8+c}, v{vW1+12+c}")
        g(f"v_add_f32 v{vW1+c}, v{vW1+c}, v{vW1+8+c}")
    g(f"s_mul_i32 s{sT0}, s2, 5120")
    g(f"s_add_u32 s{sT0}, s{sT0}, {WS_FP}")
    g(f"buffer_store_dwordx4 v[{vW1}:{vW1+3}], v{vT}, s[{sWS}:{sWS+3}], s{sT0} offen")
    stamp(g, 7)
    if STAMPS:
        g("s_cmp_eq_u32 s2, STAMP_WG".replace("STAMP_WG", str(STAMP_WG)))
        g("s_cbranch_scc0 ffn_end")
    if STAMPS:
        g(f"s_cmp_eq_u32 s{sWave}, 0")
        g("s_cbranch_scc0 ffn_end")
    stamp_flush(g, 8, 100 if "ffn_end" != "fin_end" else 60)
    g.label("ffn_end", pad=False)
    g("s_endpgm")
    return L, nv, 48


def k_fin(g):
    L = "fin_kernel"
    header(g, L)
    sB2, sOut, sWS = 16, 20, 24
    sT0, sOff = 28, 29
    vE, vT, vH, vB = 1, 2, 3, 4
    vP = 8
    nv = 64
    g("s_cmp_ge_u32 s2, 20")
    g("s_cbranch_scc1 fin_end")
    stamp(g, 0)
    g("s_load_dwordx2 s[4:5], s[0:1], 72")
    g("s_load_dwordx2 s[6:7], s[0:1], 80")
    g("s_load_dwordx2 s[8:9], s[0:1], 96")
    g(f"s_lshl_b32 s{sT0}, s2, 6")
    g(f"v_add_u32 v{vE}, s{sT0}, v0")
    g(f"v_lshlrev_b32 v{vT}, 2, v{vE}")
    g("s_waitcnt lgkmcnt(0)")
    srd(g, sB2, 4, 1280)
    srd(g, sOut, 6, 2560)
    srd(g, sWS, 8, WS_SIZE)
    for j in range(48):
        g(f"s_mov_b32 s{sOff}, {WS_FP + j*5120}")
        g(f"buffer_load_dword v{vP+j}, v{vT}, s[{sWS}:{sWS+3}], s{sOff} offen")
    g(f"s_mov_b32 s{sOff}, {WS_HH}")
    g(f"buffer_load_dword v{vH}, v{vT}, s[{sWS}:{sWS+3}], s{sOff} offen")
    g(f"s_cmp_ge_u32 s2, 10")
    g(f"s_cselect_b32 s{sT0}, 640, 0")
    g(f"v_subrev_u32 v{vT}, s{sT0}, v{vE}")
    g(f"v_lshlrev_b32 v{vT}, 1, v{vT}")
    g(f"buffer_load_ushort v{vB}, v{vT}, s[{sB2}:{sB2+3}], 0 offen")
    g("s_waitcnt vmcnt(0)")
    for j in range(1, 48):
        g(f"v_add_f32 v{vP}, v{vP}, v{vP+j}")
    bf16r(g, vP, vP)
    g(f"v_lshlrev_b32 v{vB}, 16, v{vB}")
    g(f"v_add_f32 v{vP}, v{vP}, v{vB}")
    bf16r(g, vP, vP)
    g(f"v_add_f32 v{vP}, v{vP}, v{vH}")
    g(f"v_cvt_pk_bf16_f32 v{vP}, v{vP}, v{vP}")
    g(f"v_lshlrev_b32 v{vT}, 1, v{vE}")
    g(f"buffer_store_short v{vP}, v{vT}, s[{sOut}:{sOut+3}], 0 offen")
    stamp(g, 7)
    if STAMPS:
        g("s_cmp_eq_u32 s2, STAMP_WG".replace("STAMP_WG", str(STAMP_WG)))
        g("s_cbranch_scc0 fin_end")
    stamp_flush(g, 8, 100 if "fin_end" != "fin_end" else 60)
    g.label("fin_end", pad=False)
    g("s_endpgm")
    return L, nv, 40


def poll(g, name, issue, regs, vt):
    g.label(name)
    issue()
    g("s_waitcnt vmcnt(0)")
    rs = list(regs)
    g(f"v_max3_u32 v{vt}, v{rs[0]}, v{rs[1]}, v{rs[2]}")
    k = 3
    while k < len(rs):
        if k + 1 < len(rs):
            g(f"v_max3_u32 v{vt}, v{vt}, v{rs[k]}, v{rs[k+1]}")
            k += 2
        else:
            g(f"v_max_u32 v{vt}, v{vt}, v{rs[k]}")
            k += 1
    g(f"v_cmp_eq_u32 vcc, -1, v{vt}")
    g(f"s_cbranch_vccz {name}_done")
    g("s_sleep 2")
    g(f"s_branch {name}")
    g.label(name + "_done")


def light_poll(g, name, loads, vt, sleep=2):
    g.label(name)
    for vd, va, sr, so in loads:
        g(f"buffer_load_dword v{vd}, v{va}, s[{sr}:{sr+3}], {so} offen sc1")
    g("s_waitcnt vmcnt(0)")
    rs = [x[0] for x in loads]
    g(f"v_mov_b32 v{vt}, v{rs[0]}")
    for r in rs[1:]:
        g(f"v_max_u32 v{vt}, v{vt}, v{r}")
    g(f"v_cmp_eq_u32 vcc, -1, v{vt}")
    g(f"s_cbranch_vccz {name}_done")
    g(f"s_sleep {sleep}")
    g(f"s_branch {name}")
    g.label(name + "_done")


def half_reduce(g, v, t):
    op = "v_add_f32"
    g(f"{op}_dpp v{v}, v{v}, v{v} quad_perm:[1,0,3,2] row_mask:0xf bank_mask:0xf")
    g(f"{op}_dpp v{v}, v{v}, v{v} quad_perm:[2,3,0,1] row_mask:0xf bank_mask:0xf")
    g(f"{op}_dpp v{v}, v{v}, v{v} row_half_mirror row_mask:0xf bank_mask:0xf")
    g(f"{op}_dpp v{v}, v{v}, v{v} row_mirror row_mask:0xf bank_mask:0xf")
    g(f"v_mov_b32 v{t}, v{v}")
    g(f"v_permlane16_swap_b32 v{v}, v{t}")
    g(f"{op} v{v}, v{v}, v{t}")


def gemv_step(g, vW, vAcc, o0, o1, t2, t3):
    for c in range(4):
        r = vW + c
        g(f"v_lshlrev_b32 v{t2}, 16, v{r}")
        g(f"v_and_b32 v{t3}, 0xffff0000, v{r}")
        g(f"v_fmac_f32 v{vAcc+2*c}, v{t2}, v{o0}")
        g(f"v_fmac_f32 v{vAcc+2*c+1}, v{t3}, v{o0}")
        g(f"v_fmac_f32 v{vAcc+8+2*c}, v{t2}, v{o1}")
        g(f"v_fmac_f32 v{vAcc+8+2*c+1}, v{t3}, v{o1}")


def k_tail(g, LIGHT=0):
    L = "tail_kernel"
    header(g, L)
    sWave, sT0, sT1, sOff = 36, 37, 38, 39
    vLane, vT, vT2, vT3 = 1, 2, 3, 4
    g("s_cmp_ge_u32 s2, 228")
    g("s_cbranch_scc1 tail_end")
    stamp(g, 0)
    g("s_load_dwordx2 s[14:15], s[0:1], 96")
    g(f"v_and_b32 v{vLane}, 63, v0")
    g(f"v_lshrrev_b32 v{vT}, 6, v0")
    g(f"v_readfirstlane_b32 s{sWave}, v{vT}")
    g("s_cmp_ge_u32 s2, 208")
    g("s_cbranch_scc1 tail_fin")
    g("s_cmp_ge_u32 s2, 160")
    g("s_cbranch_scc1 tail_ffn")

    sWO, sWS = 16, 20
    sRb, sCb = 24, 25
    OC, RED, RED2 = 0, 8192, 32768
    vWoOff, vOo, vMo, vB = 5, 6, 7, 40
    vAcc = 8
    vML = 24
    vM, vF, vDen, vR = 32, 33, 34, 35
    vN = 36
    vO = 44
    vW = 60
    vOv = 92
    g("s_load_dwordx2 s[4:5], s[0:1], 32")
    g(f"s_mul_i32 s{sRb}, s2, 3277")
    g(f"s_lshr_b32 s{sRb}, s{sRb}, 16")
    g(f"s_mul_i32 s{sT0}, s{sRb}, 20")
    g(f"s_sub_u32 s{sCb}, s2, s{sT0}")
    g(f"v_lshrrev_b32 v{vT}, 2, v{vLane}")
    g(f"v_mul_u32_u24 v{vWoOff}, 1280, v{vT}")
    g(f"v_and_b32 v{vT2}, 3, v{vLane}")
    g(f"v_lshlrev_b32 v{vT2}, 4, v{vT2}")
    g(f"v_add_u32 v{vWoOff}, v{vWoOff}, v{vT2}")
    g(f"v_cmp_le_u32 vcc, 192, v0")
    g(f"v_cndmask_b32 v{vB}, 0, 1, vcc")
    g(f"v_mul_u32_u24 v{vT}, 192, v{vB}")
    g(f"v_sub_u32 v{vT}, v0, v{vT}")
    g(f"v_mul_u32_u24 v{vT2}, 1366, v{vT}")
    g(f"v_lshrrev_b32 v{vT2}, 16, v{vT2}")
    g(f"v_mul_u32_u24 v{vT3}, 48, v{vT2}")
    g(f"v_sub_u32 v{vT3}, v{vT}, v{vT3}")
    g(f"v_lshlrev_b32 v{vB}, 5, v{vB}")
    g(f"v_add_u32 v{vT2}, v{vT2}, v{vB}")
    g(f"v_lshlrev_b32 v{vMo}, 5, v{vT2}")
    g(f"v_mul_u32_u24 v{vOo}, 3072, v{vT2}")
    g(f"v_lshlrev_b32 v{vT3}, 4, v{vT3}")
    g(f"v_add_u32 v{vOo}, v{vOo}, v{vT3}")
    g("s_waitcnt lgkmcnt(0)")
    srd(g, sWS, 14, WS_SIZE)
    srd(g, sWO, 4, 7864320)
    g(f"s_mul_i32 s{sT0}, s{sRb}, {4*3072}")
    for sp in range(4):
        g(f"buffer_load_dwordx4 v[{vO+4*sp}:{vO+4*sp+3}], v{vOo}, s[{sWS}:{sWS+3}], s{sT0} offen offset:{WS_PART + sp*768}")
    g(f"s_lshl_b32 s{sT0}, s{sRb}, 7")
    g(f"s_add_u32 s{sT0}, s{sT0}, {WS_ML}")
    for q in range(2):
        g(f"buffer_load_dwordx4 v[{vML+4*q}:{vML+4*q+3}], v{vMo}, s[{sWS}:{sWS+3}], s{sT0} offen offset:{q*16}")
    g("s_barrier")
    g(f"s_mul_i32 s{sT0}, s{sRb}, {768*1280}")
    g(f"s_mul_i32 s{sT1}, s{sWave}, {128*1280}")
    g(f"s_add_u32 s{sT0}, s{sT0}, s{sT1}")
    g(f"s_lshl_b32 s{sT1}, s{sCb}, 6")
    g(f"s_add_u32 s{sT0}, s{sT0}, s{sT1}")
    for i in range(8):
        g(f"s_add_u32 s{sOff}, s{sT0}, {i*16*1280}")
        g(f"buffer_load_dwordx4 v[{vW+4*i}:{vW+4*i+3}], v{vWoOff}, s[{sWO}:{sWO+3}], s{sOff} offen")
    for c in range(16):
        g(f"v_mov_b32 v{vAcc+c}, 0")
    stamp(g, 1)
    g("s_waitcnt vmcnt(8)")
    stamp(g, 2)
    g(f"v_max_f32 v{vM}, v{vML}, v{vML+2}")
    g(f"v_max3_f32 v{vM}, v{vM}, v{vML+4}, v{vML+6}")
    for sp in range(4):
        g(f"v_sub_f32 v{vF}, v{vML+2*sp}, v{vM}")
        g(f"v_mul_f32 v{vF}, {LOG2E:#x}, v{vF}")
        g(f"v_exp_f32 v{vF}, v{vF}")
        if sp == 0:
            g(f"v_mul_f32 v{vDen}, v{vF}, v{vML+1}")
            for c in range(4):
                g(f"v_mul_f32 v{vN+c}, v{vF}, v{vO+c}")
        else:
            g(f"v_fmac_f32 v{vDen}, v{vF}, v{vML+2*sp+1}")
            for c in range(4):
                g(f"v_fmac_f32 v{vN+c}, v{vF}, v{vO+4*sp+c}")
    g(f"v_rcp_f32 v{vR}, v{vDen}")
    for c in range(4):
        g(f"v_mul_f32 v{vO+c}, v{vN+c}, v{vR}")
        g(f"v_fma_f32 v{vN+c}, -v{vO+c}, v{vDen}, v{vN+c}")
        g(f"v_fma_f32 v{vO+c}, v{vN+c}, v{vR}, v{vO+c}")
    bf16r2(g, vO, vO + 1, vT)
    bf16r2(g, vO + 2, vO + 3, vT)
    g(f"v_lshlrev_b32 v{vT}, 4, v0")
    g(f"ds_write_b128 v{vT}, v[{vO}:{vO+3}] offset:{OC}")
    g(f"v_lshrrev_b32 v{vT}, 2, v{vLane}")
    g(f"s_lshl_b32 s{sT0}, s{sWave}, 7")
    g(f"v_add_u32 v{vT}, s{sT0}, v{vT}")
    g(f"v_lshlrev_b32 v{vT}, 2, v{vT}")
    g("s_waitcnt lgkmcnt(0)")
    stamp(g, 6)
    g("s_barrier")
    stamp(g, 3)
    for i in range(8):
        g(f"ds_read_b32 v{vOv+2*i}, v{vT} offset:{OC + i*64}")
        g(f"ds_read_b32 v{vOv+2*i+1}, v{vT} offset:{OC + 3072 + i*64}")
    g("s_waitcnt lgkmcnt(0)")
    for i in range(8):
        g(f"s_waitcnt vmcnt({7-i})")
        gemv_step(g, vW + 4 * i, vAcc, vOv + 2 * i, vOv + 2 * i + 1, vT2, vT3)
    stamp(g, 4)
    wave_reduce_64(g, vAcc, vLane, sWave, RED, RED2, vT, vT2, vT3, vW, sT0)
    g("s_barrier")
    if STAMPS == 2:
        stamp(g, 5)
        g(f"s_cmp_eq_u32 s2, {STAMP_WG}")
        g("s_cbranch_scc0 wo_nostamp")
        g("s_load_dwordx2 s[60:61], s[0:1], 88")
        g("s_waitcnt lgkmcnt(0)")
        srd(g, 64, 60, 256)
        g(f"s_lshl_b32 s62, s{sWave}, 5")
        for i in range(8):
            g(f"v_mov_b32 v100, s{70+2*i}")
            g(f"v_mov_b32 v101, {i*4}")
            g(f"buffer_store_dword v100, v101, s[64:67], s62 offen")
        g("s_waitcnt vmcnt(0)")
        g.label("wo_nostamp")
    g(f"s_cmp_eq_u32 s{sWave}, 0")
    g("s_cbranch_scc0 tail_end")
    g(f"v_lshlrev_b32 v{vT}, 2, v{vLane}")
    for w in range(6):
        g(f"ds_read_b32 v{vW+w}, v{vT} offset:{RED2 + w*256}")
    g(f"v_lshrrev_b32 v{vT}, 5, v{vLane}")
    g(f"v_mul_u32_u24 v{vT}, 2560, v{vT}")
    g(f"v_and_b32 v{vT2}, 31, v{vLane}")
    g(f"v_lshlrev_b32 v{vT2}, 2, v{vT2}")
    g(f"v_add_u32 v{vT}, v{vT}, v{vT2}")
    g(f"s_mul_i32 s{sT0}, s{sRb}, 5120")
    g(f"s_lshl_b32 s{sT1}, s{sCb}, 7")
    g(f"s_add_u32 s{sT0}, s{sT0}, s{sT1}")
    g(f"s_add_u32 s{sT0}, s{sT0}, {WS_HP}")
    g("s_waitcnt lgkmcnt(0)")
    g(f"v_add_f32 v{vW}, v{vW}, v{vW+1}")
    g(f"v_add_f32 v{vW+2}, v{vW+2}, v{vW+3}")
    g(f"v_add_f32 v{vW+4}, v{vW+4}, v{vW+5}")
    g(f"v_add_f32 v{vW}, v{vW}, v{vW+2}")
    g(f"v_add_f32 v{vW}, v{vW}, v{vW+4}")
    g(f"buffer_store_dword v{vW}, v{vT}, s[{sWS}:{sWS+3}], s{sT0} offen sc1")
    stamp(g, 7)
    if STAMPS == 1:
        g(f"s_cmp_eq_u32 s2, {STAMP_WG}")
        g("s_cbranch_scc0 tail_end")
        stamp_flush(g, 8, 100, 0)
    g("s_endpgm")

    g.label("tail_ffn")
    g(f"s_cmp_eq_u32 s{sWave}, 5")
    g("s_cbranch_scc1 tail_end")
    sX, sW1, sB1, sW2, sWS = 16, 20, 24, 28, 32
    sFb = 40
    sMk = 42
    SUM, SUM2, HN, RED, RED2, H1, R3 = 0, 64, 5120, 10240, 30720, 32000, 32768
    vAcc = 8
    vW1 = 24
    vW2 = 56
    vHP = 88
    vX = 120
    vB1 = 122
    vH = 124
    vRG, vCC = 5, 6
    vHa = 7
    vS = 128
    vMb, vSd = 136, 137
    g("s_load_dwordx2 s[4:5], s[0:1], 0")
    g("s_load_dwordx4 s[8:11], s[0:1], 48")
    g("s_load_dwordx2 s[12:13], s[0:1], 64")
    g(f"s_sub_u32 s{sFb}, s2, 160")
    g(f"v_lshlrev_b32 v{vHa}, 4, v0")
    g("s_waitcnt lgkmcnt(0)")
    srd(g, sX, 4, 2560)
    srd(g, sW1, 8, 1966080)
    srd(g, sB1, 10, 3072)
    srd(g, sW2, 12, 1966080)
    srd(g, sWS, 14, WS_SIZE)
    g(f"v_lshlrev_b32 v{vT2}, 3, v0")
    g(f"buffer_load_dwordx2 v[{vX}:{vX+1}], v{vT2}, s[{sX}:{sX+3}], 0 offen")
    g(f"v_and_b32 v{vT2}, 31, v{vLane}")
    g(f"v_lshlrev_b32 v{vT2}, 1, v{vT2}")
    g(f"s_lshl_b32 s{sT0}, s{sFb}, 6")
    g(f"buffer_load_ushort v{vB1}, v{vT2}, s[{sB1}:{sB1+3}], s{sT0} offen")
    g(f"v_lshrrev_b32 v{vT}, 2, v{vLane}")
    g(f"v_mul_u32_u24 v{vT}, 3072, v{vT}")
    g(f"v_and_b32 v{vT2}, 3, v{vLane}")
    g(f"v_lshlrev_b32 v{vT2}, 4, v{vT2}")
    g(f"v_add_u32 v{vT}, v{vT}, v{vT2}")
    g(f"s_mul_i32 s{sT1}, s{sWave}, {128*3072}")
    g(f"s_add_u32 s{sT1}, s{sT1}, s{sT0}")
    for i in range(8):
        g(f"s_add_u32 s{sOff}, s{sT1}, {i*16*3072}")
        g(f"buffer_load_dwordx4 v[{vW1+4*i}:{vW1+4*i+3}], v{vT}, s[{sW1}:{sW1+3}], s{sOff} offen")
    g(f"v_mul_u32_u24 v{vRG}, 52429, v0")
    g(f"v_lshrrev_b32 v{vRG}, 22, v{vRG}")
    g(f"v_mul_u32_u24 v{vT}, 80, v{vRG}")
    g(f"v_sub_u32 v{vCC}, v0, v{vT}")
    g(f"v_mul_u32_u24 v{vT}, {8*1280}, v{vRG}")
    g(f"v_lshlrev_b32 v{vT2}, 4, v{vCC}")
    g(f"v_add_u32 v{vT}, v{vT}, v{vT2}")
    g(f"s_mul_i32 s{sT1}, s{sFb}, {32*1280}")
    for i in range(8):
        g(f"s_add_u32 s{sOff}, s{sT1}, {i*1280}")
        g(f"buffer_load_dwordx4 v[{vW2+4*i}:{vW2+4*i+3}], v{vT}, s[{sW2}:{sW2+3}], s{sOff} offen")
    g(f"v_cmp_le_u32 vcc, 160, v0")
    g(f"s_mov_b64 s[{sMk}:{sMk+1}], vcc")
    vBt, vSw, vSr, vHNa = 138, 139, 140, 141
    g(f"v_cndmask_b32 v{vBt}, 0, 1, s[{sMk}:{sMk+1}]")
    g(f"v_lshrrev_b32 v{vT}, 5, v0")
    g(f"v_mul_u32_u24 v{vT2}, 3, v{vBt}")
    g(f"v_add_u32 v{vT}, v{vT}, v{vT2}")
    g(f"v_lshlrev_b32 v{vSw}, 2, v{vT}")
    g(f"v_lshlrev_b32 v{vSr}, 5, v{vBt}")
    g(f"v_mul_u32_u24 v{vT3}, 160, v{vBt}")
    g(f"v_sub_u32 v{vT3}, v0, v{vT3}")
    g(f"v_lshlrev_b32 v{vT3}, 5, v{vT3}")
    g(f"v_lshlrev_b32 v{vT2}, 2, v{vBt}")
    g(f"v_add_u32 v{vHNa}, v{vT3}, v{vT2}")
    stamp(g, 1)
    if LIGHT:
        g(f"s_cmp_eq_u32 s{sWave}, 0")
        g("s_cbranch_scc0 ffn_nolight")
        la = [vS + 3, vS + 4, vS + 5]
        for k in range(3):
            g(f"v_add_u32 v{vT}, {k*64}, v{vLane}")
            g(f"v_min_u32 v{vT}, 159, v{vT}")
            g(f"v_mul_u32_u24 v{vT2}, 3277, v{vT}")
            g(f"v_lshrrev_b32 v{vT2}, 16, v{vT2}")
            g(f"v_mul_u32_u24 v{vT3}, 20, v{vT2}")
            g(f"v_sub_u32 v{vT3}, v{vT}, v{vT3}")
            g(f"v_mul_u32_u24 v{vT2}, 5120, v{vT2}")
            g(f"v_lshlrev_b32 v{vT3}, 7, v{vT3}")
            g(f"v_add_u32 v{la[k]}, v{vT2}, v{vT3}")
        g(f"s_mov_b32 s{sT1}, {WS_HP}")
        light_poll(g, "ffn_light", [(vS + k, la[k], sWS, f"s{sT1}") for k in range(3)], vT)
        g.label("ffn_nolight")
        g("s_barrier")

    def issue_hp():
        for rb in range(8):
            g(f"s_mov_b32 s{sOff}, {WS_HP + rb*5120}")
            g(f"buffer_load_dwordx4 v[{vHP+4*rb}:{vHP+4*rb+3}], v{vHa}, s[{sWS}:{sWS+3}], s{sOff} offen sc1")
    poll(g, "ffn_poll", issue_hp, range(vHP, vHP + 32), vT)
    stamp(g, 2)
    for c in range(4):
        g(f"v_add_f32 v{vH+c}, v{vHP+c}, v{vHP+4+c}")
        g(f"v_add_f32 v{vT}, v{vHP+8+c}, v{vHP+12+c}")
        g(f"v_add_f32 v{vT2}, v{vHP+16+c}, v{vHP+20+c}")
        g(f"v_add_f32 v{vT3}, v{vHP+24+c}, v{vHP+28+c}")
        g(f"v_add_f32 v{vH+c}, v{vH+c}, v{vT}")
        g(f"v_add_f32 v{vT2}, v{vT2}, v{vT3}")
        g(f"v_add_f32 v{vH+c}, v{vH+c}, v{vT2}")
    bf16r2(g, vH, vH + 1, vT)
    bf16r2(g, vH + 2, vH + 3, vT)
    g(f"v_lshlrev_b32 v{vT}, 16, v{vX}")
    g(f"v_add_f32 v{vH}, v{vH}, v{vT}")
    g(f"v_and_b32 v{vT}, 0xffff0000, v{vX}")
    g(f"v_add_f32 v{vH+1}, v{vH+1}, v{vT}")
    g(f"v_lshlrev_b32 v{vT}, 16, v{vX+1}")
    g(f"v_add_f32 v{vH+2}, v{vH+2}, v{vT}")
    g(f"v_and_b32 v{vT}, 0xffff0000, v{vX+1}")
    g(f"v_add_f32 v{vH+3}, v{vH+3}, v{vT}")
    bf16r2(g, vH, vH + 1, vT)
    bf16r2(g, vH + 2, vH + 3, vT)
    g(f"s_cmp_eq_u32 s{sFb}, 0")
    g("s_cbranch_scc0 ffn_nohh")
    g(f"s_mov_b32 s{sOff}, {WS_HH}")
    g(f"buffer_store_dwordx4 v[{vH}:{vH+3}], v{vHa}, s[{sWS}:{sWS+3}], s{sOff} offen sc1")
    g.label("ffn_nohh")
    g(f"v_add_f32 v{vT}, v{vH}, v{vH+1}")
    g(f"v_add_f32 v{vT2}, v{vH+2}, v{vH+3}")
    g(f"v_add_f32 v{vT}, v{vT}, v{vT2}")
    half_reduce(g, vT, vT2)
    g(f"ds_write_b32 v{vSw}, v{vT} offset:{SUM}")
    g("s_waitcnt lgkmcnt(0)")
    g("s_barrier")
    g(f"ds_read_b128 v[{vS}:{vS+3}], v{vSr} offset:{SUM}")
    g(f"ds_read_b32 v{vS+4}, v{vSr} offset:{SUM+16}")
    g("s_waitcnt lgkmcnt(0)")
    g(f"v_add_f32 v{vS}, v{vS}, v{vS+1}")
    g(f"v_add_f32 v{vS+2}, v{vS+2}, v{vS+3}")
    g(f"v_add_f32 v{vS}, v{vS}, v{vS+4}")
    g(f"v_add_f32 v{vS}, v{vS}, v{vS+2}")
    g(f"v_mul_f32 v{vS+5}, {INV640:#x}, v{vS}")
    g(f"v_sub_f32 v{vT2}, v{vH}, v{vS+5}")
    g(f"v_mul_f32 v{vT}, v{vT2}, v{vT2}")
    for c in range(1, 4):
        g(f"v_sub_f32 v{vT2}, v{vH+c}, v{vS+5}")
        g(f"v_fmac_f32 v{vT}, v{vT2}, v{vT2}")
    half_reduce(g, vT, vT2)
    g(f"ds_write_b32 v{vSw}, v{vT} offset:{SUM2}")
    bf16r(g, vMb, vS + 5)
    g("s_waitcnt lgkmcnt(0)")
    g("s_barrier")
    g(f"ds_read_b128 v[{vS}:{vS+3}], v{vSr} offset:{SUM2}")
    g(f"ds_read_b32 v{vS+4}, v{vSr} offset:{SUM2+16}")
    for c in range(4):
        g(f"v_sub_f32 v{vH+c}, v{vH+c}, v{vMb}")
    bf16r2(g, vH, vH + 1, vT)
    bf16r2(g, vH + 2, vH + 3, vT)
    g("s_waitcnt lgkmcnt(0)")
    g(f"v_add_f32 v{vS}, v{vS}, v{vS+1}")
    g(f"v_add_f32 v{vS+2}, v{vS+2}, v{vS+3}")
    g(f"v_add_f32 v{vS}, v{vS}, v{vS+4}")
    g(f"v_add_f32 v{vS}, v{vS}, v{vS+2}")
    g(f"v_mul_f32 v{vS}, {INV640:#x}, v{vS}")
    bf16r(g, vS, vS)
    g(f"v_add_f32 v{vS}, {EPS:#x}, v{vS}")
    bf16r(g, vS, vS)
    g(f"v_sqrt_f32 v{vS}, v{vS}")
    bf16r(g, vSd, vS)
    g(f"v_rcp_f32 v{vS+1}, v{vSd}")
    for c in range(4):
        g(f"v_mul_f32 v{vS+2}, v{vH+c}, v{vS+1}")
        g(f"v_fma_f32 v{vH+c}, -v{vS+2}, v{vSd}, v{vH+c}")
        g(f"v_fma_f32 v{vH+c}, v{vH+c}, v{vS+1}, v{vS+2}")
    bf16r2(g, vH, vH + 1, vT)
    bf16r2(g, vH + 2, vH + 3, vT)
    for c in range(4):
        g(f"ds_write_b32 v{vHNa}, v{vH+c} offset:{HN + c*8}")
    g(f"v_lshrrev_b32 v{vT}, 2, v{vLane}")
    g(f"s_lshl_b32 s{sT0}, s{sWave}, 7")
    g(f"v_add_u32 v{vT}, s{sT0}, v{vT}")
    g(f"v_lshlrev_b32 v{vT}, 3, v{vT}")
    for c in range(16):
        g(f"v_mov_b32 v{vAcc+c}, 0")
    g("s_waitcnt lgkmcnt(0)")
    g("s_barrier")
    stamp(g, 3)
    vOv = vHP
    for i in range(8):
        g(f"ds_read_b64 v[{vOv+2*i}:{vOv+2*i+1}], v{vT} offset:{HN + i*128}")
    for i in range(8):
        g(f"s_waitcnt lgkmcnt({7-i})")
        gemv_step(g, vW1 + 4 * i, vAcc, vOv + 2 * i, vOv + 2 * i + 1, vT2, vT3)
    stamp(g, 4)
    wave_reduce_64(g, vAcc, vLane, sWave, RED, RED2, vT, vT2, vT3, vW1, sT0)
    g("s_barrier")
    g(f"s_cmp_eq_u32 s{sWave}, 0")
    g("s_cbranch_scc0 ffn_h1_skip")
    g(f"v_lshlrev_b32 v{vT}, 2, v{vLane}")
    for w in range(5):
        g(f"ds_read_b32 v{vW1+w}, v{vT} offset:{RED2 + w*256}")
    g(f"v_lshlrev_b32 v{vB1}, 16, v{vB1}")
    g(f"v_and_b32 v{vT}, 31, v{vLane}")
    g(f"v_lshlrev_b32 v{vT}, 3, v{vT}")
    g(f"v_lshrrev_b32 v{vT2}, 5, v{vLane}")
    g(f"v_lshlrev_b32 v{vT2}, 2, v{vT2}")
    g(f"v_add_u32 v{vT}, v{vT}, v{vT2}")
    g("s_waitcnt lgkmcnt(0)")
    g(f"v_add_f32 v{vW1}, v{vW1}, v{vW1+1}")
    g(f"v_add_f32 v{vW1+2}, v{vW1+2}, v{vW1+3}")
    g(f"v_add_f32 v{vW1}, v{vW1}, v{vW1+4}")
    g(f"v_add_f32 v{vW1}, v{vW1}, v{vW1+2}")
    bf16r(g, vW1, vW1)
    g(f"v_add_f32 v{vW1}, v{vW1}, v{vB1}")
    bf16r(g, vW1, vW1)
    g(f"v_max_f32 v{vW1}, 0, v{vW1}")
    g(f"v_mul_f32 v{vW1}, v{vW1}, v{vW1}")
    bf16r(g, vW1, vW1)
    g(f"ds_write_b32 v{vT}, v{vW1} offset:{H1}")
    g("s_waitcnt lgkmcnt(0)")
    g.label("ffn_h1_skip")
    g(f"v_lshlrev_b32 v{vT}, 6, v{vRG}")
    for c in range(16):
        g(f"v_mov_b32 v{vAcc+c}, 0")
    g("s_barrier")
    stamp(g, 5)
    for i in range(0, 8, 2):
        g(f"ds_read_b128 v[{vOv+2*i}:{vOv+2*i+3}], v{vT} offset:{H1 + i*8}")
    g("s_waitcnt lgkmcnt(0)")
    for i in range(8):
        gemv_step(g, vW2 + 4 * i, vAcc, vOv + 2 * i, vOv + 2 * i + 1, vT2, vT3)
    stamp(g, 6)
    g(f"v_mul_u32_u24 v{vT}, 5120, v{vRG}")
    g(f"v_lshlrev_b32 v{vT2}, 5, v{vCC}")
    g(f"v_add_u32 v{vT}, v{vT}, v{vT2}")
    for b in range(2):
        for q in range(2):
            r = vAcc + 8 * b + 4 * q
            g(f"ds_write_b128 v{vT}, v[{r}:{r+3}] offset:{R3 + b*2560 + q*16}")
    g("s_waitcnt lgkmcnt(0)")
    g("s_barrier")
    for rg in range(4):
        g(f"ds_read_b128 v[{vW1+4*rg}:{vW1+4*rg+3}], v{vHa} offset:{R3 + rg*5120}")
    g(f"s_mul_i32 s{sT0}, s{sFb}, 5120")
    g(f"s_add_u32 s{sT0}, s{sT0}, {WS_FP}")
    g("s_waitcnt lgkmcnt(0)")
    for c in range(4):
        g(f"v_add_f32 v{vW1+c}, v{vW1+c}, v{vW1+4+c}")
        g(f"v_add_f32 v{vW1+8+c}, v{vW1+8+c}, v{vW1+12+c}")
        g(f"v_add_f32 v{vW1+c}, v{vW1+c}, v{vW1+8+c}")
    g(f"buffer_store_dwordx4 v[{vW1}:{vW1+3}], v{vHa}, s[{sWS}:{sWS+3}], s{sT0} offen sc1")
    stamp(g, 7)
    if STAMPS == 1:
        g(f"s_cmp_eq_u32 s2, 160")
        g("s_cbranch_scc0 tail_end")
        g(f"s_cmp_eq_u32 s{sWave}, 0")
        g("s_cbranch_scc0 tail_end")
        stamp_flush(g, 8, 100, 32)
    g("s_endpgm")

    g.label("tail_fin")
    sB2, sOut, sWS = 16, 20, 24
    sFi = 28
    FL = 0
    vE, vHh, vB2 = 5, 6, 7
    vP = 8
    g("s_load_dwordx2 s[4:5], s[0:1], 72")
    g("s_load_dwordx2 s[6:7], s[0:1], 80")
    g(f"s_sub_u32 s{sFi}, s2, 208")
    g(f"s_lshl_b32 s{sT0}, s{sFi}, 6")
    g(f"v_add_u32 v{vE}, s{sT0}, v{vLane}")
    g(f"v_lshlrev_b32 v{vT3}, 2, v{vE}")
    g("s_waitcnt lgkmcnt(0)")
    srd(g, sB2, 4, 1280)
    srd(g, sOut, 6, 2560)
    srd(g, sWS, 14, WS_SIZE)
    g(f"s_cmp_ge_u32 s{sFi}, 10")
    g(f"s_cselect_b32 s{sT0}, 640, 0")
    g(f"v_subrev_u32 v{vT}, s{sT0}, v{vE}")
    g(f"v_lshlrev_b32 v{vT}, 1, v{vT}")
    g(f"buffer_load_ushort v{vB2}, v{vT}, s[{sB2}:{sB2+3}], 0 offen")
    if LIGHT:
        g(f"s_cmp_eq_u32 s{sWave}, 0")
        g("s_cbranch_scc0 fin_nolight")
        g(f"v_min_u32 v{vT}, 47, v{vLane}")
        g(f"v_mul_u32_u24 v{vT2}, 5120, v{vT}")
        g(f"s_lshl_b32 s{sT1}, s{sFi}, 8")
        g(f"s_add_u32 s{sT1}, s{sT1}, {WS_FP}")
        light_poll(g, "fin_light", [(20, vT2, sWS, f"s{sT1}")], vT)
        g.label("fin_nolight")
        g("s_barrier")
    g(f"s_mul_i32 s{sT1}, s{sWave}, {8*5120}")
    g(f"s_add_u32 s{sT1}, s{sT1}, {WS_FP}")

    def issue_fp():
        for j in range(8):
            g(f"s_add_u32 s{sOff}, s{sT1}, {j*5120}")
            g(f"buffer_load_dword v{vP+j}, v{vT3}, s[{sWS}:{sWS+3}], s{sOff} offen sc1")
        g(f"s_mov_b32 s{sOff}, {WS_HH}")
        g(f"buffer_load_dword v{vP+8}, v{vT3}, s[{sWS}:{sWS+3}], s{sOff} offen sc1")
    poll(g, "fin_poll", issue_fp, range(vP, vP + 9), vT)
    stamp(g, 2)
    g(f"v_add_f32 v{vP}, v{vP}, v{vP+1}")
    g(f"v_add_f32 v{vP+2}, v{vP+2}, v{vP+3}")
    g(f"v_add_f32 v{vP+4}, v{vP+4}, v{vP+5}")
    g(f"v_add_f32 v{vP+6}, v{vP+6}, v{vP+7}")
    g(f"v_add_f32 v{vP}, v{vP}, v{vP+2}")
    g(f"v_add_f32 v{vP+4}, v{vP+4}, v{vP+6}")
    g(f"v_add_f32 v{vP}, v{vP}, v{vP+4}")
    g(f"v_lshlrev_b32 v{vT}, 2, v0")
    g(f"ds_write_b32 v{vT}, v{vP} offset:{FL}")
    g("s_waitcnt lgkmcnt(0)")
    g("s_barrier")
    g(f"s_cmp_eq_u32 s{sWave}, 0")
    g("s_cbranch_scc0 tail_end")
    for w in range(1, 6):
        g(f"ds_read_b32 v{vP+w}, v{vT} offset:{FL + w*256}")
    g(f"v_lshlrev_b32 v{vB2}, 16, v{vB2}")
    g("s_waitcnt lgkmcnt(0)")
    g(f"v_add_f32 v{vP}, v{vP}, v{vP+1}")
    g(f"v_add_f32 v{vP+2}, v{vP+2}, v{vP+3}")
    g(f"v_add_f32 v{vP+4}, v{vP+4}, v{vP+5}")
    g(f"v_add_f32 v{vP}, v{vP}, v{vP+2}")
    g(f"v_add_f32 v{vP}, v{vP}, v{vP+4}")
    bf16r(g, vP, vP)
    g(f"v_add_f32 v{vP}, v{vP}, v{vB2}")
    bf16r(g, vP, vP)
    g(f"v_add_f32 v{vP}, v{vP}, v{vP+8}")
    g(f"v_cvt_pk_bf16_f32 v{vP}, v{vP}, v{vP}")
    g(f"v_lshlrev_b32 v{vT}, 1, v{vE}")
    g(f"buffer_store_short v{vP}, v{vT}, s[{sOut}:{sOut+3}], 0 offen")
    stamp(g, 7)
    if STAMPS == 1:
        g(f"s_cmp_eq_u32 s2, 208")
        g("s_cbranch_scc0 tail_end")
        stamp_flush(g, 8, 100, 64)
    g.label("tail_end", pad=False)
    g("s_endpgm")
    return L, 144, 48


def build(NBUF=16, nt=True, PRIO=0, PREF=0, LIGHT=0, CK=64):
    g = Gen()
    head = open(f"cdna_kernels/{NAME}.s.ref").read().split("; Override launch")[0]
    g.raw(head.rstrip("\n"))
    g.raw("; @launch kernel=attn_kernel grid=(256,1,1) block=(1024,1,1) lds=98304")
    g.raw("; @launch kernel=tail_kernel grid=(228,1,1) block=(384,1,1) lds=53248")
    g.raw('.amdgcn_target "amdgcn-amd-amdhsa--gfx950"')
    g.raw(".text")
    descs = []
    for fn, kw in ((k_attn, dict(NBUF=NBUF, nt=nt, PRIO=PRIO, PREF=PREF, CK=CK)), (k_tail, dict(LIGHT=LIGHT))):
        g.wr = {}
        g.store_data = {}
        descs.append(fn(g, **kw))
    g.raw('.section .rodata,"a"')
    for L, nv, ns in descs:
        g.raw(".p2align 6")
        g.raw(descriptor(L, nv, ns).rstrip("\n"))
    return g.text()


if __name__ == "__main__":
    import struct
    import numpy as np
    assert struct.unpack("<I", struct.pack("<f", 192 ** -0.5))[0] == SCALE, hex(struct.unpack("<I", struct.pack("<f", 192 ** -0.5))[0])
    assert struct.unpack("<I", struct.pack("<f", 1 / 640))[0] == INV640
    assert struct.unpack("<I", struct.pack("<f", 1e-5))[0] == EPS
    for r in range(768):
        assert (r * 43691) >> 23 == r // 192
    for t in range(320):
        assert (t * 52429) >> 22 == t // 80
    for r in range(192):
        assert (r * 1366) >> 16 == r // 48
    for w in range(160):
        assert (w * 3277) >> 16 == w // 20
    out = sys.argv[1] if len(sys.argv) > 1 else f"cdna_kernels/{NAME}.s"
    kw = {}
    for a in sys.argv[2:]:
        k, v = a.split("=")
        if k == "STAMPS":
            STAMPS = int(v)
        elif k == "STAMP_WG":
            STAMP_WG = int(v)
        else:
            kw[k] = int(v)
    open(out, "w").write(build(**kw))
    print("wrote", out)
```

```python
import sys
from asmgen import Gen

NAME = "sequential_preLN__mha_block_cached__dense_activation_squared_relu__decode"

WS_PART = 0
WS_ML = 0x30000
WS_HP = 0x40000
WS_FP = 0x4A000
WS_HH = 0x86000
WS_SENT_N = 18240
WS_SIZE = 0x100000

LOG2E = 0x3FB8AA3B
SCALE = 0x3D93CD3A
INV640 = 0x3ACCCCCD
EPS = 0x3727C5AC


def srd(g, d, base, size):
    g(f"s_mov_b32 s{d}, s{base}")
    g(f"s_and_b32 s{d+1}, s{base+1}, 0xffff")
    g(f"s_mov_b32 s{d+2}, {size}")
    g(f"s_mov_b32 s{d+3}, 0x00020000")


def allreduce(g, op, v, t):
    g(f"{op}_dpp v{v}, v{v}, v{v} quad_perm:[1,0,3,2] row_mask:0xf bank_mask:0xf")
    g(f"{op}_dpp v{v}, v{v}, v{v} quad_perm:[2,3,0,1] row_mask:0xf bank_mask:0xf")
    g(f"{op}_dpp v{v}, v{v}, v{v} row_half_mirror row_mask:0xf bank_mask:0xf")
    g(f"{op}_dpp v{v}, v{v}, v{v} row_mirror row_mask:0xf bank_mask:0xf")
    g(f"v_mov_b32 v{t}, v{v}")
    g(f"v_permlane16_swap_b32 v{v}, v{t}")
    g(f"{op} v{v}, v{v}, v{t}")
    g(f"v_mov_b32 v{t}, v{v}")
    g(f"v_permlane32_swap_b32 v{v}, v{t}")
    g(f"{op} v{v}, v{v}, v{t}")


def bf16r(g, dst, src):
    g(f"v_cvt_pk_bf16_f32 v{dst}, v{src}, v{src}")
    g(f"v_lshlrev_b32 v{dst}, 16, v{dst}")


def bf16r2(g, a, b, t):
    g(f"v_cvt_pk_bf16_f32 v{t}, v{a}, v{b}")
    g(f"v_lshlrev_b32 v{a}, 16, v{t}")
    g(f"v_and_b32 v{b}, 0xffff0000, v{t}")


def divide(g, dst, num, den, r, e):
    g(f"v_rcp_f32 v{r}, v{den}")
    g(f"v_mul_f32 v{dst}, v{num}, v{r}")
    g(f"v_fma_f32 v{e}, -v{dst}, v{den}, v{num}")
    g(f"v_fma_f32 v{dst}, v{e}, v{r}, v{dst}")


def ln_stats(g, xe, n, mb, sd, t0, t1, t2):
    g(f"v_add_f32 v{t0}, v{xe[0]}, v{xe[1]}")
    for r in xe[2:]:
        g(f"v_add_f32 v{t0}, v{t0}, v{r}")
    allreduce(g, "v_add_f32", t0, t1)
    g(f"v_mul_f32 v{t0}, {INV640:#x}, v{t0}")
    g(f"v_sub_f32 v{t1}, v{xe[0]}, v{t0}")
    g(f"v_mul_f32 v{t2}, v{t1}, v{t1}")
    for r in xe[1:]:
        g(f"v_sub_f32 v{t1}, v{r}, v{t0}")
        g(f"v_fmac_f32 v{t2}, v{t1}, v{t1}")
    allreduce(g, "v_add_f32", t2, t1)
    g(f"v_mul_f32 v{t2}, {INV640:#x}, v{t2}")
    bf16r(g, mb, t0)
    bf16r(g, t2, t2)
    g(f"v_add_f32 v{t2}, {EPS:#x}, v{t2}")
    bf16r(g, t2, t2)
    g(f"v_sqrt_f32 v{t2}, v{t2}")
    bf16r(g, sd, t2)


def ln_apply(g, x, mb, sd, r, e):
    g(f"v_sub_f32 v{x}, v{x}, v{mb}")
    bf16r(g, x, x)
    g(f"v_mov_b32 v{e}, v{x}")
    g(f"v_rcp_f32 v{r}, v{sd}")
    g(f"v_mul_f32 v{x}, v{e}, v{r}")
    g(f"v_fma_f32 v{e}, -v{x}, v{sd}, v{e}")
    g(f"v_fma_f32 v{x}, v{e}, v{r}, v{x}")
    bf16r(g, x, x)


STAMPS = False
STAMP_WG = 0


def stamp(g, idx):
    if not STAMPS:
        return
    g(f"s_memrealtime s[{70+2*idx}:{71+2*idx}]")
    g("s_waitcnt lgkmcnt(0)")


def stamp_flush(g, n, vt=0, base=0):
    if not STAMPS:
        return
    g("s_load_dwordx2 s[60:61], s[0:1], 88")
    g("s_waitcnt lgkmcnt(0)")
    srd(g, 64, 60, 256)
    g(f"s_mov_b32 s62, 0")
    for i in range(n):
        g(f"v_mov_b32 v{vt}, s{70+2*i}")
        g(f"v_mov_b32 v{vt+1}, {base + i*4}")
        g(f"buffer_store_dword v{vt}, v{vt+1}, s[64:67], 0 offen")
    g("s_waitcnt vmcnt(0)")


def header(g, label):
    g.raw(".p2align 8")
    g.raw(f".type {label},@function")
    g.raw(f"{label}:")


def descriptor(label, nvgpr, nsgpr):
    acc = (nvgpr + 3) // 4 * 4
    if STAMPS:
        nsgpr = 100
    return f""".amdhsa_kernel {label}
  .amdhsa_next_free_vgpr {nvgpr}
  .amdhsa_next_free_sgpr {nsgpr}
  .amdhsa_accum_offset {acc}
  .amdhsa_group_segment_fixed_size 0
  .amdhsa_kernarg_size 104
  .amdhsa_user_sgpr_count 2
  .amdhsa_user_sgpr_kernarg_segment_ptr 1
  .amdhsa_system_sgpr_workgroup_id_x 1
  .amdhsa_float_denorm_mode_32 3
.end_amdhsa_kernel
"""


def k_attn(g, NBUF=16, nt=True, PRIO=0, PREF=0, CK=64):
    L = "attn_kernel"
    header(g, L)
    NT = {0: "", 1: " nt", 2: " sc1 nt", 3: " sc0 sc1 nt", 4: " sc0 nt", 5: " sc1"}[int(nt)]
    assert 64 % NBUF == 0
    sX, sK, sV, sWQ, sWS = 16, 20, 24, 28, 32
    sWave, sH, sB, sS, sT0, sT1, sKV, sOff, sSelLo, sSelHi = 36, 37, 38, 39, 40, 41, 42, 43, 44, 45
    sM1, sM0, sWqb, sRec = 46, 48, 50, 51
    sCur, sNext, sNextIdx = 52, 53, 54
    sEx = 56
    XN, QB, ML, CNT, PW, QP = 0, 2560, 3072, 3328, 4096, 8192
    vLane, vL32, vHalf, vKV, vT = 1, 2, 3, 4, 5
    vQ = 6
    vPA = 9
    vAcc = 10
    vS = 16
    vMr, vLr = 18, 19
    vP = 20
    vLA, vLB, vLC, vLD = 22, 24, 26, 28
    vT2, vT3 = 30, 31
    vPm = 32
    vPw, vPr = 34, 35
    vPPa, vPPb = 36, 40
    vRing = 44
    NPOOL = max(NBUF, 20)
    nv = vRing + 4 * NPOOL
    assert nv <= 128, nv

    g("s_cmp_ge_u32 s2, 256")
    g("s_cbranch_scc1 attn_end")
    if PRIO == 1:
        g("s_setprio 3")
    stamp(g, 0)
    g("s_load_dwordx2 s[4:5], s[0:1], 0")
    g("s_load_dwordx4 s[8:11], s[0:1], 8")
    g("s_load_dwordx2 s[12:13], s[0:1], 24")
    g("s_load_dwordx2 s[14:15], s[0:1], 96")
    g(f"v_and_b32 v{vLane}, 63, v0")
    g(f"v_and_b32 v{vL32}, 31, v0")
    g(f"v_bfe_u32 v{vHalf}, v0, 5, 1")
    g(f"v_lshrrev_b32 v{vT}, 6, v0")
    g(f"v_readfirstlane_b32 s{sWave}, v{vT}")
    g(f"s_and_b32 s{sT0}, s2, 7")
    g(f"s_lshr_b32 s{sT1}, s2, 3")
    g(f"s_lshl_b32 s{sH}, s{sT0}, 2")
    g(f"s_and_b32 s{sT0}, s{sT1}, 3")
    g(f"s_add_u32 s{sH}, s{sH}, s{sT0}")
    g(f"s_lshr_b32 s{sT1}, s{sT1}, 2")
    g(f"s_lshr_b32 s{sB}, s{sT1}, 2")
    g(f"s_and_b32 s{sS}, s{sT1}, 3")
    g(f"s_lshl_b32 s{sRec}, s{sB}, 5")
    g(f"s_add_u32 s{sRec}, s{sRec}, s{sH}")
    g(f"s_lshl_b32 s{sRec}, s{sRec}, 2")
    g(f"s_add_u32 s{sRec}, s{sRec}, s{sS}")
    g(f"s_mul_i32 s{sKV}, s{sRec}, 786432")
    g(f"s_mov_b32 s{sSelLo}, 0x05040100")
    g(f"s_mov_b32 s{sSelHi}, 0x07060302")
    g(f"s_mov_b32 s{sM1}, 0xcccccccc")
    g(f"s_mov_b32 s{sM1+1}, 0xcccccccc")
    g(f"s_mov_b32 s{sM0}, 0xaaaaaaaa")
    g(f"s_mov_b32 s{sM0+1}, 0xaaaaaaaa")
    g(f"s_mul_i32 s{sWqb}, s{sWave}, 491520")
    g(f"s_mul_i32 s{sT0}, s{sH}, 384")
    g(f"s_add_u32 s{sWqb}, s{sWqb}, s{sT0}")
    g(f"s_mul_i32 s{sCur}, s{sWave}, {CK*384}")
    g(f"s_add_u32 s{sCur}, s{sCur}, s{sKV}")
    g(f"v_mul_u32_u24 v{vT2}, 12, v{vL32}")
    g(f"v_mul_u32_u24 v{vKV}, 384, v{vHalf}")
    g(f"v_add_u32 v{vKV}, v{vKV}, v{vT2}")
    vWo = 42
    g(f"v_mul_u32_u24 v{vWo}, 245760, v{vHalf}")
    g(f"v_add_u32 v{vWo}, v{vWo}, v{vT2}")
    g(f"v_lshlrev_b32 v{vT}, 2, v{vLane}")
    g(f"v_mov_b32 v{vT2}, 16")
    g(f"v_mov_b32 v{vT3}, 0")
    g(f"ds_write_b32 v{vT3}, v{vT2} offset:{CNT}")
    if PRIO == 3:
        g(f"ds_write_b32 v{vT3}, v{vT3} offset:{CNT+4}")
        g(f"ds_write_b32 v{vT3}, v{vT3} offset:{CNT+8}")
    g("s_waitcnt lgkmcnt(0)")
    if PRIO == 3:
        g("s_barrier")
    srd(g, sX, 4, 2560)
    srd(g, sWQ, 12, 7864320)
    srd(g, sWS, 14, WS_SIZE)
    g(f"s_cmp_lt_u32 s{sWave}, 2")
    g("s_cbranch_scc0 attn_nosent")
    g(f"s_mul_i32 s{sT0}, s2, 72")
    g(f"v_add_u32 v{vT2}, s{sT0}, v0")
    g(f"v_cmp_gt_u32 vcc, 72, v0")
    g(f"s_mov_b64 s[{sEx}:{sEx+1}], vcc")
    g(f"v_cmp_gt_u32 vcc, {WS_SENT_N}, v{vT2}")
    g(f"s_and_b64 s[{sEx}:{sEx+1}], s[{sEx}:{sEx+1}], vcc")
    g(f"v_lshlrev_b32 v{vT2}, 4, v{vT2}")
    for c in range(4):
        g(f"v_mov_b32 v{vAcc+c}, -1")
    g(f"s_mov_b64 s[{sEx+2}:{sEx+3}], exec")
    g(f"s_mov_b64 exec, s[{sEx}:{sEx+1}]")
    g("s_cbranch_execz attn_sent_done")
    g(f"s_mov_b32 s{sT0}, {WS_HP}")
    g(f"buffer_store_dwordx4 v[{vAcc}:{vAcc+3}], v{vT2}, s[{sWS}:{sWS+3}], s{sT0} offen")
    g.label("attn_sent_done")
    g(f"s_mov_b64 exec, s[{sEx+2}:{sEx+3}]")
    g.label("attn_nosent")
    g(f"s_mul_i32 s{sT0}, s{sB}, 1280")
    vXd = 36
    for j in range(5):
        g(f"buffer_load_dword v{vXd+j}, v{vT}, s[{sX}:{sX+3}], s{sT0} offen offset:{j*256}")
    for j in range(20):
        g(f"s_add_u32 s{sOff}, s{sWqb}, {j*12288}")
        r = vRing + 4 * j
        g(f"buffer_load_dwordx3 v[{r}:{r+2}], v{vWo}, s[{sWQ}:{sWQ+3}], s{sOff} offen")
    srd(g, sK, 8, 201326592)
    srd(g, sV, 10, 201326592)

    def kv_load(t, base):
        s = sK if t < 32 else sV
        i = t % 32
        r = vRing + 4 * (t % NBUF)
        g(f"s_add_u32 s{sOff}, s{base}, {i*768}")
        g(f"buffer_load_dwordx3 v[{r}:{r+2}], v{vKV}, s[{s}:{s+3}], s{sOff} offen{NT}")

    stamp(g, 2)
    g(f"s_waitcnt vmcnt(20)")
    stamp(g, 4)
    xe = list(range(16, 26))
    for j in range(5):
        g(f"v_lshlrev_b32 v{xe[2*j]}, 16, v{vXd+j}")
        g(f"v_and_b32 v{xe[2*j+1]}, 0xffff0000, v{vXd+j}")
    vMb, vSd = 26, 27
    ln_stats(g, xe, 640, vMb, vSd, 28, 29, 31)
    for r in xe:
        ln_apply(g, r, vMb, vSd, 28, 29)
    g(f"v_lshlrev_b32 v{vT}, 3, v{vLane}")
    for j in range(5):
        g(f"ds_write_b64 v{vT}, v[{xe[2*j]}:{xe[2*j+1]}] offset:{XN + j*512}")
    g(f"v_lshrrev_b32 v{vT}, 5, v0")
    g(f"v_mul_u32_u24 v{vT}, 80, v{vT}")
    g("s_waitcnt lgkmcnt(0)")
    xr = 16
    for j in range(5):
        g(f"ds_read_b128 v[{xr+4*j}:{xr+4*j+3}], v{vT} offset:{XN + j*16}")
    for c in range(6):
        g(f"v_mov_b32 v{vAcc+c}, 0")
    g("s_waitcnt lgkmcnt(0)")
    stamp(g, 5)
    for j in range(20):
        if PRIO:
            g(f"s_waitcnt vmcnt({19 - j})")
        else:
            g(f"s_waitcnt vmcnt({19 - j + min(j, NBUF)})")
        r = vRing + 4 * j
        for c in range(3):
            g(f"v_lshlrev_b32 v{36}, 16, v{r+c}")
            g(f"v_and_b32 v{37}, 0xffff0000, v{r+c}")
            g(f"v_fmac_f32 v{vAcc+2*c}, v{36}, v{xr+j}")
            g(f"v_fmac_f32 v{vAcc+2*c+1}, v{37}, v{xr+j}")
        if j < NBUF and not PRIO:
            kv_load(j, sCur)
    if PRIO == 1:
        g("s_setprio 0")
        for j in range(NBUF):
            kv_load(j, sCur)
    stamp(g, 6)
    g(f"v_lshrrev_b32 v{vT3}, 5, v0")
    g(f"v_mul_u32_u24 v{vT}, 768, v{vT3}")
    g(f"v_mul_u32_u24 v{vT2}, 24, v{vL32}")
    g(f"v_add_u32 v{vPA}, v{vT}, v{vT2}")
    for c in range(3):
        g(f"ds_write_b64 v{vPA}, v[{vAcc+2*c}:{vAcc+2*c+1}] offset:{QP + c*8}")
    g("s_waitcnt lgkmcnt(0)")

    def lds_inc(off):
        g(f"s_mov_b64 s[{sEx}:{sEx+1}], exec")
        g("s_mov_b64 exec, 1")
        g(f"v_mov_b32 v{vT2}, 1")
        g(f"v_mov_b32 v{vT3}, 0")
        g(f"ds_add_u32 v{vT3}, v{vT2} offset:{off}")
        g(f"s_mov_b64 exec, s[{sEx}:{sEx+1}]")

    def lds_spin(name, off, n):
        g(f"v_mov_b32 v{vT3}, 0")
        g.label(name)
        g(f"ds_read_b32 v{vT2}, v{vT3} offset:{off}")
        g("s_waitcnt lgkmcnt(0)")
        g(f"v_readfirstlane_b32 s{sT0}, v{vT2}")
        g(f"s_cmp_ge_u32 s{sT0}, {n}")
        g(f"s_cbranch_scc1 {name}_done")
        g("s_sleep 1")
        g(f"s_branch {name}")
        g.label(name + "_done")

    if PRIO == 3:
        lds_inc(CNT + 4)
    else:
        g("s_barrier")
    if PRIO == 2:
        for j in range(NBUF):
            kv_load(j, sCur)
    g(f"s_cmp_lt_u32 s{sWave}, 3")
    g("s_cbranch_scc0 attn_q2_skip")
    if PRIO == 3:
        lds_spin("attn_spin1", CNT + 4, 16)
    g(f"v_lshlrev_b32 v{vT}, 2, v0")
    rr = 10
    for r in range(32):
        g(f"ds_read_b32 v{rr+r}, v{vT} offset:{QP + r*768}")
    g("s_waitcnt lgkmcnt(0)")
    for st in (1, 2, 4, 8, 16):
        for r in range(0, 32, 2 * st):
            g(f"v_add_f32 v{rr+r}, v{rr+r}, v{rr+r+st}")
    g(f"v_cvt_pk_bf16_f32 v{rr}, v{rr}, v{rr}")
    g(f"v_lshlrev_b32 v{vT}, 1, v0")
    g(f"ds_write_b16 v{vT}, v{rr} offset:{QB}")
    g("s_waitcnt lgkmcnt(0)")
    if PRIO == 3:
        lds_inc(CNT + 8)
    g.label("attn_q2_skip")
    if PRIO == 3:
        for j in range(NBUF):
            kv_load(j, sCur)
        lds_spin("attn_spin2", CNT + 8, 3)
    else:
        g("s_barrier")
    g(f"v_mul_u32_u24 v{vT}, 12, v{vL32}")
    for c in range(3):
        g(f"ds_read_b32 v{vQ+c}, v{vT} offset:{QB + 4*c}")
    g(f"v_bfrev_b32 v{vT2}, v{vL32}")
    g(f"v_lshrrev_b32 v{vT2}, 26, v{vT2}")
    if CK == 32:
        g(f"v_and_b32 v{vT2}, 30, v{vT2}")
    g(f"v_lshlrev_b32 v{vT3}, 6, v{vHalf}")
    g(f"s_lshl_b32 s{sT0}, s{sWave}, 7")
    g(f"v_add_u32 v{vPr}, s{sT0}, v{vT3}")
    g(f"v_add_u32 v{vPw}, v{vPr}, v{vT2}")
    for c in range(6):
        g(f"v_mov_b32 v{vAcc+c}, 0")
    g(f"v_mov_b32 v{vMr}, 0xff800000")
    g(f"v_mov_b32 v{vLr}, 0")
    g("s_waitcnt lgkmcnt(0)")
    stamp(g, 1)

    if CK == 32:
        assert NBUF == 16
        g.label("attn_loop")
        g(f"s_mov_b64 s[{sEx}:{sEx+1}], exec")
        g("s_mov_b64 exec, 1")
        g(f"v_mov_b32 v{vT2}, 1")
        g(f"v_mov_b32 v{vT3}, 0")
        g(f"ds_add_rtn_u32 v{vS+1}, v{vT3}, v{vT2} offset:{CNT}")
        g(f"s_mov_b64 exec, s[{sEx}:{sEx+1}]")

        def ld(t, base):
            sr = sK if t < 16 else sV
            i = t % 16
            r = vRing + 4 * (t % NBUF)
            g(f"s_add_u32 s{sOff}, s{base}, {i*768}")
            g(f"buffer_load_dwordx3 v[{r}:{r+2}], v{vKV}, s[{sr}:{sr+3}], s{sOff} offen{NT}")
        for t in range(16):
            r = vRing + 4 * t
            P = vP + (t & 1)
            g(f"s_waitcnt vmcnt({NBUF-1})")
            g(f"v_dot2_f32_bf16 v{P}, v{r}, v{vQ}, 0")
            g(f"v_dot2_f32_bf16 v{P}, v{r+1}, v{vQ+1}, v{P}")
            g(f"v_dot2_f32_bf16 v{P}, v{r+2}, v{vQ+2}, v{P}")
            ld(t + 16, sCur)
            if t & 1:
                g(f"v_permlane16_swap_b32 v{vP}, v{vP+1}")
                g(f"v_add_f32 v{vLA+((t>>1)&1)}, v{vP}, v{vP+1}")
            if (t & 3) == 3:
                d = vLB + ((t >> 2) & 1)
                g(f"v_add_f32_dpp v{d}, v{vLA}, v{vLA} row_ror:8 row_mask:0xf bank_mask:0x3")
                g(f"v_add_f32_dpp v{d}, v{vLA+1}, v{vLA+1} row_ror:8 row_mask:0xf bank_mask:0xc")
            if (t & 7) == 7:
                d = vLC + ((t >> 3) & 1)
                g(f"v_add_f32_dpp v{d}, v{vLB}, v{vLB} row_shl:4 row_mask:0xf bank_mask:0x5")
                g(f"v_add_f32_dpp v{d}, v{vLB+1}, v{vLB+1} row_shr:4 row_mask:0xf bank_mask:0xa")
            if t == 15:
                g(f"v_add_f32_dpp v{vT2}, v{vLC}, v{vLC} quad_perm:[2,3,0,1] row_mask:0xf bank_mask:0xf")
                g(f"v_add_f32_dpp v{vT3}, v{vLC+1}, v{vLC+1} quad_perm:[2,3,0,1] row_mask:0xf bank_mask:0xf")
                g(f"v_cndmask_b32 v{vLD}, v{vT2}, v{vT3}, s[{sM1}:{sM1+1}]")
                g(f"v_add_f32_dpp v{vS}, v{vLD}, v{vLD} quad_perm:[1,0,3,2] row_mask:0xf bank_mask:0xf")
        bf16r(g, vS, vS)
        g(f"v_mul_f32 v{vS}, {SCALE:#x}, v{vS}")
        bf16r(g, vS, vS)
        vCm, vAl = vLA, vLA + 1
        g(f"v_mov_b32 v{vCm}, v{vS}")
        allreduce(g, "v_max_f32", vCm, vT2)
        g(f"v_max_f32 v{vCm}, v{vCm}, v{vMr}")
        g(f"v_sub_f32 v{vAl}, v{vMr}, v{vCm}")
        g(f"v_mul_f32 v{vAl}, {LOG2E:#x}, v{vAl}")
        g(f"v_exp_f32 v{vAl}, v{vAl}")
        g(f"v_sub_f32 v{vS}, v{vS}, v{vCm}")
        g(f"v_mul_f32 v{vS}, {LOG2E:#x}, v{vS}")
        g(f"v_exp_f32 v{vS}, v{vS}")
        g(f"v_mov_b32 v{vMr}, v{vCm}")
        g(f"v_fma_f32 v{vLr}, v{vLr}, v{vAl}, v{vS}")
        g(f"v_cvt_pk_bf16_f32 v{vT}, v{vS}, v{vS}")
        g(f"ds_write_b16 v{vPw}, v{vT} offset:{PW}")
        for c in range(6):
            g(f"v_mul_f32 v{vAcc+c}, v{vAcc+c}, v{vAl}")
        g("s_waitcnt lgkmcnt(0)")
        g(f"ds_read_b128 v[{vPPa}:{vPPa+3}], v{vPr} offset:{PW}")
        g(f"ds_read_b128 v[{vPPb}:{vPPb+3}], v{vPr} offset:{PW+16}")
        g(f"v_readfirstlane_b32 s{sNextIdx}, v{vS+1}")
        g(f"s_mul_i32 s{sNext}, s{sNextIdx}, 12288")
        g(f"s_add_u32 s{sNext}, s{sNext}, s{sKV}")
        g(f"s_cmp_lt_u32 s{sNextIdx}, 64")
        g(f"s_cselect_b32 s{sNext}, s{sNext}, 0x80000000")
        for j in range(8):
            t = 16 + 2 * j
            q4 = j // 4
            PP = (vPPa if q4 == 0 else vPPb) + (j % 4)
            if j % 4 == 0:
                g("s_waitcnt lgkmcnt(1)" if q4 == 0 else "s_waitcnt lgkmcnt(0)")
            ra = vRing + 4 * (t % NBUF)
            rb = vRing + 4 * ((t + 1) % NBUF)
            g(f"s_waitcnt vmcnt({NBUF-2})")
            for c in range(3):
                g(f"v_perm_b32 v{vPm}, v{rb+c}, v{ra+c}, s{sSelLo}")
                g(f"v_perm_b32 v{vPm+1}, v{rb+c}, v{ra+c}, s{sSelHi}")
                g(f"v_dot2_f32_bf16 v{vAcc+2*c}, v{vPm}, v{PP}, v{vAcc+2*c}")
                g(f"v_dot2_f32_bf16 v{vAcc+2*c+1}, v{vPm+1}, v{PP}, v{vAcc+2*c+1}")
            ld(t - 16, sNext)
            ld(t + 1 - 16, sNext)
        g(f"s_mov_b32 s{sCur}, s{sNext}")
        g(f"s_cmp_lt_u32 s{sNextIdx}, 64")
        g("s_cbranch_scc1 attn_loop")
        g(f"v_mul_f32 v{vLr}, 0.5, v{vLr}")
        stamp(g, 3)
    else:
        g.label("attn_loop")
        g(f"s_mov_b64 s[{sEx}:{sEx+1}], exec")
        g("s_mov_b64 exec, 1")
        g(f"v_mov_b32 v{vT2}, 1")
        g(f"v_mov_b32 v{vT3}, 0")
        g(f"ds_add_rtn_u32 v{vS+1}, v{vT3}, v{vT2} offset:{CNT}")
        g(f"s_mov_b64 exec, s[{sEx}:{sEx+1}]")
        for t in range(32):
            i5 = t
            r = vRing + 4 * (t % NBUF)
            P = vP + (t & 1)
            g(f"s_waitcnt vmcnt({NBUF-1})")
            g(f"v_dot2_f32_bf16 v{P}, v{r}, v{vQ}, 0")
            g(f"v_dot2_f32_bf16 v{P}, v{r+1}, v{vQ+1}, v{P}")
            g(f"v_dot2_f32_bf16 v{P}, v{r+2}, v{vQ+2}, v{P}")
            kv_load(t + NBUF, sCur)
            if i5 & 1:
                g(f"v_permlane16_swap_b32 v{vP}, v{vP+1}")
                g(f"v_add_f32 v{vLA+((i5>>1)&1)}, v{vP}, v{vP+1}")
            if (i5 & 3) == 3:
                d = vLB + ((i5 >> 2) & 1)
                g(f"v_add_f32_dpp v{d}, v{vLA}, v{vLA} row_ror:8 row_mask:0xf bank_mask:0x3")
                g(f"v_add_f32_dpp v{d}, v{vLA+1}, v{vLA+1} row_ror:8 row_mask:0xf bank_mask:0xc")
            if (i5 & 7) == 7:
                d = vLC + ((i5 >> 3) & 1)
                g(f"v_add_f32_dpp v{d}, v{vLB}, v{vLB} row_shl:4 row_mask:0xf bank_mask:0x5")
                g(f"v_add_f32_dpp v{d}, v{vLB+1}, v{vLB+1} row_shr:4 row_mask:0xf bank_mask:0xa")
            if (i5 & 15) == 15:
                d = vLD + ((i5 >> 4) & 1)
                g(f"v_add_f32_dpp v{vT2}, v{vLC}, v{vLC} quad_perm:[2,3,0,1] row_mask:0xf bank_mask:0xf")
                g(f"v_add_f32_dpp v{vT3}, v{vLC+1}, v{vLC+1} quad_perm:[2,3,0,1] row_mask:0xf bank_mask:0xf")
                g(f"v_cndmask_b32 v{d}, v{vT2}, v{vT3}, s[{sM1}:{sM1+1}]")
            if i5 == 31:
                g(f"v_add_f32_dpp v{vT2}, v{vLD}, v{vLD} quad_perm:[1,0,3,2] row_mask:0xf bank_mask:0xf")
                g(f"v_add_f32_dpp v{vT3}, v{vLD+1}, v{vLD+1} quad_perm:[1,0,3,2] row_mask:0xf bank_mask:0xf")
                g(f"v_cndmask_b32 v{vS}, v{vT2}, v{vT3}, s[{sM0}:{sM0+1}]")
        bf16r(g, vS, vS)
        g(f"v_mul_f32 v{vS}, {SCALE:#x}, v{vS}")
        bf16r(g, vS, vS)
        vCm, vAl = vLA, vLA + 1
        g(f"v_mov_b32 v{vCm}, v{vS}")
        allreduce(g, "v_max_f32", vCm, vT2)
        g(f"v_max_f32 v{vCm}, v{vCm}, v{vMr}")
        g(f"v_sub_f32 v{vAl}, v{vMr}, v{vCm}")
        g(f"v_mul_f32 v{vAl}, {LOG2E:#x}, v{vAl}")
        g(f"v_exp_f32 v{vAl}, v{vAl}")
        g(f"v_sub_f32 v{vS}, v{vS}, v{vCm}")
        g(f"v_mul_f32 v{vS}, {LOG2E:#x}, v{vS}")
        g(f"v_exp_f32 v{vS}, v{vS}")
        g(f"v_mov_b32 v{vMr}, v{vCm}")
        g(f"v_fma_f32 v{vLr}, v{vLr}, v{vAl}, v{vS}")
        g(f"v_cvt_pk_bf16_f32 v{vT}, v{vS}, v{vS}")
        g(f"ds_write_b16 v{vPw}, v{vT} offset:{PW}")
        for c in range(6):
            g(f"v_mul_f32 v{vAcc+c}, v{vAcc+c}, v{vAl}")
        g("s_waitcnt lgkmcnt(0)")
        g(f"ds_read_b128 v[{vPPa}:{vPPa+3}], v{vPr} offset:{PW}")
        g(f"ds_read_b128 v[{vPPb}:{vPPb+3}], v{vPr} offset:{PW+16}")
        g(f"v_readfirstlane_b32 s{sNextIdx}, v{vS+1}")
        g(f"s_mul_i32 s{sNext}, s{sNextIdx}, 24576")
        g(f"s_add_u32 s{sNext}, s{sNext}, s{sKV}")
        g(f"s_cmp_lt_u32 s{sNextIdx}, 32")
        g(f"s_cselect_b32 s{sNext}, s{sNext}, 0x80000000")
        for j in range(16):
            t = 32 + 2 * j
            q4 = j // 4
            PP = (vPPa if (q4 & 1) == 0 else vPPb) + (j % 4)
            if j % 4 == 0:
                if q4 + 1 < 4:
                    g("s_waitcnt lgkmcnt(1)")
                else:
                    g("s_waitcnt lgkmcnt(0)")
            ra = vRing + 4 * (t % NBUF)
            rb = vRing + 4 * ((t + 1) % NBUF)
            g(f"s_waitcnt vmcnt({NBUF-2})")
            for c in range(3):
                g(f"v_perm_b32 v{vPm}, v{rb+c}, v{ra+c}, s{sSelLo}")
                g(f"v_perm_b32 v{vPm+1}, v{rb+c}, v{ra+c}, s{sSelHi}")
                g(f"v_dot2_f32_bf16 v{vAcc+2*c}, v{vPm}, v{PP}, v{vAcc+2*c}")
                g(f"v_dot2_f32_bf16 v{vAcc+2*c+1}, v{vPm+1}, v{PP}, v{vAcc+2*c+1}")
            for tt in (t + NBUF, t + 1 + NBUF):
                if tt < 64:
                    kv_load(tt, sCur)
                else:
                    kv_load(tt - 64, sNext)
            if j % 4 == 3 and q4 + 2 < 4:
                d = vPPa if (q4 & 1) == 0 else vPPb
                g(f"ds_read_b128 v[{d}:{d+3}], v{vPr} offset:{PW + (q4+2)*16}")
        g(f"s_mov_b32 s{sCur}, s{sNext}")
        g(f"s_cmp_lt_u32 s{sNextIdx}, 32")
        g("s_cbranch_scc1 attn_loop")
        stamp(g, 3)
    allreduce(g, "v_add_f32", vLr, vT2)
    for c in range(3):
        g(f"ds_write_b64 v{vPA}, v[{vAcc+2*c}:{vAcc+2*c+1}] offset:{QP + c*8}")
    g(f"s_lshl_b32 s{sT0}, s{sWave}, 3")
    g(f"v_mov_b32 v{vT}, s{sT0}")
    g(f"ds_write_b64 v{vT}, v[{vMr}:{vMr+1}] offset:{ML}")
    g("s_waitcnt vmcnt(0) lgkmcnt(0)")
    g("s_barrier")
    g(f"s_cmp_lt_u32 s{sWave}, 3")
    g("s_cbranch_scc0 attn_pref" if PREF else "s_cbranch_scc0 attn_end")
    rm = vRing
    ro = vRing + 32
    g(f"v_mov_b32 v{vT}, 0")
    for w in range(0, 16, 2):
        g(f"ds_read_b128 v[{rm+2*w}:{rm+2*w+3}], v{vT} offset:{ML + 8*w}")
    g(f"v_lshlrev_b32 v{vT}, 2, v0")
    for r in range(32):
        g(f"ds_read_b32 v{ro+r}, v{vT} offset:{QP + r*768}")
    g("s_waitcnt lgkmcnt(0)")
    vMM, vLL, vO, vF = 16, 17, 18, 19
    g(f"v_max_f32 v{vMM}, v{rm}, v{rm+2}")
    for w in range(2, 16):
        g(f"v_max_f32 v{vMM}, v{vMM}, v{rm+2*w}")
    g(f"v_mov_b32 v{vLL}, 0")
    g(f"v_mov_b32 v{vO}, 0")
    for w in range(16):
        g(f"v_sub_f32 v{vF}, v{rm+2*w}, v{vMM}")
        g(f"v_mul_f32 v{vF}, {LOG2E:#x}, v{vF}")
        g(f"v_exp_f32 v{vF}, v{vF}")
        g(f"v_add_f32 v{vT2}, v{ro+2*w}, v{ro+2*w+1}")
        g(f"v_fmac_f32 v{vLL}, v{vF}, v{rm+2*w+1}")
        g(f"v_fmac_f32 v{vO}, v{vF}, v{vT2}")
    g(f"s_mul_i32 s{sT0}, s{sRec}, 768")
    g(f"buffer_store_dword v{vO}, v{vT}, s[{sWS}:{sWS+3}], s{sT0} offen offset:{WS_PART}")
    g(f"v_mov_b32 v{vT}, 0")
    g(f"s_lshl_b32 s{sT0}, s{sRec}, 3")
    g(f"s_add_u32 s{sT0}, s{sT0}, {WS_ML}")
    g(f"buffer_store_dwordx2 v[{vMM}:{vMM+1}], v{vT}, s[{sWS}:{sWS+3}], s{sT0} offen")
    stamp(g, 7)
    if STAMPS:
        g("v_mov_b32 v100, s70")
        g("v_mov_b32 v101, s84")
        g("s_lshl_b32 s62, s2, 3")
        g("s_add_u32 s62, s62, 0xA0000")
        g("v_mov_b32 v102, 0")
        g(f"buffer_store_dwordx2 v[100:101], v102, s[{sWS}:{sWS+3}], s62 offen")
        g("s_cmp_eq_u32 s2, STAMP_WG".replace("STAMP_WG", str(STAMP_WG)))
        g("s_cbranch_scc0 attn_end")
        g(f"s_cmp_eq_u32 s{sWave}, 0")
        g("s_cbranch_scc0 attn_end")
    stamp_flush(g, 8, 100)
    if PREF:
        g("s_endpgm")
        g.label("attn_pref")
        g("s_load_dwordx2 s[4:5], s[0:1], 32")
        g("s_load_dwordx2 s[6:7], s[0:1], 48")
        g("s_load_dwordx2 s[8:9], s[0:1], 64")
        g(f"s_sub_u32 s{sT0}, s{sWave}, 3")
        g(f"v_lshlrev_b32 v{vT}, 4, v{vLane}")
        g("s_waitcnt lgkmcnt(0)")
        srd(g, 16, 4, 7864320)
        srd(g, 20, 6, 1966080)
        srd(g, 24, 8, 1966080)
        g(f"s_cmp_lt_u32 s{sT0}, 10")
        g("s_cbranch_scc0 attn_pref2")
        g(f"s_mul_i32 s{sT1}, s2, 30720")
        g(f"s_mul_i32 s{sOff}, s{sT0}, 3072")
        g(f"s_add_u32 s{sT1}, s{sT1}, s{sOff}")
        for i in range(3):
            g(f"buffer_load_dwordx4 v[{vRing+4*i}:{vRing+4*i+3}], v{vT}, s[16:19], s{sT1} offen offset:{i*1024}")
        g("s_endpgm")
        g.label("attn_pref2")
        g(f"s_mul_i32 s{sT1}, s2, 7680")
        g(f"s_cmp_eq_u32 s{sT0}, 10")
        g("s_cbranch_scc0 attn_pref3")
        for i in range(8):
            g(f"s_add_u32 s{sOff}, s{sT1}, {i*1024}")
            g(f"buffer_load_dwordx4 v[{vRing+4*i}:{vRing+4*i+3}], v{vT}, s[20:23], s{sOff} offen")
        g("s_endpgm")
        g.label("attn_pref3")
        g(f"s_cmp_eq_u32 s{sT0}, 11")
        g("s_cbranch_scc0 attn_end")
        for i in range(8):
            g(f"s_add_u32 s{sOff}, s{sT1}, {i*1024}")
            g(f"buffer_load_dwordx4 v[{vRing+4*i}:{vRing+4*i+3}], v{vT}, s[24:27], s{sOff} offen")
    g.label("attn_end", pad=False)
    g("s_endpgm")
    return L, nv, 60


def k_wo(g):
    L = "wo_kernel"
    header(g, L)
    sWO, sWS = 16, 20
    sRb, sCb, sWave, sT0, sT1, sOff = 24, 25, 26, 27, 28, 29
    OC, RED, RED2 = 0, 8192, 24576
    vLane, vT, vT2, vT3 = 1, 2, 3, 4
    vWoOff = 5
    vAcc = 8
    vW = 24
    vC = 72
    vOo, vMo = 144, 150
    nv = 160
    g("s_cmp_ge_u32 s2, 160")
    g("s_cbranch_scc1 wo_end")
    stamp(g, 0)
    g("s_load_dwordx2 s[4:5], s[0:1], 32")
    g("s_load_dwordx2 s[6:7], s[0:1], 96")
    g(f"v_and_b32 v{vLane}, 63, v0")
    g(f"v_lshrrev_b32 v{vT}, 6, v0")
    g(f"v_readfirstlane_b32 s{sWave}, v{vT}")
    g(f"s_mul_i32 s{sRb}, s2, 3277")
    g(f"s_lshr_b32 s{sRb}, s{sRb}, 16")
    g(f"s_mul_i32 s{sT0}, s{sRb}, 20")
    g(f"s_sub_u32 s{sCb}, s2, s{sT0}")
    g(f"v_lshrrev_b32 v{vT}, 2, v{vLane}")
    g(f"v_mul_u32_u24 v{vWoOff}, 1280, v{vT}")
    g(f"v_and_b32 v{vT2}, 3, v{vLane}")
    g(f"v_lshlrev_b32 v{vT2}, 4, v{vT2}")
    g(f"v_add_u32 v{vWoOff}, v{vWoOff}, v{vT2}")
    for k in range(3):
        g(f"v_add_u32 v{vT}, {k*256}, v0")
        g(f"v_mul_u32_u24 v{vT2}, 43691, v{vT}")
        g(f"v_lshrrev_b32 v{vT2}, 23, v{vT2}")
        g(f"v_mul_u32_u24 v{vT3}, 192, v{vT2}")
        g(f"v_sub_u32 v{vT3}, v{vT}, v{vT3}")
        g(f"v_lshlrev_b32 v{vMo+k}, 12, v{vT2}")
        g(f"v_lshlrev_b32 v{vT3}, 2, v{vT3}")
        g(f"v_add_u32 v{vOo+k}, v{vMo+k}, v{vT3}")
    g("s_waitcnt lgkmcnt(0)")
    srd(g, sWO, 4, 7864320)
    srd(g, sWS, 6, WS_SIZE)
    for b in range(2):
        g(f"s_lshl_b32 s{sT0}, s{sRb}, 14")
        if b:
            g(f"s_add_u32 s{sT0}, s{sT0}, {32*4096}")
        for k in range(3):
            base = vC + (b * 3 + k) * 12
            for s in range(4):
                g(f"buffer_load_dword v{base+s}, v{vOo+k}, s[{sWS}:{sWS+3}], s{sT0} offen offset:{s*1024}")
            for s in range(4):
                g(f"buffer_load_dwordx2 v[{base+4+2*s}:{base+5+2*s}], v{vMo+k}, s[{sWS}:{sWS+3}], s{sT0} offen offset:{s*1024+768}")
    g(f"s_mul_i32 s{sT0}, s{sRb}, {768*1280}")
    g(f"s_mul_i32 s{sT1}, s{sWave}, {192*1280}")
    g(f"s_add_u32 s{sT0}, s{sT0}, s{sT1}")
    g(f"s_lshl_b32 s{sT1}, s{sCb}, 6")
    g(f"s_add_u32 s{sT0}, s{sT0}, s{sT1}")
    for i in range(12):
        g(f"s_add_u32 s{sOff}, s{sT0}, {i*16*1280}")
        g(f"buffer_load_dwordx4 v[{vW+4*i}:{vW+4*i+3}], v{vWoOff}, s[{sWO}:{sWO+3}], s{sOff} offen")
    stamp(g, 1)
    g("s_waitcnt vmcnt(12)")
    stamp(g, 2)
    vM, vF, vNum, vDen, vR, vE = 6, 7, 152, 153, 154, 155
    for b in range(2):
        for k in range(3):
            base = vC + (b * 3 + k) * 12
            m = [base + 4 + 2 * s for s in range(4)]
            l = [base + 5 + 2 * s for s in range(4)]
            g(f"v_max_f32 v{vM}, v{m[0]}, v{m[1]}")
            g(f"v_max3_f32 v{vM}, v{vM}, v{m[2]}, v{m[3]}")
            for s in range(4):
                g(f"v_sub_f32 v{vF}, v{m[s]}, v{vM}")
                g(f"v_mul_f32 v{vF}, {LOG2E:#x}, v{vF}")
                g(f"v_exp_f32 v{vF}, v{vF}")
                if s == 0:
                    g(f"v_mul_f32 v{vNum}, v{vF}, v{base+s}")
                    g(f"v_mul_f32 v{vDen}, v{vF}, v{l[s]}")
                else:
                    g(f"v_fmac_f32 v{vNum}, v{vF}, v{base+s}")
                    g(f"v_fmac_f32 v{vDen}, v{vF}, v{l[s]}")
            divide(g, vF, vNum, vDen, vR, vE)
            bf16r(g, vF, vF)
            g(f"v_lshlrev_b32 v{vT}, 3, v0")
            g(f"ds_write_b32 v{vT}, v{vF} offset:{OC + k*2048 + b*4}")
    g("s_waitcnt lgkmcnt(0)")
    g("s_barrier")
    stamp(g, 3)
    g(f"v_lshrrev_b32 v{vT}, 2, v{vLane}")
    g(f"s_mul_i32 s{sT0}, s{sWave}, 192")
    g(f"v_add_u32 v{vT}, s{sT0}, v{vT}")
    g(f"v_lshlrev_b32 v{vT}, 3, v{vT}")
    vOv = vC
    for i in range(12):
        g(f"ds_read_b64 v[{vOv+2*i}:{vOv+2*i+1}], v{vT} offset:{OC + i*128}")
    for c in range(16):
        g(f"v_mov_b32 v{vAcc+c}, 0")
    g("s_waitcnt lgkmcnt(0)")
    for i in range(12):
        g(f"s_waitcnt vmcnt({11-i})")
        for c in range(4):
            r = vW + 4 * i + c
            g(f"v_lshlrev_b32 v{vT2}, 16, v{r}")
            g(f"v_and_b32 v{vT3}, 0xffff0000, v{r}")
            g(f"v_fmac_f32 v{vAcc+2*c}, v{vT2}, v{vOv+2*i}")
            g(f"v_fmac_f32 v{vAcc+2*c+1}, v{vT3}, v{vOv+2*i}")
            g(f"v_fmac_f32 v{vAcc+8+2*c}, v{vT2}, v{vOv+2*i+1}")
            g(f"v_fmac_f32 v{vAcc+8+2*c+1}, v{vT3}, v{vOv+2*i+1}")
    stamp(g, 4)
    wave_reduce_64(g, vAcc, vLane, sWave, RED, RED2, vT, vT2, vT3, vW, sT0)
    g("s_barrier")
    g(f"s_cmp_eq_u32 s{sWave}, 0")
    g("s_cbranch_scc0 wo_end")
    g(f"v_lshlrev_b32 v{vT}, 2, v{vLane}")
    for w in range(4):
        g(f"ds_read_b32 v{vW+w}, v{vT} offset:{RED2 + w*256}")
    g("s_waitcnt lgkmcnt(0)")
    g(f"v_add_f32 v{vW}, v{vW}, v{vW+1}")
    g(f"v_add_f32 v{vW+2}, v{vW+2}, v{vW+3}")
    g(f"v_add_f32 v{vW}, v{vW}, v{vW+2}")
    g(f"v_lshrrev_b32 v{vT}, 5, v{vLane}")
    g(f"v_mul_u32_u24 v{vT}, 2560, v{vT}")
    g(f"v_and_b32 v{vT2}, 31, v{vLane}")
    g(f"v_lshlrev_b32 v{vT2}, 2, v{vT2}")
    g(f"v_add_u32 v{vT}, v{vT}, v{vT2}")
    g(f"s_mul_i32 s{sT0}, s{sRb}, 5120")
    g(f"s_lshl_b32 s{sT1}, s{sCb}, 7")
    g(f"s_add_u32 s{sT0}, s{sT0}, s{sT1}")
    g(f"s_add_u32 s{sT0}, s{sT0}, {WS_HP}")
    g(f"buffer_store_dword v{vW}, v{vT}, s[{sWS}:{sWS+3}], s{sT0} offen")
    stamp(g, 7)
    if STAMPS:
        g("s_cmp_eq_u32 s2, STAMP_WG".replace("STAMP_WG", str(STAMP_WG)))
        g("s_cbranch_scc0 wo_end")
    if STAMPS:
        g(f"s_cmp_eq_u32 s{sWave}, 0")
        g("s_cbranch_scc0 wo_end")
    stamp_flush(g, 8, 100 if "wo_end" != "fin_end" else 60)
    g.label("wo_end", pad=False)
    g("s_endpgm")
    return L, nv, 40


def wave_reduce_64(g, vAcc, vLane, sWave, RED, RED2, vT, vT2, vT3, vTmp, sT0):
    g(f"v_lshlrev_b32 v{vT}, 6, v0")
    for q in range(4):
        g(f"ds_write_b128 v{vT}, v[{vAcc+4*q}:{vAcc+4*q+3}] offset:{RED + 16*q}")
    g(f"v_bfe_u32 v{vT2}, v{vLane}, 3, 2")
    g(f"v_lshlrev_b32 v{vT2}, 6, v{vT2}")
    g(f"v_lshrrev_b32 v{vT3}, 5, v{vLane}")
    g(f"v_lshlrev_b32 v{vT3}, 5, v{vT3}")
    g(f"v_add_u32 v{vT2}, v{vT2}, v{vT3}")
    g(f"v_and_b32 v{vT3}, 7, v{vLane}")
    g(f"v_lshlrev_b32 v{vT3}, 2, v{vT3}")
    g(f"v_add_u32 v{vT2}, v{vT2}, v{vT3}")
    g(f"s_lshl_b32 s{sT0}, s{sWave}, 12")
    g(f"v_add_u32 v{vT2}, s{sT0}, v{vT2}")
    g("s_waitcnt lgkmcnt(0)")
    for r in range(16):
        g(f"ds_read_b32 v{vTmp+r}, v{vT2} offset:{RED + r*256}")
    g("s_waitcnt lgkmcnt(0)")
    for r in range(1, 16):
        g(f"v_add_f32 v{vTmp}, v{vTmp}, v{vTmp+r}")
    g(f"v_lshlrev_b32 v{vT}, 2, v0")
    g(f"ds_write_b32 v{vT}, v{vTmp} offset:{RED2}")
    g("s_waitcnt lgkmcnt(0)")


def k_ffn(g):
    L = "ffn_kernel"
    header(g, L)
    sX, sW1, sB1, sW2, sWS = 16, 20, 24, 28, 32
    sWave, sT0, sT1, sOff = 36, 37, 38, 39
    sMk = 40
    H, HN, RED, RED2, H1, R3 = 0, 5120, 10240, 30720, 32000, 32768
    vLane, vT, vT2, vT3 = 1, 2, 3, 4
    vAcc = 8
    vW1 = 24
    vW2 = 56
    vHP = 88
    vX = 120
    vH = 124
    vB1 = 122
    vS = 128
    nv = 160
    g("s_cmp_ge_u32 s2, 48")
    g("s_cbranch_scc1 ffn_end")
    stamp(g, 0)
    g("s_load_dwordx2 s[4:5], s[0:1], 0")
    g("s_load_dwordx4 s[8:11], s[0:1], 48")
    g("s_load_dwordx2 s[12:13], s[0:1], 64")
    g("s_load_dwordx2 s[14:15], s[0:1], 96")
    g(f"v_and_b32 v{vLane}, 63, v0")
    g(f"v_lshrrev_b32 v{vT}, 6, v0")
    g(f"v_readfirstlane_b32 s{sWave}, v{vT}")
    g("s_waitcnt lgkmcnt(0)")
    srd(g, sX, 4, 2560)
    srd(g, sW1, 8, 1966080)
    srd(g, sB1, 10, 3072)
    srd(g, sW2, 12, 1966080)
    srd(g, sWS, 14, WS_SIZE)
    g(f"v_lshlrev_b32 v{vT}, 4, v0")
    for rb in range(8):
        g(f"s_mov_b32 s{sOff}, {WS_HP + rb*5120}")
        g(f"buffer_load_dwordx4 v[{vHP+4*rb}:{vHP+4*rb+3}], v{vT}, s[{sWS}:{sWS+3}], s{sOff} offen")
    g(f"v_lshlrev_b32 v{vT2}, 3, v0")
    g(f"buffer_load_dwordx2 v[{vX}:{vX+1}], v{vT2}, s[{sX}:{sX+3}], 0 offen")
    g(f"v_and_b32 v{vT2}, 31, v{vLane}")
    g(f"v_lshlrev_b32 v{vT2}, 1, v{vT2}")
    g(f"s_lshl_b32 s{sT0}, s2, 6")
    g(f"buffer_load_ushort v{vB1}, v{vT2}, s[{sB1}:{sB1+3}], s{sT0} offen")
    g(f"v_lshrrev_b32 v{vT}, 2, v{vLane}")
    g(f"v_mul_u32_u24 v{vT}, 3072, v{vT}")
    g(f"v_and_b32 v{vT2}, 3, v{vLane}")
    g(f"v_lshlrev_b32 v{vT2}, 4, v{vT2}")
    g(f"v_add_u32 v{vT}, v{vT}, v{vT2}")
    g(f"s_mul_i32 s{sT1}, s{sWave}, {128*3072}")
    g(f"s_add_u32 s{sT1}, s{sT1}, s{sT0}")
    for i in range(8):
        g(f"s_add_u32 s{sOff}, s{sT1}, {i*16*3072}")
        g(f"buffer_load_dwordx4 v[{vW1+4*i}:{vW1+4*i+3}], v{vT}, s[{sW1}:{sW1+3}], s{sOff} offen")
    vRG, vCC = 5, 6
    g(f"v_mul_u32_u24 v{vRG}, 52429, v0")
    g(f"v_lshrrev_b32 v{vRG}, 22, v{vRG}")
    g(f"v_mul_u32_u24 v{vT}, 80, v{vRG}")
    g(f"v_sub_u32 v{vCC}, v0, v{vT}")
    g(f"v_mul_u32_u24 v{vT}, {8*1280}, v{vRG}")
    g(f"v_lshlrev_b32 v{vT2}, 4, v{vCC}")
    g(f"v_add_u32 v{vT}, v{vT}, v{vT2}")
    g(f"s_mul_i32 s{sT1}, s2, {32*1280}")
    for i in range(8):
        g(f"s_add_u32 s{sOff}, s{sT1}, {i*1280}")
        g(f"buffer_load_dwordx4 v[{vW2+4*i}:{vW2+4*i+3}], v{vT}, s[{sW2}:{sW2+3}], s{sOff} offen")
    stamp(g, 1)
    g("s_waitcnt vmcnt(17)")
    stamp(g, 2)
    for c in range(4):
        g(f"v_add_f32 v{vH+c}, v{vHP+c}, v{vHP+4+c}")
        for rb in range(2, 8):
            g(f"v_add_f32 v{vH+c}, v{vH+c}, v{vHP+4*rb+c}")
    bf16r2(g, vH, vH + 1, vT)
    bf16r2(g, vH + 2, vH + 3, vT)
    g(f"v_lshlrev_b32 v{vT}, 16, v{vX}")
    g(f"v_add_f32 v{vH}, v{vH}, v{vT}")
    g(f"v_and_b32 v{vT}, 0xffff0000, v{vX}")
    g(f"v_add_f32 v{vH+1}, v{vH+1}, v{vT}")
    g(f"v_lshlrev_b32 v{vT}, 16, v{vX+1}")
    g(f"v_add_f32 v{vH+2}, v{vH+2}, v{vT}")
    g(f"v_and_b32 v{vT}, 0xffff0000, v{vX+1}")
    g(f"v_add_f32 v{vH+3}, v{vH+3}, v{vT}")
    bf16r2(g, vH, vH + 1, vT)
    bf16r2(g, vH + 2, vH + 3, vT)
    g(f"v_lshlrev_b32 v{vT}, 4, v0")
    g(f"ds_write_b128 v{vT}, v[{vH}:{vH+3}] offset:{H}")
    g("s_cmp_eq_u32 s2, 0")
    g("s_cbranch_scc0 ffn_nohh")
    g(f"s_mov_b32 s{sOff}, {WS_HH}")
    g(f"buffer_store_dwordx4 v[{vH}:{vH+3}], v{vT}, s[{sWS}:{sWS+3}], s{sOff} offen")
    g.label("ffn_nohh")
    g("s_waitcnt lgkmcnt(0)")
    g("s_barrier")
    g(f"v_lshlrev_b32 v{vT}, 2, v{vLane}")
    for b in range(2):
        for j in range(10):
            g(f"ds_read_b32 v{vS+10*b+j}, v{vT} offset:{H + b*2560 + j*256}")
    g("s_waitcnt lgkmcnt(0)")
    vMb0, vSd0, vMb1, vSd1 = 148, 149, 150, 151
    ln_stats(g, list(range(vS, vS + 10)), 640, vMb0, vSd0, 152, 153, 154)
    ln_stats(g, list(range(vS + 10, vS + 20)), 640, vMb1, vSd1, 152, 153, 154)
    g(f"v_cmp_le_u32 vcc, 160, v0")
    g(f"s_mov_b64 s[{sMk}:{sMk+1}], vcc")
    g(f"v_cndmask_b32 v{vMb0}, v{vMb0}, v{vMb1}, s[{sMk}:{sMk+1}]")
    g(f"v_cndmask_b32 v{vSd0}, v{vSd0}, v{vSd1}, s[{sMk}:{sMk+1}]")
    for c in range(4):
        ln_apply(g, vH + c, vMb0, vSd0, 152, 153)
    g(f"v_cndmask_b32 v{vT2}, 0, 1, s[{sMk}:{sMk+1}]")
    g(f"v_mul_u32_u24 v{vT3}, 160, v{vT2}")
    g(f"v_sub_u32 v{vT3}, v0, v{vT3}")
    g(f"v_lshlrev_b32 v{vT3}, 5, v{vT3}")
    g(f"v_lshlrev_b32 v{vT2}, 2, v{vT2}")
    g(f"v_add_u32 v{vT3}, v{vT3}, v{vT2}")
    for c in range(4):
        g(f"ds_write_b32 v{vT3}, v{vH+c} offset:{HN + c*8}")
    g("s_waitcnt lgkmcnt(0)")
    g("s_barrier")
    stamp(g, 3)
    g(f"v_lshrrev_b32 v{vT}, 2, v{vLane}")
    g(f"s_lshl_b32 s{sT0}, s{sWave}, 7")
    g(f"v_add_u32 v{vT}, s{sT0}, v{vT}")
    g(f"v_lshlrev_b32 v{vT}, 3, v{vT}")
    vOv = vHP
    for i in range(8):
        g(f"ds_read_b64 v[{vOv+2*i}:{vOv+2*i+1}], v{vT} offset:{HN + i*128}")
    for c in range(16):
        g(f"v_mov_b32 v{vAcc+c}, 0")
    g("s_waitcnt lgkmcnt(0)")
    g("s_waitcnt vmcnt(8)")
    for i in range(8):
        for c in range(4):
            r = vW1 + 4 * i + c
            g(f"v_lshlrev_b32 v{vT2}, 16, v{r}")
            g(f"v_and_b32 v{vT3}, 0xffff0000, v{r}")
            g(f"v_fmac_f32 v{vAcc+2*c}, v{vT2}, v{vOv+2*i}")
            g(f"v_fmac_f32 v{vAcc+2*c+1}, v{vT3}, v{vOv+2*i}")
            g(f"v_fmac_f32 v{vAcc+8+2*c}, v{vT2}, v{vOv+2*i+1}")
            g(f"v_fmac_f32 v{vAcc+8+2*c+1}, v{vT3}, v{vOv+2*i+1}")
    stamp(g, 4)
    wave_reduce_64(g, vAcc, vLane, sWave, RED, RED2, vT, vT2, vT3, vW1, sT0)
    g("s_barrier")
    g(f"s_cmp_eq_u32 s{sWave}, 0")
    g("s_cbranch_scc0 ffn_h1_skip")
    g(f"v_lshlrev_b32 v{vT}, 2, v{vLane}")
    for w in range(5):
        g(f"ds_read_b32 v{vW1+w}, v{vT} offset:{RED2 + w*256}")
    g("s_waitcnt lgkmcnt(0)")
    for w in range(1, 5):
        g(f"v_add_f32 v{vW1}, v{vW1}, v{vW1+w}")
    bf16r(g, vW1, vW1)
    g(f"v_lshlrev_b32 v{vB1}, 16, v{vB1}")
    g(f"v_add_f32 v{vW1}, v{vW1}, v{vB1}")
    bf16r(g, vW1, vW1)
    g(f"v_max_f32 v{vW1}, 0, v{vW1}")
    g(f"v_mul_f32 v{vW1}, v{vW1}, v{vW1}")
    bf16r(g, vW1, vW1)
    g(f"v_and_b32 v{vT}, 31, v{vLane}")
    g(f"v_lshlrev_b32 v{vT}, 3, v{vT}")
    g(f"v_lshrrev_b32 v{vT2}, 5, v{vLane}")
    g(f"v_lshlrev_b32 v{vT2}, 2, v{vT2}")
    g(f"v_add_u32 v{vT}, v{vT}, v{vT2}")
    g(f"ds_write_b32 v{vT}, v{vW1} offset:{H1}")
    g("s_waitcnt lgkmcnt(0)")
    g.label("ffn_h1_skip")
    g("s_barrier")
    stamp(g, 5)
    g(f"v_lshlrev_b32 v{vT}, 6, v{vRG}")
    for i in range(8):
        g(f"ds_read_b64 v[{vOv+2*i}:{vOv+2*i+1}], v{vT} offset:{H1 + i*8}")
    for c in range(16):
        g(f"v_mov_b32 v{vAcc+c}, 0")
    g("s_waitcnt lgkmcnt(0)")
    g("s_waitcnt vmcnt(0)")
    for i in range(8):
        for c in range(4):
            r = vW2 + 4 * i + c
            g(f"v_lshlrev_b32 v{vT2}, 16, v{r}")
            g(f"v_and_b32 v{vT3}, 0xffff0000, v{r}")
            g(f"v_fmac_f32 v{vAcc+2*c}, v{vT2}, v{vOv+2*i}")
            g(f"v_fmac_f32 v{vAcc+2*c+1}, v{vT3}, v{vOv+2*i}")
            g(f"v_fmac_f32 v{vAcc+8+2*c}, v{vT2}, v{vOv+2*i+1}")
            g(f"v_fmac_f32 v{vAcc+8+2*c+1}, v{vT3}, v{vOv+2*i+1}")
    stamp(g, 6)
    g(f"v_mul_u32_u24 v{vT}, 5120, v{vRG}")
    g(f"v_lshlrev_b32 v{vT2}, 5, v{vCC}")
    g(f"v_add_u32 v{vT}, v{vT}, v{vT2}")
    for b in range(2):
        for q in range(2):
            r = vAcc + 8 * b + 4 * q
            g(f"ds_write_b128 v{vT}, v[{r}:{r+3}] offset:{R3 + b*2560 + q*16}")
    g("s_waitcnt lgkmcnt(0)")
    g("s_barrier")
    g(f"v_lshlrev_b32 v{vT}, 4, v0")
    for rg in range(4):
        g(f"ds_read_b128 v[{vW1+4*rg}:{vW1+4*rg+3}], v{vT} offset:{R3 + rg*5120}")
    g("s_waitcnt lgkmcnt(0)")
    for c in range(4):
        g(f"v_add_f32 v{vW1+c}, v{vW1+c}, v{vW1+4+c}")
        g(f"v_add_f32 v{vW1+8+c}, v{vW1+8+c}, v{vW1+12+c}")
        g(f"v_add_f32 v{vW1+c}, v{vW1+c}, v{vW1+8+c}")
    g(f"s_mul_i32 s{sT0}, s2, 5120")
    g(f"s_add_u32 s{sT0}, s{sT0}, {WS_FP}")
    g(f"buffer_store_dwordx4 v[{vW1}:{vW1+3}], v{vT}, s[{sWS}:{sWS+3}], s{sT0} offen")
    stamp(g, 7)
    if STAMPS:
        g("s_cmp_eq_u32 s2, STAMP_WG".replace("STAMP_WG", str(STAMP_WG)))
        g("s_cbranch_scc0 ffn_end")
    if STAMPS:
        g(f"s_cmp_eq_u32 s{sWave}, 0")
        g("s_cbranch_scc0 ffn_end")
    stamp_flush(g, 8, 100 if "ffn_end" != "fin_end" else 60)
    g.label("ffn_end", pad=False)
    g("s_endpgm")
    return L, nv, 48


def k_fin(g):
    L = "fin_kernel"
    header(g, L)
    sB2, sOut, sWS = 16, 20, 24
    sT0, sOff = 28, 29
    vE, vT, vH, vB = 1, 2, 3, 4
    vP = 8
    nv = 64
    g("s_cmp_ge_u32 s2, 20")
    g("s_cbranch_scc1 fin_end")
    stamp(g, 0)
    g("s_load_dwordx2 s[4:5], s[0:1], 72")
    g("s_load_dwordx2 s[6:7], s[0:1], 80")
    g("s_load_dwordx2 s[8:9], s[0:1], 96")
    g(f"s_lshl_b32 s{sT0}, s2, 6")
    g(f"v_add_u32 v{vE}, s{sT0}, v0")
    g(f"v_lshlrev_b32 v{vT}, 2, v{vE}")
    g("s_waitcnt lgkmcnt(0)")
    srd(g, sB2, 4, 1280)
    srd(g, sOut, 6, 2560)
    srd(g, sWS, 8, WS_SIZE)
    for j in range(48):
        g(f"s_mov_b32 s{sOff}, {WS_FP + j*5120}")
        g(f"buffer_load_dword v{vP+j}, v{vT}, s[{sWS}:{sWS+3}], s{sOff} offen")
    g(f"s_mov_b32 s{sOff}, {WS_HH}")
    g(f"buffer_load_dword v{vH}, v{vT}, s[{sWS}:{sWS+3}], s{sOff} offen")
    g(f"s_cmp_ge_u32 s2, 10")
    g(f"s_cselect_b32 s{sT0}, 640, 0")
    g(f"v_subrev_u32 v{vT}, s{sT0}, v{vE}")
    g(f"v_lshlrev_b32 v{vT}, 1, v{vT}")
    g(f"buffer_load_ushort v{vB}, v{vT}, s[{sB2}:{sB2+3}], 0 offen")
    g("s_waitcnt vmcnt(0)")
    for j in range(1, 48):
        g(f"v_add_f32 v{vP}, v{vP}, v{vP+j}")
    bf16r(g, vP, vP)
    g(f"v_lshlrev_b32 v{vB}, 16, v{vB}")
    g(f"v_add_f32 v{vP}, v{vP}, v{vB}")
    bf16r(g, vP, vP)
    g(f"v_add_f32 v{vP}, v{vP}, v{vH}")
    g(f"v_cvt_pk_bf16_f32 v{vP}, v{vP}, v{vP}")
    g(f"v_lshlrev_b32 v{vT}, 1, v{vE}")
    g(f"buffer_store_short v{vP}, v{vT}, s[{sOut}:{sOut+3}], 0 offen")
    stamp(g, 7)
    if STAMPS:
        g("s_cmp_eq_u32 s2, STAMP_WG".replace("STAMP_WG", str(STAMP_WG)))
        g("s_cbranch_scc0 fin_end")
    stamp_flush(g, 8, 100 if "fin_end" != "fin_end" else 60)
    g.label("fin_end", pad=False)
    g("s_endpgm")
    return L, nv, 40


def poll(g, name, issue, regs, vt):
    g.label(name)
    issue()
    g("s_waitcnt vmcnt(0)")
    rs = list(regs)
    g(f"v_max3_u32 v{vt}, v{rs[0]}, v{rs[1]}, v{rs[2]}")
    k = 3
    while k < len(rs):
        if k + 1 < len(rs):
            g(f"v_max3_u32 v{vt}, v{vt}, v{rs[k]}, v{rs[k+1]}")
            k += 2
        else:
            g(f"v_max_u32 v{vt}, v{vt}, v{rs[k]}")
            k += 1
    g(f"v_cmp_eq_u32 vcc, -1, v{vt}")
    g(f"s_cbranch_vccz {name}_done")
    g("s_sleep 2")
    g(f"s_branch {name}")
    g.label(name + "_done")


def light_poll(g, name, loads, vt, sleep=2):
    g.label(name)
    for vd, va, sr, so in loads:
        g(f"buffer_load_dword v{vd}, v{va}, s[{sr}:{sr+3}], {so} offen sc1")
    g("s_waitcnt vmcnt(0)")
    rs = [x[0] for x in loads]
    g(f"v_mov_b32 v{vt}, v{rs[0]}")
    for r in rs[1:]:
        g(f"v_max_u32 v{vt}, v{vt}, v{r}")
    g(f"v_cmp_eq_u32 vcc, -1, v{vt}")
    g(f"s_cbranch_vccz {name}_done")
    g(f"s_sleep {sleep}")
    g(f"s_branch {name}")
    g.label(name + "_done")


def half_reduce(g, v, t):
    op = "v_add_f32"
    g(f"{op}_dpp v{v}, v{v}, v{v} quad_perm:[1,0,3,2] row_mask:0xf bank_mask:0xf")
    g(f"{op}_dpp v{v}, v{v}, v{v} quad_perm:[2,3,0,1] row_mask:0xf bank_mask:0xf")
    g(f"{op}_dpp v{v}, v{v}, v{v} row_half_mirror row_mask:0xf bank_mask:0xf")
    g(f"{op}_dpp v{v}, v{v}, v{v} row_mirror row_mask:0xf bank_mask:0xf")
    g(f"v_mov_b32 v{t}, v{v}")
    g(f"v_permlane16_swap_b32 v{v}, v{t}")
    g(f"{op} v{v}, v{v}, v{t}")


def gemv_step(g, vW, vAcc, o0, o1, t2, t3):
    for c in range(4):
        r = vW + c
        g(f"v_lshlrev_b32 v{t2}, 16, v{r}")
        g(f"v_and_b32 v{t3}, 0xffff0000, v{r}")
        g(f"v_fmac_f32 v{vAcc+2*c}, v{t2}, v{o0}")
        g(f"v_fmac_f32 v{vAcc+2*c+1}, v{t3}, v{o0}")
        g(f"v_fmac_f32 v{vAcc+8+2*c}, v{t2}, v{o1}")
        g(f"v_fmac_f32 v{vAcc+8+2*c+1}, v{t3}, v{o1}")


def k_tail(g, LIGHT=0, WNT=0):
    WN = ' nt' if WNT else ''
    L = "tail_kernel"
    header(g, L)
    sWave, sT0, sT1, sOff = 36, 37, 38, 39
    vLane, vT, vT2, vT3 = 1, 2, 3, 4
    g("s_cmp_ge_u32 s2, 228")
    g("s_cbranch_scc1 tail_end")
    stamp(g, 0)
    g("s_load_dwordx2 s[14:15], s[0:1], 96")
    g(f"v_and_b32 v{vLane}, 63, v0")
    g(f"v_lshrrev_b32 v{vT}, 6, v0")
    g(f"v_readfirstlane_b32 s{sWave}, v{vT}")
    g("s_cmp_ge_u32 s2, 208")
    g("s_cbranch_scc1 tail_fin")
    g("s_cmp_ge_u32 s2, 160")
    g("s_cbranch_scc1 tail_ffn")

    sWO, sWS = 16, 20
    sRb, sCb = 24, 25
    OC, RED, RED2 = 0, 8192, 32768
    vWoOff, vOo, vMo, vB = 5, 6, 7, 40
    vAcc = 8
    vML = 24
    vM, vF, vDen, vR = 32, 33, 34, 35
    vN = 36
    vO = 44
    vW = 60
    vOv = 92
    g("s_load_dwordx2 s[4:5], s[0:1], 32")
    g(f"s_mul_i32 s{sRb}, s2, 3277")
    g(f"s_lshr_b32 s{sRb}, s{sRb}, 16")
    g(f"s_mul_i32 s{sT0}, s{sRb}, 20")
    g(f"s_sub_u32 s{sCb}, s2, s{sT0}")
    g(f"v_lshrrev_b32 v{vT}, 2, v{vLane}")
    g(f"v_mul_u32_u24 v{vWoOff}, 1280, v{vT}")
    g(f"v_and_b32 v{vT2}, 3, v{vLane}")
    g(f"v_lshlrev_b32 v{vT2}, 4, v{vT2}")
    g(f"v_add_u32 v{vWoOff}, v{vWoOff}, v{vT2}")
    g(f"v_cmp_le_u32 vcc, 192, v0")
    g(f"v_cndmask_b32 v{vB}, 0, 1, vcc")
    g(f"v_mul_u32_u24 v{vT}, 192, v{vB}")
    g(f"v_sub_u32 v{vT}, v0, v{vT}")
    g(f"v_mul_u32_u24 v{vT2}, 1366, v{vT}")
    g(f"v_lshrrev_b32 v{vT2}, 16, v{vT2}")
    g(f"v_mul_u32_u24 v{vT3}, 48, v{vT2}")
    g(f"v_sub_u32 v{vT3}, v{vT}, v{vT3}")
    g(f"v_lshlrev_b32 v{vB}, 5, v{vB}")
    g(f"v_add_u32 v{vT2}, v{vT2}, v{vB}")
    g(f"v_lshlrev_b32 v{vMo}, 5, v{vT2}")
    g(f"v_mul_u32_u24 v{vOo}, 3072, v{vT2}")
    g(f"v_lshlrev_b32 v{vT3}, 4, v{vT3}")
    g(f"v_add_u32 v{vOo}, v{vOo}, v{vT3}")
    g("s_waitcnt lgkmcnt(0)")
    srd(g, sWS, 14, WS_SIZE)
    srd(g, sWO, 4, 7864320)
    g(f"s_mul_i32 s{sT0}, s{sRb}, {4*3072}")
    for sp in range(4):
        g(f"buffer_load_dwordx4 v[{vO+4*sp}:{vO+4*sp+3}], v{vOo}, s[{sWS}:{sWS+3}], s{sT0} offen offset:{WS_PART + sp*768}")
    g(f"s_lshl_b32 s{sT0}, s{sRb}, 7")
    g(f"s_add_u32 s{sT0}, s{sT0}, {WS_ML}")
    for q in range(2):
        g(f"buffer_load_dwordx4 v[{vML+4*q}:{vML+4*q+3}], v{vMo}, s[{sWS}:{sWS+3}], s{sT0} offen offset:{q*16}")
    g("s_barrier")
    g(f"s_mul_i32 s{sT0}, s{sRb}, {768*1280}")
    g(f"s_mul_i32 s{sT1}, s{sWave}, {128*1280}")
    g(f"s_add_u32 s{sT0}, s{sT0}, s{sT1}")
    g(f"s_lshl_b32 s{sT1}, s{sCb}, 6")
    g(f"s_add_u32 s{sT0}, s{sT0}, s{sT1}")
    for i in range(8):
        g(f"s_add_u32 s{sOff}, s{sT0}, {i*16*1280}")
        g(f"buffer_load_dwordx4 v[{vW+4*i}:{vW+4*i+3}], v{vWoOff}, s[{sWO}:{sWO+3}], s{sOff} offen{WN}")
    for c in range(16):
        g(f"v_mov_b32 v{vAcc+c}, 0")
    stamp(g, 1)
    g("s_waitcnt vmcnt(8)")
    stamp(g, 2)
    g(f"v_max_f32 v{vM}, v{vML}, v{vML+2}")
    g(f"v_max3_f32 v{vM}, v{vM}, v{vML+4}, v{vML+6}")
    for sp in range(4):
        g(f"v_sub_f32 v{vF}, v{vML+2*sp}, v{vM}")
        g(f"v_mul_f32 v{vF}, {LOG2E:#x}, v{vF}")
        g(f"v_exp_f32 v{vF}, v{vF}")
        if sp == 0:
            g(f"v_mul_f32 v{vDen}, v{vF}, v{vML+1}")
            for c in range(4):
                g(f"v_mul_f32 v{vN+c}, v{vF}, v{vO+c}")
        else:
            g(f"v_fmac_f32 v{vDen}, v{vF}, v{vML+2*sp+1}")
            for c in range(4):
                g(f"v_fmac_f32 v{vN+c}, v{vF}, v{vO+4*sp+c}")
    g(f"v_rcp_f32 v{vR}, v{vDen}")
    for c in range(4):
        g(f"v_mul_f32 v{vO+c}, v{vN+c}, v{vR}")
        g(f"v_fma_f32 v{vN+c}, -v{vO+c}, v{vDen}, v{vN+c}")
        g(f"v_fma_f32 v{vO+c}, v{vN+c}, v{vR}, v{vO+c}")
    bf16r2(g, vO, vO + 1, vT)
    bf16r2(g, vO + 2, vO + 3, vT)
    g(f"v_lshlrev_b32 v{vT}, 4, v0")
    g(f"ds_write_b128 v{vT}, v[{vO}:{vO+3}] offset:{OC}")
    g(f"v_lshrrev_b32 v{vT}, 2, v{vLane}")
    g(f"s_lshl_b32 s{sT0}, s{sWave}, 7")
    g(f"v_add_u32 v{vT}, s{sT0}, v{vT}")
    g(f"v_lshlrev_b32 v{vT}, 2, v{vT}")
    g("s_waitcnt lgkmcnt(0)")
    stamp(g, 6)
    g("s_barrier")
    stamp(g, 3)
    for i in range(8):
        g(f"ds_read_b32 v{vOv+2*i}, v{vT} offset:{OC + i*64}")
        g(f"ds_read_b32 v{vOv+2*i+1}, v{vT} offset:{OC + 3072 + i*64}")
    g("s_waitcnt lgkmcnt(0)")
    for i in range(8):
        g(f"s_waitcnt vmcnt({7-i})")
        gemv_step(g, vW + 4 * i, vAcc, vOv + 2 * i, vOv + 2 * i + 1, vT2, vT3)
    stamp(g, 4)
    wave_reduce_64(g, vAcc, vLane, sWave, RED, RED2, vT, vT2, vT3, vW, sT0)
    g("s_barrier")
    if STAMPS == 2:
        stamp(g, 5)
        g(f"s_cmp_eq_u32 s2, {STAMP_WG}")
        g("s_cbranch_scc0 wo_nostamp")
        g("s_load_dwordx2 s[60:61], s[0:1], 88")
        g("s_waitcnt lgkmcnt(0)")
        srd(g, 64, 60, 256)
        g(f"s_lshl_b32 s62, s{sWave}, 5")
        for i in range(8):
            g(f"v_mov_b32 v100, s{70+2*i}")
            g(f"v_mov_b32 v101, {i*4}")
            g(f"buffer_store_dword v100, v101, s[64:67], s62 offen")
        g("s_waitcnt vmcnt(0)")
        g.label("wo_nostamp")
    g(f"s_cmp_eq_u32 s{sWave}, 0")
    g("s_cbranch_scc0 tail_end")
    g(f"v_lshlrev_b32 v{vT}, 2, v{vLane}")
    for w in range(6):
        g(f"ds_read_b32 v{vW+w}, v{vT} offset:{RED2 + w*256}")
    g(f"v_lshrrev_b32 v{vT}, 5, v{vLane}")
    g(f"v_mul_u32_u24 v{vT}, 2560, v{vT}")
    g(f"v_and_b32 v{vT2}, 31, v{vLane}")
    g(f"v_lshlrev_b32 v{vT2}, 2, v{vT2}")
    g(f"v_add_u32 v{vT}, v{vT}, v{vT2}")
    g(f"s_mul_i32 s{sT0}, s{sRb}, 5120")
    g(f"s_lshl_b32 s{sT1}, s{sCb}, 7")
    g(f"s_add_u32 s{sT0}, s{sT0}, s{sT1}")
    g(f"s_add_u32 s{sT0}, s{sT0}, {WS_HP}")
    g("s_waitcnt lgkmcnt(0)")
    g(f"v_add_f32 v{vW}, v{vW}, v{vW+1}")
    g(f"v_add_f32 v{vW+2}, v{vW+2}, v{vW+3}")
    g(f"v_add_f32 v{vW+4}, v{vW+4}, v{vW+5}")
    g(f"v_add_f32 v{vW}, v{vW}, v{vW+2}")
    g(f"v_add_f32 v{vW}, v{vW}, v{vW+4}")
    g(f"buffer_store_dword v{vW}, v{vT}, s[{sWS}:{sWS+3}], s{sT0} offen sc1")
    stamp(g, 7)
    if STAMPS == 1:
        g(f"s_cmp_eq_u32 s2, {STAMP_WG}")
        g("s_cbranch_scc0 tail_end")
        stamp_flush(g, 8, 100, 0)
    g("s_endpgm")

    g.label("tail_ffn")
    g(f"s_cmp_eq_u32 s{sWave}, 5")
    g("s_cbranch_scc1 tail_end")
    sX, sW1, sB1, sW2, sWS = 16, 20, 24, 28, 32
    sFb = 40
    sMk = 42
    SUM, SUM2, HN, RED, RED2, H1, R3 = 0, 64, 5120, 10240, 30720, 32000, 32768
    vAcc = 8
    vW1 = 24
    vW2 = 56
    vHP = 88
    vX = 120
    vB1 = 122
    vH = 124
    vRG, vCC = 5, 6
    vHa = 7
    vS = 128
    vMb, vSd = 136, 137
    g("s_load_dwordx2 s[4:5], s[0:1], 0")
    g("s_load_dwordx4 s[8:11], s[0:1], 48")
    g("s_load_dwordx2 s[12:13], s[0:1], 64")
    g(f"s_sub_u32 s{sFb}, s2, 160")
    g(f"v_lshlrev_b32 v{vHa}, 4, v0")
    g("s_waitcnt lgkmcnt(0)")
    srd(g, sX, 4, 2560)
    srd(g, sW1, 8, 1966080)
    srd(g, sB1, 10, 3072)
    srd(g, sW2, 12, 1966080)
    srd(g, sWS, 14, WS_SIZE)
    g(f"v_lshlrev_b32 v{vT2}, 3, v0")
    g(f"buffer_load_dwordx2 v[{vX}:{vX+1}], v{vT2}, s[{sX}:{sX+3}], 0 offen")
    g(f"v_and_b32 v{vT2}, 31, v{vLane}")
    g(f"v_lshlrev_b32 v{vT2}, 1, v{vT2}")
    g(f"s_lshl_b32 s{sT0}, s{sFb}, 6")
    g(f"buffer_load_ushort v{vB1}, v{vT2}, s[{sB1}:{sB1+3}], s{sT0} offen")
    g(f"v_lshrrev_b32 v{vT}, 2, v{vLane}")
    g(f"v_mul_u32_u24 v{vT}, 3072, v{vT}")
    g(f"v_and_b32 v{vT2}, 3, v{vLane}")
    g(f"v_lshlrev_b32 v{vT2}, 4, v{vT2}")
    g(f"v_add_u32 v{vT}, v{vT}, v{vT2}")
    g(f"s_mul_i32 s{sT1}, s{sWave}, {128*3072}")
    g(f"s_add_u32 s{sT1}, s{sT1}, s{sT0}")
    for i in range(8):
        g(f"s_add_u32 s{sOff}, s{sT1}, {i*16*3072}")
        g(f"buffer_load_dwordx4 v[{vW1+4*i}:{vW1+4*i+3}], v{vT}, s[{sW1}:{sW1+3}], s{sOff} offen{WN}")
    g(f"v_mul_u32_u24 v{vRG}, 52429, v0")
    g(f"v_lshrrev_b32 v{vRG}, 22, v{vRG}")
    g(f"v_mul_u32_u24 v{vT}, 80, v{vRG}")
    g(f"v_sub_u32 v{vCC}, v0, v{vT}")
    g(f"v_mul_u32_u24 v{vT}, {8*1280}, v{vRG}")
    g(f"v_lshlrev_b32 v{vT2}, 4, v{vCC}")
    g(f"v_add_u32 v{vT}, v{vT}, v{vT2}")
    g(f"s_mul_i32 s{sT1}, s{sFb}, {32*1280}")
    for i in range(8):
        g(f"s_add_u32 s{sOff}, s{sT1}, {i*1280}")
        g(f"buffer_load_dwordx4 v[{vW2+4*i}:{vW2+4*i+3}], v{vT}, s[{sW2}:{sW2+3}], s{sOff} offen{WN}")
    g(f"v_cmp_le_u32 vcc, 160, v0")
    g(f"s_mov_b64 s[{sMk}:{sMk+1}], vcc")
    vBt, vSw, vSr, vHNa = 138, 139, 140, 141
    g(f"v_cndmask_b32 v{vBt}, 0, 1, s[{sMk}:{sMk+1}]")
    g(f"v_lshrrev_b32 v{vT}, 5, v0")
    g(f"v_mul_u32_u24 v{vT2}, 3, v{vBt}")
    g(f"v_add_u32 v{vT}, v{vT}, v{vT2}")
    g(f"v_lshlrev_b32 v{vSw}, 2, v{vT}")
    g(f"v_lshlrev_b32 v{vSr}, 5, v{vBt}")
    g(f"v_mul_u32_u24 v{vT3}, 160, v{vBt}")
    g(f"v_sub_u32 v{vT3}, v0, v{vT3}")
    g(f"v_lshlrev_b32 v{vT3}, 5, v{vT3}")
    g(f"v_lshlrev_b32 v{vT2}, 2, v{vBt}")
    g(f"v_add_u32 v{vHNa}, v{vT3}, v{vT2}")
    stamp(g, 1)
    if LIGHT:
        g(f"s_cmp_eq_u32 s{sWave}, 0")
        g("s_cbranch_scc0 ffn_nolight")
        la = [vS + 3, vS + 4, vS + 5]
        for k in range(3):
            g(f"v_add_u32 v{vT}, {k*64}, v{vLane}")
            g(f"v_min_u32 v{vT}, 159, v{vT}")
            g(f"v_mul_u32_u24 v{vT2}, 3277, v{vT}")
            g(f"v_lshrrev_b32 v{vT2}, 16, v{vT2}")
            g(f"v_mul_u32_u24 v{vT3}, 20, v{vT2}")
            g(f"v_sub_u32 v{vT3}, v{vT}, v{vT3}")
            g(f"v_mul_u32_u24 v{vT2}, 5120, v{vT2}")
            g(f"v_lshlrev_b32 v{vT3}, 7, v{vT3}")
            g(f"v_add_u32 v{la[k]}, v{vT2}, v{vT3}")
        g(f"s_mov_b32 s{sT1}, {WS_HP}")
        light_poll(g, "ffn_light", [(vS + k, la[k], sWS, f"s{sT1}") for k in range(3)], vT)
        g.label("ffn_nolight")
        g("s_barrier")

    def issue_hp():
        for rb in range(8):
            g(f"s_mov_b32 s{sOff}, {WS_HP + rb*5120}")
            g(f"buffer_load_dwordx4 v[{vHP+4*rb}:{vHP+4*rb+3}], v{vHa}, s[{sWS}:{sWS+3}], s{sOff} offen sc1")
    poll(g, "ffn_poll", issue_hp, range(vHP, vHP + 32), vT)
    stamp(g, 2)
    for c in range(4):
        g(f"v_add_f32 v{vH+c}, v{vHP+c}, v{vHP+4+c}")
        g(f"v_add_f32 v{vT}, v{vHP+8+c}, v{vHP+12+c}")
        g(f"v_add_f32 v{vT2}, v{vHP+16+c}, v{vHP+20+c}")
        g(f"v_add_f32 v{vT3}, v{vHP+24+c}, v{vHP+28+c}")
        g(f"v_add_f32 v{vH+c}, v{vH+c}, v{vT}")
        g(f"v_add_f32 v{vT2}, v{vT2}, v{vT3}")
        g(f"v_add_f32 v{vH+c}, v{vH+c}, v{vT2}")
    bf16r2(g, vH, vH + 1, vT)
    bf16r2(g, vH + 2, vH + 3, vT)
    g(f"v_lshlrev_b32 v{vT}, 16, v{vX}")
    g(f"v_add_f32 v{vH}, v{vH}, v{vT}")
    g(f"v_and_b32 v{vT}, 0xffff0000, v{vX}")
    g(f"v_add_f32 v{vH+1}, v{vH+1}, v{vT}")
    g(f"v_lshlrev_b32 v{vT}, 16, v{vX+1}")
    g(f"v_add_f32 v{vH+2}, v{vH+2}, v{vT}")
    g(f"v_and_b32 v{vT}, 0xffff0000, v{vX+1}")
    g(f"v_add_f32 v{vH+3}, v{vH+3}, v{vT}")
    bf16r2(g, vH, vH + 1, vT)
    bf16r2(g, vH + 2, vH + 3, vT)
    g(f"s_cmp_eq_u32 s{sFb}, 0")
    g("s_cbranch_scc0 ffn_nohh")
    g(f"s_mov_b32 s{sOff}, {WS_HH}")
    g(f"buffer_store_dwordx4 v[{vH}:{vH+3}], v{vHa}, s[{sWS}:{sWS+3}], s{sOff} offen sc1")
    g.label("ffn_nohh")
    g(f"v_add_f32 v{vT}, v{vH}, v{vH+1}")
    g(f"v_add_f32 v{vT2}, v{vH+2}, v{vH+3}")
    g(f"v_add_f32 v{vT}, v{vT}, v{vT2}")
    half_reduce(g, vT, vT2)
    g(f"ds_write_b32 v{vSw}, v{vT} offset:{SUM}")
    g("s_waitcnt lgkmcnt(0)")
    g("s_barrier")
    g(f"ds_read_b128 v[{vS}:{vS+3}], v{vSr} offset:{SUM}")
    g(f"ds_read_b32 v{vS+4}, v{vSr} offset:{SUM+16}")
    g("s_waitcnt lgkmcnt(0)")
    g(f"v_add_f32 v{vS}, v{vS}, v{vS+1}")
    g(f"v_add_f32 v{vS+2}, v{vS+2}, v{vS+3}")
    g(f"v_add_f32 v{vS}, v{vS}, v{vS+4}")
    g(f"v_add_f32 v{vS}, v{vS}, v{vS+2}")
    g(f"v_mul_f32 v{vS+5}, {INV640:#x}, v{vS}")
    g(f"v_sub_f32 v{vT2}, v{vH}, v{vS+5}")
    g(f"v_mul_f32 v{vT}, v{vT2}, v{vT2}")
    for c in range(1, 4):
        g(f"v_sub_f32 v{vT2}, v{vH+c}, v{vS+5}")
        g(f"v_fmac_f32 v{vT}, v{vT2}, v{vT2}")
    half_reduce(g, vT, vT2)
    g(f"ds_write_b32 v{vSw}, v{vT} offset:{SUM2}")
    bf16r(g, vMb, vS + 5)
    g("s_waitcnt lgkmcnt(0)")
    g("s_barrier")
    g(f"ds_read_b128 v[{vS}:{vS+3}], v{vSr} offset:{SUM2}")
    g(f"ds_read_b32 v{vS+4}, v{vSr} offset:{SUM2+16}")
    for c in range(4):
        g(f"v_sub_f32 v{vH+c}, v{vH+c}, v{vMb}")
    bf16r2(g, vH, vH + 1, vT)
    bf16r2(g, vH + 2, vH + 3, vT)
    g("s_waitcnt lgkmcnt(0)")
    g(f"v_add_f32 v{vS}, v{vS}, v{vS+1}")
    g(f"v_add_f32 v{vS+2}, v{vS+2}, v{vS+3}")
    g(f"v_add_f32 v{vS}, v{vS}, v{vS+4}")
    g(f"v_add_f32 v{vS}, v{vS}, v{vS+2}")
    g(f"v_mul_f32 v{vS}, {INV640:#x}, v{vS}")
    bf16r(g, vS, vS)
    g(f"v_add_f32 v{vS}, {EPS:#x}, v{vS}")
    bf16r(g, vS, vS)
    g(f"v_sqrt_f32 v{vS}, v{vS}")
    bf16r(g, vSd, vS)
    g(f"v_rcp_f32 v{vS+1}, v{vSd}")
    for c in range(4):
        g(f"v_mul_f32 v{vS+2}, v{vH+c}, v{vS+1}")
        g(f"v_fma_f32 v{vH+c}, -v{vS+2}, v{vSd}, v{vH+c}")
        g(f"v_fma_f32 v{vH+c}, v{vH+c}, v{vS+1}, v{vS+2}")
    bf16r2(g, vH, vH + 1, vT)
    bf16r2(g, vH + 2, vH + 3, vT)
    for c in range(4):
        g(f"ds_write_b32 v{vHNa}, v{vH+c} offset:{HN + c*8}")
    g(f"v_lshrrev_b32 v{vT}, 2, v{vLane}")
    g(f"s_lshl_b32 s{sT0}, s{sWave}, 7")
    g(f"v_add_u32 v{vT}, s{sT0}, v{vT}")
    g(f"v_lshlrev_b32 v{vT}, 3, v{vT}")
    for c in range(16):
        g(f"v_mov_b32 v{vAcc+c}, 0")
    g("s_waitcnt lgkmcnt(0)")
    g("s_barrier")
    stamp(g, 3)
    vOv = vHP
    for i in range(8):
        g(f"ds_read_b64 v[{vOv+2*i}:{vOv+2*i+1}], v{vT} offset:{HN + i*128}")
    for i in range(8):
        g(f"s_waitcnt lgkmcnt({7-i})")
        gemv_step(g, vW1 + 4 * i, vAcc, vOv + 2 * i, vOv + 2 * i + 1, vT2, vT3)
    stamp(g, 4)
    wave_reduce_64(g, vAcc, vLane, sWave, RED, RED2, vT, vT2, vT3, vW1, sT0)
    g("s_barrier")
    g(f"s_cmp_eq_u32 s{sWave}, 0")
    g("s_cbranch_scc0 ffn_h1_skip")
    g(f"v_lshlrev_b32 v{vT}, 2, v{vLane}")
    for w in range(5):
        g(f"ds_read_b32 v{vW1+w}, v{vT} offset:{RED2 + w*256}")
    g(f"v_lshlrev_b32 v{vB1}, 16, v{vB1}")
    g(f"v_and_b32 v{vT}, 31, v{vLane}")
    g(f"v_lshlrev_b32 v{vT}, 3, v{vT}")
    g(f"v_lshrrev_b32 v{vT2}, 5, v{vLane}")
    g(f"v_lshlrev_b32 v{vT2}, 2, v{vT2}")
    g(f"v_add_u32 v{vT}, v{vT}, v{vT2}")
    g("s_waitcnt lgkmcnt(0)")
    g(f"v_add_f32 v{vW1}, v{vW1}, v{vW1+1}")
    g(f"v_add_f32 v{vW1+2}, v{vW1+2}, v{vW1+3}")
    g(f"v_add_f32 v{vW1}, v{vW1}, v{vW1+4}")
    g(f"v_add_f32 v{vW1}, v{vW1}, v{vW1+2}")
    bf16r(g, vW1, vW1)
    g(f"v_add_f32 v{vW1}, v{vW1}, v{vB1}")
    bf16r(g, vW1, vW1)
    g(f"v_max_f32 v{vW1}, 0, v{vW1}")
    g(f"v_mul_f32 v{vW1}, v{vW1}, v{vW1}")
    bf16r(g, vW1, vW1)
    g(f"ds_write_b32 v{vT}, v{vW1} offset:{H1}")
    g("s_waitcnt lgkmcnt(0)")
    g.label("ffn_h1_skip")
    g(f"v_lshlrev_b32 v{vT}, 6, v{vRG}")
    for c in range(16):
        g(f"v_mov_b32 v{vAcc+c}, 0")
    g("s_barrier")
    stamp(g, 5)
    for i in range(0, 8, 2):
        g(f"ds_read_b128 v[{vOv+2*i}:{vOv+2*i+3}], v{vT} offset:{H1 + i*8}")
    g("s_waitcnt lgkmcnt(0)")
    for i in range(8):
        gemv_step(g, vW2 + 4 * i, vAcc, vOv + 2 * i, vOv + 2 * i + 1, vT2, vT3)
    stamp(g, 6)
    g(f"v_mul_u32_u24 v{vT}, 5120, v{vRG}")
    g(f"v_lshlrev_b32 v{vT2}, 5, v{vCC}")
    g(f"v_add_u32 v{vT}, v{vT}, v{vT2}")
    for b in range(2):
        for q in range(2):
            r = vAcc + 8 * b + 4 * q
            g(f"ds_write_b128 v{vT}, v[{r}:{r+3}] offset:{R3 + b*2560 + q*16}")
    g("s_waitcnt lgkmcnt(0)")
    g("s_barrier")
    for rg in range(4):
        g(f"ds_read_b128 v[{vW1+4*rg}:{vW1+4*rg+3}], v{vHa} offset:{R3 + rg*5120}")
    g(f"s_mul_i32 s{sT0}, s{sFb}, 5120")
    g(f"s_add_u32 s{sT0}, s{sT0}, {WS_FP}")
    g("s_waitcnt lgkmcnt(0)")
    for c in range(4):
        g(f"v_add_f32 v{vW1+c}, v{vW1+c}, v{vW1+4+c}")
        g(f"v_add_f32 v{vW1+8+c}, v{vW1+8+c}, v{vW1+12+c}")
        g(f"v_add_f32 v{vW1+c}, v{vW1+c}, v{vW1+8+c}")
    g(f"buffer_store_dwordx4 v[{vW1}:{vW1+3}], v{vHa}, s[{sWS}:{sWS+3}], s{sT0} offen sc1")
    stamp(g, 7)
    if STAMPS == 1:
        g(f"s_cmp_eq_u32 s2, 160")
        g("s_cbranch_scc0 tail_end")
        g(f"s_cmp_eq_u32 s{sWave}, 0")
        g("s_cbranch_scc0 tail_end")
        stamp_flush(g, 8, 100, 32)
    g("s_endpgm")

    g.label("tail_fin")
    sB2, sOut, sWS = 16, 20, 24
    sFi = 28
    FL = 0
    vE, vHh, vB2 = 5, 6, 7
    vP = 8
    g("s_load_dwordx2 s[4:5], s[0:1], 72")
    g("s_load_dwordx2 s[6:7], s[0:1], 80")
    g(f"s_sub_u32 s{sFi}, s2, 208")
    g(f"s_lshl_b32 s{sT0}, s{sFi}, 6")
    g(f"v_add_u32 v{vE}, s{sT0}, v{vLane}")
    g(f"v_lshlrev_b32 v{vT3}, 2, v{vE}")
    g("s_waitcnt lgkmcnt(0)")
    srd(g, sB2, 4, 1280)
    srd(g, sOut, 6, 2560)
    srd(g, sWS, 14, WS_SIZE)
    g(f"s_cmp_ge_u32 s{sFi}, 10")
    g(f"s_cselect_b32 s{sT0}, 640, 0")
    g(f"v_subrev_u32 v{vT}, s{sT0}, v{vE}")
    g(f"v_lshlrev_b32 v{vT}, 1, v{vT}")
    g(f"buffer_load_ushort v{vB2}, v{vT}, s[{sB2}:{sB2+3}], 0 offen")
    if LIGHT:
        g(f"s_cmp_eq_u32 s{sWave}, 0")
        g("s_cbranch_scc0 fin_nolight")
        g(f"v_min_u32 v{vT}, 47, v{vLane}")
        g(f"v_mul_u32_u24 v{vT2}, 5120, v{vT}")
        g(f"s_lshl_b32 s{sT1}, s{sFi}, 8")
        g(f"s_add_u32 s{sT1}, s{sT1}, {WS_FP}")
        light_poll(g, "fin_light", [(20, vT2, sWS, f"s{sT1}")], vT)
        g.label("fin_nolight")
        g("s_barrier")
    g(f"s_mul_i32 s{sT1}, s{sWave}, {8*5120}")
    g(f"s_add_u32 s{sT1}, s{sT1}, {WS_FP}")

    def issue_fp():
        for j in range(8):
            g(f"s_add_u32 s{sOff}, s{sT1}, {j*5120}")
            g(f"buffer_load_dword v{vP+j}, v{vT3}, s[{sWS}:{sWS+3}], s{sOff} offen sc1")
        g(f"s_mov_b32 s{sOff}, {WS_HH}")
        g(f"buffer_load_dword v{vP+8}, v{vT3}, s[{sWS}:{sWS+3}], s{sOff} offen sc1")
    poll(g, "fin_poll", issue_fp, range(vP, vP + 9), vT)
    stamp(g, 2)
    g(f"v_add_f32 v{vP}, v{vP}, v{vP+1}")
    g(f"v_add_f32 v{vP+2}, v{vP+2}, v{vP+3}")
    g(f"v_add_f32 v{vP+4}, v{vP+4}, v{vP+5}")
    g(f"v_add_f32 v{vP+6}, v{vP+6}, v{vP+7}")
    g(f"v_add_f32 v{vP}, v{vP}, v{vP+2}")
    g(f"v_add_f32 v{vP+4}, v{vP+4}, v{vP+6}")
    g(f"v_add_f32 v{vP}, v{vP}, v{vP+4}")
    g(f"v_lshlrev_b32 v{vT}, 2, v0")
    g(f"ds_write_b32 v{vT}, v{vP} offset:{FL}")
    g("s_waitcnt lgkmcnt(0)")
    g("s_barrier")
    g(f"s_cmp_eq_u32 s{sWave}, 0")
    g("s_cbranch_scc0 tail_end")
    for w in range(1, 6):
        g(f"ds_read_b32 v{vP+w}, v{vT} offset:{FL + w*256}")
    g(f"v_lshlrev_b32 v{vB2}, 16, v{vB2}")
    g("s_waitcnt lgkmcnt(0)")
    g(f"v_add_f32 v{vP}, v{vP}, v{vP+1}")
    g(f"v_add_f32 v{vP+2}, v{vP+2}, v{vP+3}")
    g(f"v_add_f32 v{vP+4}, v{vP+4}, v{vP+5}")
    g(f"v_add_f32 v{vP}, v{vP}, v{vP+2}")
    g(f"v_add_f32 v{vP}, v{vP}, v{vP+4}")
    bf16r(g, vP, vP)
    g(f"v_add_f32 v{vP}, v{vP}, v{vB2}")
    bf16r(g, vP, vP)
    g(f"v_add_f32 v{vP}, v{vP}, v{vP+8}")
    g(f"v_cvt_pk_bf16_f32 v{vP}, v{vP}, v{vP}")
    g(f"v_lshlrev_b32 v{vT}, 1, v{vE}")
    g(f"buffer_store_short v{vP}, v{vT}, s[{sOut}:{sOut+3}], 0 offen")
    stamp(g, 7)
    if STAMPS == 1:
        g(f"s_cmp_eq_u32 s2, 208")
        g("s_cbranch_scc0 tail_end")
        stamp_flush(g, 8, 100, 64)
    g.label("tail_end", pad=False)
    g("s_endpgm")
    return L, 144, 48


def build(NBUF=16, nt=True, PRIO=0, PREF=0, LIGHT=0, CK=64, WNT=0):
    g = Gen()
    head = open(f"cdna_kernels/{NAME}.s.ref").read().split("; Override launch")[0]
    g.raw(head.rstrip("\n"))
    g.raw("; @launch kernel=attn_kernel grid=(256,1,1) block=(1024,1,1) lds=98304")
    g.raw("; @launch kernel=tail_kernel grid=(228,1,1) block=(384,1,1) lds=53248")
    g.raw('.amdgcn_target "amdgcn-amd-amdhsa--gfx950"')
    g.raw(".text")
    descs = []
    for fn, kw in ((k_attn, dict(NBUF=NBUF, nt=nt, PRIO=PRIO, PREF=PREF, CK=CK)), (k_tail, dict(LIGHT=LIGHT, WNT=WNT))):
        g.wr = {}
        g.store_data = {}
        descs.append(fn(g, **kw))
    g.raw('.section .rodata,"a"')
    for L, nv, ns in descs:
        g.raw(".p2align 6")
        g.raw(descriptor(L, nv, ns).rstrip("\n"))
    return g.text()


if __name__ == "__main__":
    import struct
    import numpy as np
    assert struct.unpack("<I", struct.pack("<f", 192 ** -0.5))[0] == SCALE, hex(struct.unpack("<I", struct.pack("<f", 192 ** -0.5))[0])
    assert struct.unpack("<I", struct.pack("<f", 1 / 640))[0] == INV640
    assert struct.unpack("<I", struct.pack("<f", 1e-5))[0] == EPS
    for r in range(768):
        assert (r * 43691) >> 23 == r // 192
    for t in range(320):
        assert (t * 52429) >> 22 == t // 80
    for r in range(192):
        assert (r * 1366) >> 16 == r // 48
    for w in range(160):
        assert (w * 3277) >> 16 == w // 20
    out = sys.argv[1] if len(sys.argv) > 1 else f"cdna_kernels/{NAME}.s"
    kw = {}
    for a in sys.argv[2:]:
        k, v = a.split("=")
        if k == "STAMPS":
            STAMPS = int(v)
        elif k == "STAMP_WG":
            STAMP_WG = int(v)
        else:
            kw[k] = int(v)
    open(out, "w").write(build(**kw))
    print("wrote", out)
```

```python
import sys
from asmgen import Gen

NAME = "sequential_preLN__mha_block_cached__dense_activation_squared_relu__decode"

WS_PART = 0
WS_ML = 0x30000
WS_HP = 0x40000
WS_FP = 0x4A000
WS_HH = 0x86000
WS_SENT_N = 18240
WS_SIZE = 0x100000

LOG2E = 0x3FB8AA3B
SCALE = 0x3D93CD3A
INV640 = 0x3ACCCCCD
EPS = 0x3727C5AC


def srd(g, d, base, size):
    g(f"s_mov_b32 s{d}, s{base}")
    g(f"s_and_b32 s{d+1}, s{base+1}, 0xffff")
    g(f"s_mov_b32 s{d+2}, {size}")
    g(f"s_mov_b32 s{d+3}, 0x00020000")


def allreduce(g, op, v, t):
    g(f"{op}_dpp v{v}, v{v}, v{v} quad_perm:[1,0,3,2] row_mask:0xf bank_mask:0xf")
    g(f"{op}_dpp v{v}, v{v}, v{v} quad_perm:[2,3,0,1] row_mask:0xf bank_mask:0xf")
    g(f"{op}_dpp v{v}, v{v}, v{v} row_half_mirror row_mask:0xf bank_mask:0xf")
    g(f"{op}_dpp v{v}, v{v}, v{v} row_mirror row_mask:0xf bank_mask:0xf")
    g(f"v_mov_b32 v{t}, v{v}")
    g(f"v_permlane16_swap_b32 v{v}, v{t}")
    g(f"{op} v{v}, v{v}, v{t}")
    g(f"v_mov_b32 v{t}, v{v}")
    g(f"v_permlane32_swap_b32 v{v}, v{t}")
    g(f"{op} v{v}, v{v}, v{t}")


def bf16r(g, dst, src):
    g(f"v_cvt_pk_bf16_f32 v{dst}, v{src}, v{src}")
    g(f"v_lshlrev_b32 v{dst}, 16, v{dst}")


def bf16r2(g, a, b, t):
    g(f"v_cvt_pk_bf16_f32 v{t}, v{a}, v{b}")
    g(f"v_lshlrev_b32 v{a}, 16, v{t}")
    g(f"v_and_b32 v{b}, 0xffff0000, v{t}")


def divide(g, dst, num, den, r, e):
    g(f"v_rcp_f32 v{r}, v{den}")
    g(f"v_mul_f32 v{dst}, v{num}, v{r}")
    g(f"v_fma_f32 v{e}, -v{dst}, v{den}, v{num}")
    g(f"v_fma_f32 v{dst}, v{e}, v{r}, v{dst}")


def ln_stats(g, xe, n, mb, sd, t0, t1, t2):
    g(f"v_add_f32 v{t0}, v{xe[0]}, v{xe[1]}")
    for r in xe[2:]:
        g(f"v_add_f32 v{t0}, v{t0}, v{r}")
    allreduce(g, "v_add_f32", t0, t1)
    g(f"v_mul_f32 v{t0}, {INV640:#x}, v{t0}")
    g(f"v_sub_f32 v{t1}, v{xe[0]}, v{t0}")
    g(f"v_mul_f32 v{t2}, v{t1}, v{t1}")
    for r in xe[1:]:
        g(f"v_sub_f32 v{t1}, v{r}, v{t0}")
        g(f"v_fmac_f32 v{t2}, v{t1}, v{t1}")
    allreduce(g, "v_add_f32", t2, t1)
    g(f"v_mul_f32 v{t2}, {INV640:#x}, v{t2}")
    bf16r(g, mb, t0)
    bf16r(g, t2, t2)
    g(f"v_add_f32 v{t2}, {EPS:#x}, v{t2}")
    bf16r(g, t2, t2)
    g(f"v_sqrt_f32 v{t2}, v{t2}")
    bf16r(g, sd, t2)


def ln_apply(g, x, mb, sd, r, e):
    g(f"v_sub_f32 v{x}, v{x}, v{mb}")
    bf16r(g, x, x)
    g(f"v_mov_b32 v{e}, v{x}")
    g(f"v_rcp_f32 v{r}, v{sd}")
    g(f"v_mul_f32 v{x}, v{e}, v{r}")
    g(f"v_fma_f32 v{e}, -v{x}, v{sd}, v{e}")
    g(f"v_fma_f32 v{x}, v{e}, v{r}, v{x}")
    bf16r(g, x, x)


STAMPS = False
STAMP_WG = 0


def stamp(g, idx):
    if not STAMPS:
        return
    g(f"s_memrealtime s[{70+2*idx}:{71+2*idx}]")
    g("s_waitcnt lgkmcnt(0)")


def stamp_flush(g, n, vt=0, base=0):
    if not STAMPS:
        return
    g("s_load_dwordx2 s[60:61], s[0:1], 88")
    g("s_waitcnt lgkmcnt(0)")
    srd(g, 64, 60, 256)
    g(f"s_mov_b32 s62, 0")
    for i in range(n):
        g(f"v_mov_b32 v{vt}, s{70+2*i}")
        g(f"v_mov_b32 v{vt+1}, {base + i*4}")
        g(f"buffer_store_dword v{vt}, v{vt+1}, s[64:67], 0 offen")
    g("s_waitcnt vmcnt(0)")


def header(g, label):
    g.raw(".p2align 8")
    g.raw(f".type {label},@function")
    g.raw(f"{label}:")


def descriptor(label, nvgpr, nsgpr):
    acc = (nvgpr + 3) // 4 * 4
    if STAMPS:
        nsgpr = 100
    return f""".amdhsa_kernel {label}
  .amdhsa_next_free_vgpr {nvgpr}
  .amdhsa_next_free_sgpr {nsgpr}
  .amdhsa_accum_offset {acc}
  .amdhsa_group_segment_fixed_size 0
  .amdhsa_kernarg_size 104
  .amdhsa_user_sgpr_count 2
  .amdhsa_user_sgpr_kernarg_segment_ptr 1
  .amdhsa_system_sgpr_workgroup_id_x 1
  .amdhsa_float_denorm_mode_32 3
.end_amdhsa_kernel
"""


def k_attn(g, NBUF=16, nt=True, PRIO=0, PREF=0, CK=64, NW=16):
    NQ = 320 // NW
    L = "attn_kernel"
    header(g, L)
    NT = {0: "", 1: " nt", 2: " sc1 nt", 3: " sc0 sc1 nt", 4: " sc0 nt", 5: " sc1"}[int(nt)]
    assert 64 % NBUF == 0
    sX, sK, sV, sWQ, sWS = 16, 20, 24, 28, 32
    sWave, sH, sB, sS, sT0, sT1, sKV, sOff, sSelLo, sSelHi = 36, 37, 38, 39, 40, 41, 42, 43, 44, 45
    sM1, sM0, sWqb, sRec = 46, 48, 50, 51
    sCur, sNext, sNextIdx = 52, 53, 54
    sEx = 56
    XN, QB, ML, CNT, PW, QP = 0, 2560, 3072, 3328, 4096, 8192
    vLane, vL32, vHalf, vKV, vT = 1, 2, 3, 4, 5
    vQ = 6
    vPA = 9
    vAcc = 10
    vS = 16
    vMr, vLr = 18, 19
    vP = 20
    vLA, vLB, vLC, vLD = 22, 24, 26, 28
    vT2, vT3 = 30, 31
    vPm = 32
    vPw, vPr = 34, 35
    vPPa, vPPb = 36, 40
    vRing = 44
    NPOOL = max(NBUF, NQ)
    nv = vRing + 4 * NPOOL
    XR = 16 if NQ <= 20 else nv
    if NQ > 20:
        nv += NQ
    assert nv <= (128 if NW == 16 else 256), nv

    g("s_cmp_ge_u32 s2, 256")
    g("s_cbranch_scc1 attn_end")
    if PRIO == 1:
        g("s_setprio 3")
    stamp(g, 0)
    g("s_load_dwordx2 s[4:5], s[0:1], 0")
    g("s_load_dwordx4 s[8:11], s[0:1], 8")
    g("s_load_dwordx2 s[12:13], s[0:1], 24")
    g("s_load_dwordx2 s[14:15], s[0:1], 96")
    g(f"v_and_b32 v{vLane}, 63, v0")
    g(f"v_and_b32 v{vL32}, 31, v0")
    g(f"v_bfe_u32 v{vHalf}, v0, 5, 1")
    g(f"v_lshrrev_b32 v{vT}, 6, v0")
    g(f"v_readfirstlane_b32 s{sWave}, v{vT}")
    g(f"s_and_b32 s{sT0}, s2, 7")
    g(f"s_lshr_b32 s{sT1}, s2, 3")
    g(f"s_lshl_b32 s{sH}, s{sT0}, 2")
    g(f"s_and_b32 s{sT0}, s{sT1}, 3")
    g(f"s_add_u32 s{sH}, s{sH}, s{sT0}")
    g(f"s_lshr_b32 s{sT1}, s{sT1}, 2")
    g(f"s_lshr_b32 s{sB}, s{sT1}, 2")
    g(f"s_and_b32 s{sS}, s{sT1}, 3")
    g(f"s_lshl_b32 s{sRec}, s{sB}, 5")
    g(f"s_add_u32 s{sRec}, s{sRec}, s{sH}")
    g(f"s_lshl_b32 s{sRec}, s{sRec}, 2")
    g(f"s_add_u32 s{sRec}, s{sRec}, s{sS}")
    g(f"s_mul_i32 s{sKV}, s{sRec}, 786432")
    g(f"s_mov_b32 s{sSelLo}, 0x05040100")
    g(f"s_mov_b32 s{sSelHi}, 0x07060302")
    g(f"s_mov_b32 s{sM1}, 0xcccccccc")
    g(f"s_mov_b32 s{sM1+1}, 0xcccccccc")
    g(f"s_mov_b32 s{sM0}, 0xaaaaaaaa")
    g(f"s_mov_b32 s{sM0+1}, 0xaaaaaaaa")
    g(f"s_mul_i32 s{sWqb}, s{sWave}, {2*NQ*12288}")
    g(f"s_mul_i32 s{sT0}, s{sH}, 384")
    g(f"s_add_u32 s{sWqb}, s{sWqb}, s{sT0}")
    g(f"s_mul_i32 s{sCur}, s{sWave}, {CK*384}")
    g(f"s_add_u32 s{sCur}, s{sCur}, s{sKV}")
    g(f"v_mul_u32_u24 v{vT2}, 12, v{vL32}")
    g(f"v_mul_u32_u24 v{vKV}, 384, v{vHalf}")
    g(f"v_add_u32 v{vKV}, v{vKV}, v{vT2}")
    vWo = 42
    g(f"v_mul_u32_u24 v{vWo}, {NQ*12288}, v{vHalf}")
    g(f"v_add_u32 v{vWo}, v{vWo}, v{vT2}")
    g(f"v_lshlrev_b32 v{vT}, 2, v{vLane}")
    g(f"v_mov_b32 v{vT2}, {NW}")
    g(f"v_mov_b32 v{vT3}, 0")
    g(f"ds_write_b32 v{vT3}, v{vT2} offset:{CNT}")
    if PRIO == 3:
        g(f"ds_write_b32 v{vT3}, v{vT3} offset:{CNT+4}")
        g(f"ds_write_b32 v{vT3}, v{vT3} offset:{CNT+8}")
    g("s_waitcnt lgkmcnt(0)")
    if PRIO == 3:
        g("s_barrier")
    srd(g, sX, 4, 2560)
    srd(g, sWQ, 12, 7864320)
    srd(g, sWS, 14, WS_SIZE)
    g(f"s_cmp_lt_u32 s{sWave}, 2")
    g("s_cbranch_scc0 attn_nosent")
    g(f"s_mul_i32 s{sT0}, s2, 72")
    g(f"v_add_u32 v{vT2}, s{sT0}, v0")
    g(f"v_cmp_gt_u32 vcc, 72, v0")
    g(f"s_mov_b64 s[{sEx}:{sEx+1}], vcc")
    g(f"v_cmp_gt_u32 vcc, {WS_SENT_N}, v{vT2}")
    g(f"s_and_b64 s[{sEx}:{sEx+1}], s[{sEx}:{sEx+1}], vcc")
    g(f"v_lshlrev_b32 v{vT2}, 4, v{vT2}")
    for c in range(4):
        g(f"v_mov_b32 v{vAcc+c}, -1")
    g(f"s_mov_b64 s[{sEx+2}:{sEx+3}], exec")
    g(f"s_mov_b64 exec, s[{sEx}:{sEx+1}]")
    g("s_cbranch_execz attn_sent_done")
    g(f"s_mov_b32 s{sT0}, {WS_HP}")
    g(f"buffer_store_dwordx4 v[{vAcc}:{vAcc+3}], v{vT2}, s[{sWS}:{sWS+3}], s{sT0} offen")
    g.label("attn_sent_done")
    g(f"s_mov_b64 exec, s[{sEx+2}:{sEx+3}]")
    g.label("attn_nosent")
    g(f"s_mul_i32 s{sT0}, s{sB}, 1280")
    vXd = 36
    for j in range(5):
        g(f"buffer_load_dword v{vXd+j}, v{vT}, s[{sX}:{sX+3}], s{sT0} offen offset:{j*256}")
    for j in range(NQ):
        g(f"s_add_u32 s{sOff}, s{sWqb}, {j*12288}")
        r = vRing + 4 * j
        g(f"buffer_load_dwordx3 v[{r}:{r+2}], v{vWo}, s[{sWQ}:{sWQ+3}], s{sOff} offen")
    srd(g, sK, 8, 201326592)
    srd(g, sV, 10, 201326592)

    def kv_load(t, base):
        s = sK if t < 32 else sV
        i = t % 32
        r = vRing + 4 * (t % NBUF)
        g(f"s_add_u32 s{sOff}, s{base}, {i*768}")
        g(f"buffer_load_dwordx3 v[{r}:{r+2}], v{vKV}, s[{s}:{s+3}], s{sOff} offen{NT}")

    stamp(g, 2)
    g(f"s_waitcnt vmcnt({NQ})")
    stamp(g, 4)
    xe = list(range(16, 26))
    for j in range(5):
        g(f"v_lshlrev_b32 v{xe[2*j]}, 16, v{vXd+j}")
        g(f"v_and_b32 v{xe[2*j+1]}, 0xffff0000, v{vXd+j}")
    vMb, vSd = 26, 27
    ln_stats(g, xe, 640, vMb, vSd, 28, 29, 31)
    for r in xe:
        ln_apply(g, r, vMb, vSd, 28, 29)
    g(f"v_lshlrev_b32 v{vT}, 3, v{vLane}")
    for j in range(5):
        g(f"ds_write_b64 v{vT}, v[{xe[2*j]}:{xe[2*j+1]}] offset:{XN + j*512}")
    g(f"v_lshrrev_b32 v{vT}, 5, v0")
    g(f"v_mul_u32_u24 v{vT}, {NQ*4}, v{vT}")
    g("s_waitcnt lgkmcnt(0)")
    xr = XR
    for j in range(NQ // 4):
        g(f"ds_read_b128 v[{xr+4*j}:{xr+4*j+3}], v{vT} offset:{XN + j*16}")
    for c in range(6):
        g(f"v_mov_b32 v{vAcc+c}, 0")
    g("s_waitcnt lgkmcnt(0)")
    stamp(g, 5)
    for j in range(NQ):
        if PRIO:
            g(f"s_waitcnt vmcnt({NQ - 1 - j})")
        else:
            g(f"s_waitcnt vmcnt({min(63, NQ - 1 - j + min(j, NBUF))})")
        r = vRing + 4 * j
        for c in range(3):
            g(f"v_lshlrev_b32 v{36}, 16, v{r+c}")
            g(f"v_and_b32 v{37}, 0xffff0000, v{r+c}")
            g(f"v_fmac_f32 v{vAcc+2*c}, v{36}, v{xr+j}")
            g(f"v_fmac_f32 v{vAcc+2*c+1}, v{37}, v{xr+j}")
        if j < NBUF and not PRIO:
            kv_load(j, sCur)
    if PRIO == 1:
        g("s_setprio 0")
        for j in range(NBUF):
            kv_load(j, sCur)
    stamp(g, 6)
    g(f"v_lshrrev_b32 v{vT3}, 5, v0")
    g(f"v_mul_u32_u24 v{vT}, 768, v{vT3}")
    g(f"v_mul_u32_u24 v{vT2}, 24, v{vL32}")
    g(f"v_add_u32 v{vPA}, v{vT}, v{vT2}")
    for c in range(3):
        g(f"ds_write_b64 v{vPA}, v[{vAcc+2*c}:{vAcc+2*c+1}] offset:{QP + c*8}")
    g("s_waitcnt lgkmcnt(0)")

    def lds_inc(off):
        g(f"s_mov_b64 s[{sEx}:{sEx+1}], exec")
        g("s_mov_b64 exec, 1")
        g(f"v_mov_b32 v{vT2}, 1")
        g(f"v_mov_b32 v{vT3}, 0")
        g(f"ds_add_u32 v{vT3}, v{vT2} offset:{off}")
        g(f"s_mov_b64 exec, s[{sEx}:{sEx+1}]")

    def lds_spin(name, off, n):
        g(f"v_mov_b32 v{vT3}, 0")
        g.label(name)
        g(f"ds_read_b32 v{vT2}, v{vT3} offset:{off}")
        g("s_waitcnt lgkmcnt(0)")
        g(f"v_readfirstlane_b32 s{sT0}, v{vT2}")
        g(f"s_cmp_ge_u32 s{sT0}, {n}")
        g(f"s_cbranch_scc1 {name}_done")
        g("s_sleep 1")
        g(f"s_branch {name}")
        g.label(name + "_done")

    if PRIO == 3:
        lds_inc(CNT + 4)
    else:
        g("s_barrier")
    if PRIO == 2:
        for j in range(NBUF):
            kv_load(j, sCur)
    g(f"s_cmp_lt_u32 s{sWave}, 3")
    g("s_cbranch_scc0 attn_q2_skip")
    if PRIO == 3:
        lds_spin("attn_spin1", CNT + 4, NW)
    g(f"v_lshlrev_b32 v{vT}, 2, v0")
    rr = 10
    for r in range(2 * NW):
        g(f"ds_read_b32 v{rr+r}, v{vT} offset:{QP + r*768}")
    g("s_waitcnt lgkmcnt(0)")
    for st in (1, 2, 4, 8, 16):
        if st >= 2 * NW:
            break
        for r in range(0, 2 * NW, 2 * st):
            g(f"v_add_f32 v{rr+r}, v{rr+r}, v{rr+r+st}")
    g(f"v_cvt_pk_bf16_f32 v{rr}, v{rr}, v{rr}")
    g(f"v_lshlrev_b32 v{vT}, 1, v0")
    g(f"ds_write_b16 v{vT}, v{rr} offset:{QB}")
    g("s_waitcnt lgkmcnt(0)")
    if PRIO == 3:
        lds_inc(CNT + 8)
    g.label("attn_q2_skip")
    if PRIO == 3:
        for j in range(NBUF):
            kv_load(j, sCur)
        lds_spin("attn_spin2", CNT + 8, 3)
    else:
        g("s_barrier")
    g(f"v_mul_u32_u24 v{vT}, 12, v{vL32}")
    for c in range(3):
        g(f"ds_read_b32 v{vQ+c}, v{vT} offset:{QB + 4*c}")
    g(f"v_bfrev_b32 v{vT2}, v{vL32}")
    g(f"v_lshrrev_b32 v{vT2}, 26, v{vT2}")
    if CK == 32:
        g(f"v_and_b32 v{vT2}, 30, v{vT2}")
    g(f"v_lshlrev_b32 v{vT3}, 6, v{vHalf}")
    g(f"s_lshl_b32 s{sT0}, s{sWave}, 7")
    g(f"v_add_u32 v{vPr}, s{sT0}, v{vT3}")
    g(f"v_add_u32 v{vPw}, v{vPr}, v{vT2}")
    for c in range(6):
        g(f"v_mov_b32 v{vAcc+c}, 0")
    g(f"v_mov_b32 v{vMr}, 0xff800000")
    g(f"v_mov_b32 v{vLr}, 0")
    g("s_waitcnt lgkmcnt(0)")
    stamp(g, 1)

    if CK == 32:
        assert NBUF == 16
        g.label("attn_loop")
        g(f"s_mov_b64 s[{sEx}:{sEx+1}], exec")
        g("s_mov_b64 exec, 1")
        g(f"v_mov_b32 v{vT2}, 1")
        g(f"v_mov_b32 v{vT3}, 0")
        g(f"ds_add_rtn_u32 v{vS+1}, v{vT3}, v{vT2} offset:{CNT}")
        g(f"s_mov_b64 exec, s[{sEx}:{sEx+1}]")

        def ld(t, base):
            sr = sK if t < 16 else sV
            i = t % 16
            r = vRing + 4 * (t % NBUF)
            g(f"s_add_u32 s{sOff}, s{base}, {i*768}")
            g(f"buffer_load_dwordx3 v[{r}:{r+2}], v{vKV}, s[{sr}:{sr+3}], s{sOff} offen{NT}")
        for t in range(16):
            r = vRing + 4 * t
            P = vP + (t & 1)
            g(f"s_waitcnt vmcnt({NBUF-1})")
            g(f"v_dot2_f32_bf16 v{P}, v{r}, v{vQ}, 0")
            g(f"v_dot2_f32_bf16 v{P}, v{r+1}, v{vQ+1}, v{P}")
            g(f"v_dot2_f32_bf16 v{P}, v{r+2}, v{vQ+2}, v{P}")
            ld(t + 16, sCur)
            if t & 1:
                g(f"v_permlane16_swap_b32 v{vP}, v{vP+1}")
                g(f"v_add_f32 v{vLA+((t>>1)&1)}, v{vP}, v{vP+1}")
            if (t & 3) == 3:
                d = vLB + ((t >> 2) & 1)
                g(f"v_add_f32_dpp v{d}, v{vLA}, v{vLA} row_ror:8 row_mask:0xf bank_mask:0x3")
                g(f"v_add_f32_dpp v{d}, v{vLA+1}, v{vLA+1} row_ror:8 row_mask:0xf bank_mask:0xc")
            if (t & 7) == 7:
                d = vLC + ((t >> 3) & 1)
                g(f"v_add_f32_dpp v{d}, v{vLB}, v{vLB} row_shl:4 row_mask:0xf bank_mask:0x5")
                g(f"v_add_f32_dpp v{d}, v{vLB+1}, v{vLB+1} row_shr:4 row_mask:0xf bank_mask:0xa")
            if t == 15:
                g(f"v_add_f32_dpp v{vT2}, v{vLC}, v{vLC} quad_perm:[2,3,0,1] row_mask:0xf bank_mask:0xf")
                g(f"v_add_f32_dpp v{vT3}, v{vLC+1}, v{vLC+1} quad_perm:[2,3,0,1] row_mask:0xf bank_mask:0xf")
                g(f"v_cndmask_b32 v{vLD}, v{vT2}, v{vT3}, s[{sM1}:{sM1+1}]")
                g(f"v_add_f32_dpp v{vS}, v{vLD}, v{vLD} quad_perm:[1,0,3,2] row_mask:0xf bank_mask:0xf")
        bf16r(g, vS, vS)
        g(f"v_mul_f32 v{vS}, {SCALE:#x}, v{vS}")
        bf16r(g, vS, vS)
        vCm, vAl = vLA, vLA + 1
        g(f"v_mov_b32 v{vCm}, v{vS}")
        allreduce(g, "v_max_f32", vCm, vT2)
        g(f"v_max_f32 v{vCm}, v{vCm}, v{vMr}")
        g(f"v_sub_f32 v{vAl}, v{vMr}, v{vCm}")
        g(f"v_mul_f32 v{vAl}, {LOG2E:#x}, v{vAl}")
        g(f"v_exp_f32 v{vAl}, v{vAl}")
        g(f"v_sub_f32 v{vS}, v{vS}, v{vCm}")
        g(f"v_mul_f32 v{vS}, {LOG2E:#x}, v{vS}")
        g(f"v_exp_f32 v{vS}, v{vS}")
        g(f"v_mov_b32 v{vMr}, v{vCm}")
        g(f"v_fma_f32 v{vLr}, v{vLr}, v{vAl}, v{vS}")
        g(f"v_cvt_pk_bf16_f32 v{vT}, v{vS}, v{vS}")
        g(f"ds_write_b16 v{vPw}, v{vT} offset:{PW}")
        for c in range(6):
            g(f"v_mul_f32 v{vAcc+c}, v{vAcc+c}, v{vAl}")
        g("s_waitcnt lgkmcnt(0)")
        g(f"ds_read_b128 v[{vPPa}:{vPPa+3}], v{vPr} offset:{PW}")
        g(f"ds_read_b128 v[{vPPb}:{vPPb+3}], v{vPr} offset:{PW+16}")
        g(f"v_readfirstlane_b32 s{sNextIdx}, v{vS+1}")
        g(f"s_mul_i32 s{sNext}, s{sNextIdx}, 12288")
        g(f"s_add_u32 s{sNext}, s{sNext}, s{sKV}")
        g(f"s_cmp_lt_u32 s{sNextIdx}, 64")
        g(f"s_cselect_b32 s{sNext}, s{sNext}, 0x80000000")
        for j in range(8):
            t = 16 + 2 * j
            q4 = j // 4
            PP = (vPPa if q4 == 0 else vPPb) + (j % 4)
            if j % 4 == 0:
                g("s_waitcnt lgkmcnt(1)" if q4 == 0 else "s_waitcnt lgkmcnt(0)")
            ra = vRing + 4 * (t % NBUF)
            rb = vRing + 4 * ((t + 1) % NBUF)
            g(f"s_waitcnt vmcnt({NBUF-2})")
            for c in range(3):
                g(f"v_perm_b32 v{vPm}, v{rb+c}, v{ra+c}, s{sSelLo}")
                g(f"v_perm_b32 v{vPm+1}, v{rb+c}, v{ra+c}, s{sSelHi}")
                g(f"v_dot2_f32_bf16 v{vAcc+2*c}, v{vPm}, v{PP}, v{vAcc+2*c}")
                g(f"v_dot2_f32_bf16 v{vAcc+2*c+1}, v{vPm+1}, v{PP}, v{vAcc+2*c+1}")
            ld(t - 16, sNext)
            ld(t + 1 - 16, sNext)
        g(f"s_mov_b32 s{sCur}, s{sNext}")
        g(f"s_cmp_lt_u32 s{sNextIdx}, 64")
        g("s_cbranch_scc1 attn_loop")
        g(f"v_mul_f32 v{vLr}, 0.5, v{vLr}")
        stamp(g, 3)
    else:
        g.label("attn_loop")
        g(f"s_mov_b64 s[{sEx}:{sEx+1}], exec")
        g("s_mov_b64 exec, 1")
        g(f"v_mov_b32 v{vT2}, 1")
        g(f"v_mov_b32 v{vT3}, 0")
        g(f"ds_add_rtn_u32 v{vS+1}, v{vT3}, v{vT2} offset:{CNT}")
        g(f"s_mov_b64 exec, s[{sEx}:{sEx+1}]")
        for t in range(32):
            i5 = t
            r = vRing + 4 * (t % NBUF)
            P = vP + (t & 1)
            g(f"s_waitcnt vmcnt({NBUF-1})")
            g(f"v_dot2_f32_bf16 v{P}, v{r}, v{vQ}, 0")
            g(f"v_dot2_f32_bf16 v{P}, v{r+1}, v{vQ+1}, v{P}")
            g(f"v_dot2_f32_bf16 v{P}, v{r+2}, v{vQ+2}, v{P}")
            kv_load(t + NBUF, sCur)
            if i5 & 1:
                g(f"v_permlane16_swap_b32 v{vP}, v{vP+1}")
                g(f"v_add_f32 v{vLA+((i5>>1)&1)}, v{vP}, v{vP+1}")
            if (i5 & 3) == 3:
                d = vLB + ((i5 >> 2) & 1)
                g(f"v_add_f32_dpp v{d}, v{vLA}, v{vLA} row_ror:8 row_mask:0xf bank_mask:0x3")
                g(f"v_add_f32_dpp v{d}, v{vLA+1}, v{vLA+1} row_ror:8 row_mask:0xf bank_mask:0xc")
            if (i5 & 7) == 7:
                d = vLC + ((i5 >> 3) & 1)
                g(f"v_add_f32_dpp v{d}, v{vLB}, v{vLB} row_shl:4 row_mask:0xf bank_mask:0x5")
                g(f"v_add_f32_dpp v{d}, v{vLB+1}, v{vLB+1} row_shr:4 row_mask:0xf bank_mask:0xa")
            if (i5 & 15) == 15:
                d = vLD + ((i5 >> 4) & 1)
                g(f"v_add_f32_dpp v{vT2}, v{vLC}, v{vLC} quad_perm:[2,3,0,1] row_mask:0xf bank_mask:0xf")
                g(f"v_add_f32_dpp v{vT3}, v{vLC+1}, v{vLC+1} quad_perm:[2,3,0,1] row_mask:0xf bank_mask:0xf")
                g(f"v_cndmask_b32 v{d}, v{vT2}, v{vT3}, s[{sM1}:{sM1+1}]")
            if i5 == 31:
                g(f"v_add_f32_dpp v{vT2}, v{vLD}, v{vLD} quad_perm:[1,0,3,2] row_mask:0xf bank_mask:0xf")
                g(f"v_add_f32_dpp v{vT3}, v{vLD+1}, v{vLD+1} quad_perm:[1,0,3,2] row_mask:0xf bank_mask:0xf")
                g(f"v_cndmask_b32 v{vS}, v{vT2}, v{vT3}, s[{sM0}:{sM0+1}]")
        bf16r(g, vS, vS)
        g(f"v_mul_f32 v{vS}, {SCALE:#x}, v{vS}")
        bf16r(g, vS, vS)
        vCm, vAl = vLA, vLA + 1
        g(f"v_mov_b32 v{vCm}, v{vS}")
        allreduce(g, "v_max_f32", vCm, vT2)
        g(f"v_max_f32 v{vCm}, v{vCm}, v{vMr}")
        g(f"v_sub_f32 v{vAl}, v{vMr}, v{vCm}")
        g(f"v_mul_f32 v{vAl}, {LOG2E:#x}, v{vAl}")
        g(f"v_exp_f32 v{vAl}, v{vAl}")
        g(f"v_sub_f32 v{vS}, v{vS}, v{vCm}")
        g(f"v_mul_f32 v{vS}, {LOG2E:#x}, v{vS}")
        g(f"v_exp_f32 v{vS}, v{vS}")
        g(f"v_mov_b32 v{vMr}, v{vCm}")
        g(f"v_fma_f32 v{vLr}, v{vLr}, v{vAl}, v{vS}")
        g(f"v_cvt_pk_bf16_f32 v{vT}, v{vS}, v{vS}")
        g(f"ds_write_b16 v{vPw}, v{vT} offset:{PW}")
        for c in range(6):
            g(f"v_mul_f32 v{vAcc+c}, v{vAcc+c}, v{vAl}")
        g("s_waitcnt lgkmcnt(0)")
        g(f"ds_read_b128 v[{vPPa}:{vPPa+3}], v{vPr} offset:{PW}")
        g(f"ds_read_b128 v[{vPPb}:{vPPb+3}], v{vPr} offset:{PW+16}")
        g(f"v_readfirstlane_b32 s{sNextIdx}, v{vS+1}")
        g(f"s_mul_i32 s{sNext}, s{sNextIdx}, 24576")
        g(f"s_add_u32 s{sNext}, s{sNext}, s{sKV}")
        g(f"s_cmp_lt_u32 s{sNextIdx}, 32")
        g(f"s_cselect_b32 s{sNext}, s{sNext}, 0x80000000")
        for j in range(16):
            t = 32 + 2 * j
            q4 = j // 4
            PP = (vPPa if (q4 & 1) == 0 else vPPb) + (j % 4)
            if j % 4 == 0:
                if q4 + 1 < 4:
                    g("s_waitcnt lgkmcnt(1)")
                else:
                    g("s_waitcnt lgkmcnt(0)")
            ra = vRing + 4 * (t % NBUF)
            rb = vRing + 4 * ((t + 1) % NBUF)
            g(f"s_waitcnt vmcnt({NBUF-2})")
            for c in range(3):
                g(f"v_perm_b32 v{vPm}, v{rb+c}, v{ra+c}, s{sSelLo}")
                g(f"v_perm_b32 v{vPm+1}, v{rb+c}, v{ra+c}, s{sSelHi}")
                g(f"v_dot2_f32_bf16 v{vAcc+2*c}, v{vPm}, v{PP}, v{vAcc+2*c}")
                g(f"v_dot2_f32_bf16 v{vAcc+2*c+1}, v{vPm+1}, v{PP}, v{vAcc+2*c+1}")
            for tt in (t + NBUF, t + 1 + NBUF):
                if tt < 64:
                    kv_load(tt, sCur)
                else:
                    kv_load(tt - 64, sNext)
            if j % 4 == 3 and q4 + 2 < 4:
                d = vPPa if (q4 & 1) == 0 else vPPb
                g(f"ds_read_b128 v[{d}:{d+3}], v{vPr} offset:{PW + (q4+2)*16}")
        g(f"s_mov_b32 s{sCur}, s{sNext}")
        g(f"s_cmp_lt_u32 s{sNextIdx}, 32")
        g("s_cbranch_scc1 attn_loop")
        stamp(g, 3)
    allreduce(g, "v_add_f32", vLr, vT2)
    for c in range(3):
        g(f"ds_write_b64 v{vPA}, v[{vAcc+2*c}:{vAcc+2*c+1}] offset:{QP + c*8}")
    g(f"s_lshl_b32 s{sT0}, s{sWave}, 3")
    g(f"v_mov_b32 v{vT}, s{sT0}")
    g(f"ds_write_b64 v{vT}, v[{vMr}:{vMr+1}] offset:{ML}")
    g("s_waitcnt vmcnt(0) lgkmcnt(0)")
    g("s_barrier")
    g(f"s_cmp_lt_u32 s{sWave}, 3")
    g("s_cbranch_scc0 attn_pref" if PREF else "s_cbranch_scc0 attn_end")
    rm = vRing
    ro = vRing + 32
    g(f"v_mov_b32 v{vT}, 0")
    for w in range(0, NW, 2):
        g(f"ds_read_b128 v[{rm+2*w}:{rm+2*w+3}], v{vT} offset:{ML + 8*w}")
    g(f"v_lshlrev_b32 v{vT}, 2, v0")
    for r in range(2 * NW):
        g(f"ds_read_b32 v{ro+r}, v{vT} offset:{QP + r*768}")
    g("s_waitcnt lgkmcnt(0)")
    vMM, vLL, vO, vF = 16, 17, 18, 19
    g(f"v_max_f32 v{vMM}, v{rm}, v{rm+2}")
    for w in range(2, NW):
        g(f"v_max_f32 v{vMM}, v{vMM}, v{rm+2*w}")
    g(f"v_mov_b32 v{vLL}, 0")
    g(f"v_mov_b32 v{vO}, 0")
    for w in range(NW):
        g(f"v_sub_f32 v{vF}, v{rm+2*w}, v{vMM}")
        g(f"v_mul_f32 v{vF}, {LOG2E:#x}, v{vF}")
        g(f"v_exp_f32 v{vF}, v{vF}")
        g(f"v_add_f32 v{vT2}, v{ro+2*w}, v{ro+2*w+1}")
        g(f"v_fmac_f32 v{vLL}, v{vF}, v{rm+2*w+1}")
        g(f"v_fmac_f32 v{vO}, v{vF}, v{vT2}")
    g(f"s_mul_i32 s{sT0}, s{sRec}, 768")
    g(f"buffer_store_dword v{vO}, v{vT}, s[{sWS}:{sWS+3}], s{sT0} offen offset:{WS_PART}")
    g(f"v_mov_b32 v{vT}, 0")
    g(f"s_lshl_b32 s{sT0}, s{sRec}, 3")
    g(f"s_add_u32 s{sT0}, s{sT0}, {WS_ML}")
    g(f"buffer_store_dwordx2 v[{vMM}:{vMM+1}], v{vT}, s[{sWS}:{sWS+3}], s{sT0} offen")
    stamp(g, 7)
    if STAMPS:
        g("v_mov_b32 v100, s70")
        g("v_mov_b32 v101, s84")
        g("s_lshl_b32 s62, s2, 3")
        g("s_add_u32 s62, s62, 0xA0000")
        g("v_mov_b32 v102, 0")
        g(f"buffer_store_dwordx2 v[100:101], v102, s[{sWS}:{sWS+3}], s62 offen")
        g("s_cmp_eq_u32 s2, STAMP_WG".replace("STAMP_WG", str(STAMP_WG)))
        g("s_cbranch_scc0 attn_end")
        g(f"s_cmp_eq_u32 s{sWave}, 0")
        g("s_cbranch_scc0 attn_end")
    stamp_flush(g, 8, 100)
    if PREF:
        g("s_endpgm")
        g.label("attn_pref")
        g("s_load_dwordx2 s[4:5], s[0:1], 32")
        g("s_load_dwordx2 s[6:7], s[0:1], 48")
        g("s_load_dwordx2 s[8:9], s[0:1], 64")
        g(f"s_sub_u32 s{sT0}, s{sWave}, 3")
        g(f"v_lshlrev_b32 v{vT}, 4, v{vLane}")
        g("s_waitcnt lgkmcnt(0)")
        srd(g, 16, 4, 7864320)
        srd(g, 20, 6, 1966080)
        srd(g, 24, 8, 1966080)
        g(f"s_cmp_lt_u32 s{sT0}, 10")
        g("s_cbranch_scc0 attn_pref2")
        g(f"s_mul_i32 s{sT1}, s2, 30720")
        g(f"s_mul_i32 s{sOff}, s{sT0}, 3072")
        g(f"s_add_u32 s{sT1}, s{sT1}, s{sOff}")
        for i in range(3):
            g(f"buffer_load_dwordx4 v[{vRing+4*i}:{vRing+4*i+3}], v{vT}, s[16:19], s{sT1} offen offset:{i*1024}")
        g("s_endpgm")
        g.label("attn_pref2")
        g(f"s_mul_i32 s{sT1}, s2, 7680")
        g(f"s_cmp_eq_u32 s{sT0}, 10")
        g("s_cbranch_scc0 attn_pref3")
        for i in range(8):
            g(f"s_add_u32 s{sOff}, s{sT1}, {i*1024}")
            g(f"buffer_load_dwordx4 v[{vRing+4*i}:{vRing+4*i+3}], v{vT}, s[20:23], s{sOff} offen")
        g("s_endpgm")
        g.label("attn_pref3")
        g(f"s_cmp_eq_u32 s{sT0}, 11")
        g("s_cbranch_scc0 attn_end")
        for i in range(8):
            g(f"s_add_u32 s{sOff}, s{sT1}, {i*1024}")
            g(f"buffer_load_dwordx4 v[{vRing+4*i}:{vRing+4*i+3}], v{vT}, s[24:27], s{sOff} offen")
    g.label("attn_end", pad=False)
    g("s_endpgm")
    return L, nv, 60


def k_wo(g):
    L = "wo_kernel"
    header(g, L)
    sWO, sWS = 16, 20
    sRb, sCb, sWave, sT0, sT1, sOff = 24, 25, 26, 27, 28, 29
    OC, RED, RED2 = 0, 8192, 24576
    vLane, vT, vT2, vT3 = 1, 2, 3, 4
    vWoOff = 5
    vAcc = 8
    vW = 24
    vC = 72
    vOo, vMo = 144, 150
    nv = 160
    g("s_cmp_ge_u32 s2, 160")
    g("s_cbranch_scc1 wo_end")
    stamp(g, 0)
    g("s_load_dwordx2 s[4:5], s[0:1], 32")
    g("s_load_dwordx2 s[6:7], s[0:1], 96")
    g(f"v_and_b32 v{vLane}, 63, v0")
    g(f"v_lshrrev_b32 v{vT}, 6, v0")
    g(f"v_readfirstlane_b32 s{sWave}, v{vT}")
    g(f"s_mul_i32 s{sRb}, s2, 3277")
    g(f"s_lshr_b32 s{sRb}, s{sRb}, 16")
    g(f"s_mul_i32 s{sT0}, s{sRb}, 20")
    g(f"s_sub_u32 s{sCb}, s2, s{sT0}")
    g(f"v_lshrrev_b32 v{vT}, 2, v{vLane}")
    g(f"v_mul_u32_u24 v{vWoOff}, 1280, v{vT}")
    g(f"v_and_b32 v{vT2}, 3, v{vLane}")
    g(f"v_lshlrev_b32 v{vT2}, 4, v{vT2}")
    g(f"v_add_u32 v{vWoOff}, v{vWoOff}, v{vT2}")
    for k in range(3):
        g(f"v_add_u32 v{vT}, {k*256}, v0")
        g(f"v_mul_u32_u24 v{vT2}, 43691, v{vT}")
        g(f"v_lshrrev_b32 v{vT2}, 23, v{vT2}")
        g(f"v_mul_u32_u24 v{vT3}, 192, v{vT2}")
        g(f"v_sub_u32 v{vT3}, v{vT}, v{vT3}")
        g(f"v_lshlrev_b32 v{vMo+k}, 12, v{vT2}")
        g(f"v_lshlrev_b32 v{vT3}, 2, v{vT3}")
        g(f"v_add_u32 v{vOo+k}, v{vMo+k}, v{vT3}")
    g("s_waitcnt lgkmcnt(0)")
    srd(g, sWO, 4, 7864320)
    srd(g, sWS, 6, WS_SIZE)
    for b in range(2):
        g(f"s_lshl_b32 s{sT0}, s{sRb}, 14")
        if b:
            g(f"s_add_u32 s{sT0}, s{sT0}, {32*4096}")
        for k in range(3):
            base = vC + (b * 3 + k) * 12
            for s in range(4):
                g(f"buffer_load_dword v{base+s}, v{vOo+k}, s[{sWS}:{sWS+3}], s{sT0} offen offset:{s*1024}")
            for s in range(4):
                g(f"buffer_load_dwordx2 v[{base+4+2*s}:{base+5+2*s}], v{vMo+k}, s[{sWS}:{sWS+3}], s{sT0} offen offset:{s*1024+768}")
    g(f"s_mul_i32 s{sT0}, s{sRb}, {768*1280}")
    g(f"s_mul_i32 s{sT1}, s{sWave}, {192*1280}")
    g(f"s_add_u32 s{sT0}, s{sT0}, s{sT1}")
    g(f"s_lshl_b32 s{sT1}, s{sCb}, 6")
    g(f"s_add_u32 s{sT0}, s{sT0}, s{sT1}")
    for i in range(12):
        g(f"s_add_u32 s{sOff}, s{sT0}, {i*16*1280}")
        g(f"buffer_load_dwordx4 v[{vW+4*i}:{vW+4*i+3}], v{vWoOff}, s[{sWO}:{sWO+3}], s{sOff} offen")
    stamp(g, 1)
    g("s_waitcnt vmcnt(12)")
    stamp(g, 2)
    vM, vF, vNum, vDen, vR, vE = 6, 7, 152, 153, 154, 155
    for b in range(2):
        for k in range(3):
            base = vC + (b * 3 + k) * 12
            m = [base + 4 + 2 * s for s in range(4)]
            l = [base + 5 + 2 * s for s in range(4)]
            g(f"v_max_f32 v{vM}, v{m[0]}, v{m[1]}")
            g(f"v_max3_f32 v{vM}, v{vM}, v{m[2]}, v{m[3]}")
            for s in range(4):
                g(f"v_sub_f32 v{vF}, v{m[s]}, v{vM}")
                g(f"v_mul_f32 v{vF}, {LOG2E:#x}, v{vF}")
                g(f"v_exp_f32 v{vF}, v{vF}")
                if s == 0:
                    g(f"v_mul_f32 v{vNum}, v{vF}, v{base+s}")
                    g(f"v_mul_f32 v{vDen}, v{vF}, v{l[s]}")
                else:
                    g(f"v_fmac_f32 v{vNum}, v{vF}, v{base+s}")
                    g(f"v_fmac_f32 v{vDen}, v{vF}, v{l[s]}")
            divide(g, vF, vNum, vDen, vR, vE)
            bf16r(g, vF, vF)
            g(f"v_lshlrev_b32 v{vT}, 3, v0")
            g(f"ds_write_b32 v{vT}, v{vF} offset:{OC + k*2048 + b*4}")
    g("s_waitcnt lgkmcnt(0)")
    g("s_barrier")
    stamp(g, 3)
    g(f"v_lshrrev_b32 v{vT}, 2, v{vLane}")
    g(f"s_mul_i32 s{sT0}, s{sWave}, 192")
    g(f"v_add_u32 v{vT}, s{sT0}, v{vT}")
    g(f"v_lshlrev_b32 v{vT}, 3, v{vT}")
    vOv = vC
    for i in range(12):
        g(f"ds_read_b64 v[{vOv+2*i}:{vOv+2*i+1}], v{vT} offset:{OC + i*128}")
    for c in range(16):
        g(f"v_mov_b32 v{vAcc+c}, 0")
    g("s_waitcnt lgkmcnt(0)")
    for i in range(12):
        g(f"s_waitcnt vmcnt({11-i})")
        for c in range(4):
            r = vW + 4 * i + c
            g(f"v_lshlrev_b32 v{vT2}, 16, v{r}")
            g(f"v_and_b32 v{vT3}, 0xffff0000, v{r}")
            g(f"v_fmac_f32 v{vAcc+2*c}, v{vT2}, v{vOv+2*i}")
            g(f"v_fmac_f32 v{vAcc+2*c+1}, v{vT3}, v{vOv+2*i}")
            g(f"v_fmac_f32 v{vAcc+8+2*c}, v{vT2}, v{vOv+2*i+1}")
            g(f"v_fmac_f32 v{vAcc+8+2*c+1}, v{vT3}, v{vOv+2*i+1}")
    stamp(g, 4)
    wave_reduce_64(g, vAcc, vLane, sWave, RED, RED2, vT, vT2, vT3, vW, sT0)
    g("s_barrier")
    g(f"s_cmp_eq_u32 s{sWave}, 0")
    g("s_cbranch_scc0 wo_end")
    g(f"v_lshlrev_b32 v{vT}, 2, v{vLane}")
    for w in range(4):
        g(f"ds_read_b32 v{vW+w}, v{vT} offset:{RED2 + w*256}")
    g("s_waitcnt lgkmcnt(0)")
    g(f"v_add_f32 v{vW}, v{vW}, v{vW+1}")
    g(f"v_add_f32 v{vW+2}, v{vW+2}, v{vW+3}")
    g(f"v_add_f32 v{vW}, v{vW}, v{vW+2}")
    g(f"v_lshrrev_b32 v{vT}, 5, v{vLane}")
    g(f"v_mul_u32_u24 v{vT}, 2560, v{vT}")
    g(f"v_and_b32 v{vT2}, 31, v{vLane}")
    g(f"v_lshlrev_b32 v{vT2}, 2, v{vT2}")
    g(f"v_add_u32 v{vT}, v{vT}, v{vT2}")
    g(f"s_mul_i32 s{sT0}, s{sRb}, 5120")
    g(f"s_lshl_b32 s{sT1}, s{sCb}, 7")
    g(f"s_add_u32 s{sT0}, s{sT0}, s{sT1}")
    g(f"s_add_u32 s{sT0}, s{sT0}, {WS_HP}")
    g(f"buffer_store_dword v{vW}, v{vT}, s[{sWS}:{sWS+3}], s{sT0} offen")
    stamp(g, 7)
    if STAMPS:
        g("s_cmp_eq_u32 s2, STAMP_WG".replace("STAMP_WG", str(STAMP_WG)))
        g("s_cbranch_scc0 wo_end")
    if STAMPS:
        g(f"s_cmp_eq_u32 s{sWave}, 0")
        g("s_cbranch_scc0 wo_end")
    stamp_flush(g, 8, 100 if "wo_end" != "fin_end" else 60)
    g.label("wo_end", pad=False)
    g("s_endpgm")
    return L, nv, 40


def wave_reduce_64(g, vAcc, vLane, sWave, RED, RED2, vT, vT2, vT3, vTmp, sT0):
    g(f"v_lshlrev_b32 v{vT}, 6, v0")
    for q in range(4):
        g(f"ds_write_b128 v{vT}, v[{vAcc+4*q}:{vAcc+4*q+3}] offset:{RED + 16*q}")
    g(f"v_bfe_u32 v{vT2}, v{vLane}, 3, 2")
    g(f"v_lshlrev_b32 v{vT2}, 6, v{vT2}")
    g(f"v_lshrrev_b32 v{vT3}, 5, v{vLane}")
    g(f"v_lshlrev_b32 v{vT3}, 5, v{vT3}")
    g(f"v_add_u32 v{vT2}, v{vT2}, v{vT3}")
    g(f"v_and_b32 v{vT3}, 7, v{vLane}")
    g(f"v_lshlrev_b32 v{vT3}, 2, v{vT3}")
    g(f"v_add_u32 v{vT2}, v{vT2}, v{vT3}")
    g(f"s_lshl_b32 s{sT0}, s{sWave}, 12")
    g(f"v_add_u32 v{vT2}, s{sT0}, v{vT2}")
    g("s_waitcnt lgkmcnt(0)")
    for r in range(16):
        g(f"ds_read_b32 v{vTmp+r}, v{vT2} offset:{RED + r*256}")
    g("s_waitcnt lgkmcnt(0)")
    for r in range(1, 16):
        g(f"v_add_f32 v{vTmp}, v{vTmp}, v{vTmp+r}")
    g(f"v_lshlrev_b32 v{vT}, 2, v0")
    g(f"ds_write_b32 v{vT}, v{vTmp} offset:{RED2}")
    g("s_waitcnt lgkmcnt(0)")


def k_ffn(g):
    L = "ffn_kernel"
    header(g, L)
    sX, sW1, sB1, sW2, sWS = 16, 20, 24, 28, 32
    sWave, sT0, sT1, sOff = 36, 37, 38, 39
    sMk = 40
    H, HN, RED, RED2, H1, R3 = 0, 5120, 10240, 30720, 32000, 32768
    vLane, vT, vT2, vT3 = 1, 2, 3, 4
    vAcc = 8
    vW1 = 24
    vW2 = 56
    vHP = 88
    vX = 120
    vH = 124
    vB1 = 122
    vS = 128
    nv = 160
    g("s_cmp_ge_u32 s2, 48")
    g("s_cbranch_scc1 ffn_end")
    stamp(g, 0)
    g("s_load_dwordx2 s[4:5], s[0:1], 0")
    g("s_load_dwordx4 s[8:11], s[0:1], 48")
    g("s_load_dwordx2 s[12:13], s[0:1], 64")
    g("s_load_dwordx2 s[14:15], s[0:1], 96")
    g(f"v_and_b32 v{vLane}, 63, v0")
    g(f"v_lshrrev_b32 v{vT}, 6, v0")
    g(f"v_readfirstlane_b32 s{sWave}, v{vT}")
    g("s_waitcnt lgkmcnt(0)")
    srd(g, sX, 4, 2560)
    srd(g, sW1, 8, 1966080)
    srd(g, sB1, 10, 3072)
    srd(g, sW2, 12, 1966080)
    srd(g, sWS, 14, WS_SIZE)
    g(f"v_lshlrev_b32 v{vT}, 4, v0")
    for rb in range(8):
        g(f"s_mov_b32 s{sOff}, {WS_HP + rb*5120}")
        g(f"buffer_load_dwordx4 v[{vHP+4*rb}:{vHP+4*rb+3}], v{vT}, s[{sWS}:{sWS+3}], s{sOff} offen")
    g(f"v_lshlrev_b32 v{vT2}, 3, v0")
    g(f"buffer_load_dwordx2 v[{vX}:{vX+1}], v{vT2}, s[{sX}:{sX+3}], 0 offen")
    g(f"v_and_b32 v{vT2}, 31, v{vLane}")
    g(f"v_lshlrev_b32 v{vT2}, 1, v{vT2}")
    g(f"s_lshl_b32 s{sT0}, s2, 6")
    g(f"buffer_load_ushort v{vB1}, v{vT2}, s[{sB1}:{sB1+3}], s{sT0} offen")
    g(f"v_lshrrev_b32 v{vT}, 2, v{vLane}")
    g(f"v_mul_u32_u24 v{vT}, 3072, v{vT}")
    g(f"v_and_b32 v{vT2}, 3, v{vLane}")
    g(f"v_lshlrev_b32 v{vT2}, 4, v{vT2}")
    g(f"v_add_u32 v{vT}, v{vT}, v{vT2}")
    g(f"s_mul_i32 s{sT1}, s{sWave}, {128*3072}")
    g(f"s_add_u32 s{sT1}, s{sT1}, s{sT0}")
    for i in range(8):
        g(f"s_add_u32 s{sOff}, s{sT1}, {i*16*3072}")
        g(f"buffer_load_dwordx4 v[{vW1+4*i}:{vW1+4*i+3}], v{vT}, s[{sW1}:{sW1+3}], s{sOff} offen")
    vRG, vCC = 5, 6
    g(f"v_mul_u32_u24 v{vRG}, 52429, v0")
    g(f"v_lshrrev_b32 v{vRG}, 22, v{vRG}")
    g(f"v_mul_u32_u24 v{vT}, 80, v{vRG}")
    g(f"v_sub_u32 v{vCC}, v0, v{vT}")
    g(f"v_mul_u32_u24 v{vT}, {8*1280}, v{vRG}")
    g(f"v_lshlrev_b32 v{vT2}, 4, v{vCC}")
    g(f"v_add_u32 v{vT}, v{vT}, v{vT2}")
    g(f"s_mul_i32 s{sT1}, s2, {32*1280}")
    for i in range(8):
        g(f"s_add_u32 s{sOff}, s{sT1}, {i*1280}")
        g(f"buffer_load_dwordx4 v[{vW2+4*i}:{vW2+4*i+3}], v{vT}, s[{sW2}:{sW2+3}], s{sOff} offen")
    stamp(g, 1)
    g("s_waitcnt vmcnt(17)")
    stamp(g, 2)
    for c in range(4):
        g(f"v_add_f32 v{vH+c}, v{vHP+c}, v{vHP+4+c}")
        for rb in range(2, 8):
            g(f"v_add_f32 v{vH+c}, v{vH+c}, v{vHP+4*rb+c}")
    bf16r2(g, vH, vH + 1, vT)
    bf16r2(g, vH + 2, vH + 3, vT)
    g(f"v_lshlrev_b32 v{vT}, 16, v{vX}")
    g(f"v_add_f32 v{vH}, v{vH}, v{vT}")
    g(f"v_and_b32 v{vT}, 0xffff0000, v{vX}")
    g(f"v_add_f32 v{vH+1}, v{vH+1}, v{vT}")
    g(f"v_lshlrev_b32 v{vT}, 16, v{vX+1}")
    g(f"v_add_f32 v{vH+2}, v{vH+2}, v{vT}")
    g(f"v_and_b32 v{vT}, 0xffff0000, v{vX+1}")
    g(f"v_add_f32 v{vH+3}, v{vH+3}, v{vT}")
    bf16r2(g, vH, vH + 1, vT)
    bf16r2(g, vH + 2, vH + 3, vT)
    g(f"v_lshlrev_b32 v{vT}, 4, v0")
    g(f"ds_write_b128 v{vT}, v[{vH}:{vH+3}] offset:{H}")
    g("s_cmp_eq_u32 s2, 0")
    g("s_cbranch_scc0 ffn_nohh")
    g(f"s_mov_b32 s{sOff}, {WS_HH}")
    g(f"buffer_store_dwordx4 v[{vH}:{vH+3}], v{vT}, s[{sWS}:{sWS+3}], s{sOff} offen")
    g.label("ffn_nohh")
    g("s_waitcnt lgkmcnt(0)")
    g("s_barrier")
    g(f"v_lshlrev_b32 v{vT}, 2, v{vLane}")
    for b in range(2):
        for j in range(10):
            g(f"ds_read_b32 v{vS+10*b+j}, v{vT} offset:{H + b*2560 + j*256}")
    g("s_waitcnt lgkmcnt(0)")
    vMb0, vSd0, vMb1, vSd1 = 148, 149, 150, 151
    ln_stats(g, list(range(vS, vS + 10)), 640, vMb0, vSd0, 152, 153, 154)
    ln_stats(g, list(range(vS + 10, vS + 20)), 640, vMb1, vSd1, 152, 153, 154)
    g(f"v_cmp_le_u32 vcc, 160, v0")
    g(f"s_mov_b64 s[{sMk}:{sMk+1}], vcc")
    g(f"v_cndmask_b32 v{vMb0}, v{vMb0}, v{vMb1}, s[{sMk}:{sMk+1}]")
    g(f"v_cndmask_b32 v{vSd0}, v{vSd0}, v{vSd1}, s[{sMk}:{sMk+1}]")
    for c in range(4):
        ln_apply(g, vH + c, vMb0, vSd0, 152, 153)
    g(f"v_cndmask_b32 v{vT2}, 0, 1, s[{sMk}:{sMk+1}]")
    g(f"v_mul_u32_u24 v{vT3}, 160, v{vT2}")
    g(f"v_sub_u32 v{vT3}, v0, v{vT3}")
    g(f"v_lshlrev_b32 v{vT3}, 5, v{vT3}")
    g(f"v_lshlrev_b32 v{vT2}, 2, v{vT2}")
    g(f"v_add_u32 v{vT3}, v{vT3}, v{vT2}")
    for c in range(4):
        g(f"ds_write_b32 v{vT3}, v{vH+c} offset:{HN + c*8}")
    g("s_waitcnt lgkmcnt(0)")
    g("s_barrier")
    stamp(g, 3)
    g(f"v_lshrrev_b32 v{vT}, 2, v{vLane}")
    g(f"s_lshl_b32 s{sT0}, s{sWave}, 7")
    g(f"v_add_u32 v{vT}, s{sT0}, v{vT}")
    g(f"v_lshlrev_b32 v{vT}, 3, v{vT}")
    vOv = vHP
    for i in range(8):
        g(f"ds_read_b64 v[{vOv+2*i}:{vOv+2*i+1}], v{vT} offset:{HN + i*128}")
    for c in range(16):
        g(f"v_mov_b32 v{vAcc+c}, 0")
    g("s_waitcnt lgkmcnt(0)")
    g("s_waitcnt vmcnt(8)")
    for i in range(8):
        for c in range(4):
            r = vW1 + 4 * i + c
            g(f"v_lshlrev_b32 v{vT2}, 16, v{r}")
            g(f"v_and_b32 v{vT3}, 0xffff0000, v{r}")
            g(f"v_fmac_f32 v{vAcc+2*c}, v{vT2}, v{vOv+2*i}")
            g(f"v_fmac_f32 v{vAcc+2*c+1}, v{vT3}, v{vOv+2*i}")
            g(f"v_fmac_f32 v{vAcc+8+2*c}, v{vT2}, v{vOv+2*i+1}")
            g(f"v_fmac_f32 v{vAcc+8+2*c+1}, v{vT3}, v{vOv+2*i+1}")
    stamp(g, 4)
    wave_reduce_64(g, vAcc, vLane, sWave, RED, RED2, vT, vT2, vT3, vW1, sT0)
    g("s_barrier")
    g(f"s_cmp_eq_u32 s{sWave}, 0")
    g("s_cbranch_scc0 ffn_h1_skip")
    g(f"v_lshlrev_b32 v{vT}, 2, v{vLane}")
    for w in range(5):
        g(f"ds_read_b32 v{vW1+w}, v{vT} offset:{RED2 + w*256}")
    g("s_waitcnt lgkmcnt(0)")
    for w in range(1, 5):
        g(f"v_add_f32 v{vW1}, v{vW1}, v{vW1+w}")
    bf16r(g, vW1, vW1)
    g(f"v_lshlrev_b32 v{vB1}, 16, v{vB1}")
    g(f"v_add_f32 v{vW1}, v{vW1}, v{vB1}")
    bf16r(g, vW1, vW1)
    g(f"v_max_f32 v{vW1}, 0, v{vW1}")
    g(f"v_mul_f32 v{vW1}, v{vW1}, v{vW1}")
    bf16r(g, vW1, vW1)
    g(f"v_and_b32 v{vT}, 31, v{vLane}")
    g(f"v_lshlrev_b32 v{vT}, 3, v{vT}")
    g(f"v_lshrrev_b32 v{vT2}, 5, v{vLane}")
    g(f"v_lshlrev_b32 v{vT2}, 2, v{vT2}")
    g(f"v_add_u32 v{vT}, v{vT}, v{vT2}")
    g(f"ds_write_b32 v{vT}, v{vW1} offset:{H1}")
    g("s_waitcnt lgkmcnt(0)")
    g.label("ffn_h1_skip")
    g("s_barrier")
    stamp(g, 5)
    g(f"v_lshlrev_b32 v{vT}, 6, v{vRG}")
    for i in range(8):
        g(f"ds_read_b64 v[{vOv+2*i}:{vOv+2*i+1}], v{vT} offset:{H1 + i*8}")
    for c in range(16):
        g(f"v_mov_b32 v{vAcc+c}, 0")
    g("s_waitcnt lgkmcnt(0)")
    g("s_waitcnt vmcnt(0)")
    for i in range(8):
        for c in range(4):
            r = vW2 + 4 * i + c
            g(f"v_lshlrev_b32 v{vT2}, 16, v{r}")
            g(f"v_and_b32 v{vT3}, 0xffff0000, v{r}")
            g(f"v_fmac_f32 v{vAcc+2*c}, v{vT2}, v{vOv+2*i}")
            g(f"v_fmac_f32 v{vAcc+2*c+1}, v{vT3}, v{vOv+2*i}")
            g(f"v_fmac_f32 v{vAcc+8+2*c}, v{vT2}, v{vOv+2*i+1}")
            g(f"v_fmac_f32 v{vAcc+8+2*c+1}, v{vT3}, v{vOv+2*i+1}")
    stamp(g, 6)
    g(f"v_mul_u32_u24 v{vT}, 5120, v{vRG}")
    g(f"v_lshlrev_b32 v{vT2}, 5, v{vCC}")
    g(f"v_add_u32 v{vT}, v{vT}, v{vT2}")
    for b in range(2):
        for q in range(2):
            r = vAcc + 8 * b + 4 * q
            g(f"ds_write_b128 v{vT}, v[{r}:{r+3}] offset:{R3 + b*2560 + q*16}")
    g("s_waitcnt lgkmcnt(0)")
    g("s_barrier")
    g(f"v_lshlrev_b32 v{vT}, 4, v0")
    for rg in range(4):
        g(f"ds_read_b128 v[{vW1+4*rg}:{vW1+4*rg+3}], v{vT} offset:{R3 + rg*5120}")
    g("s_waitcnt lgkmcnt(0)")
    for c in range(4):
        g(f"v_add_f32 v{vW1+c}, v{vW1+c}, v{vW1+4+c}")
        g(f"v_add_f32 v{vW1+8+c}, v{vW1+8+c}, v{vW1+12+c}")
        g(f"v_add_f32 v{vW1+c}, v{vW1+c}, v{vW1+8+c}")
    g(f"s_mul_i32 s{sT0}, s2, 5120")
    g(f"s_add_u32 s{sT0}, s{sT0}, {WS_FP}")
    g(f"buffer_store_dwordx4 v[{vW1}:{vW1+3}], v{vT}, s[{sWS}:{sWS+3}], s{sT0} offen")
    stamp(g, 7)
    if STAMPS:
        g("s_cmp_eq_u32 s2, STAMP_WG".replace("STAMP_WG", str(STAMP_WG)))
        g("s_cbranch_scc0 ffn_end")
    if STAMPS:
        g(f"s_cmp_eq_u32 s{sWave}, 0")
        g("s_cbranch_scc0 ffn_end")
    stamp_flush(g, 8, 100 if "ffn_end" != "fin_end" else 60)
    g.label("ffn_end", pad=False)
    g("s_endpgm")
    return L, nv, 48


def k_fin(g):
    L = "fin_kernel"
    header(g, L)
    sB2, sOut, sWS = 16, 20, 24
    sT0, sOff = 28, 29
    vE, vT, vH, vB = 1, 2, 3, 4
    vP = 8
    nv = 64
    g("s_cmp_ge_u32 s2, 20")
    g("s_cbranch_scc1 fin_end")
    stamp(g, 0)
    g("s_load_dwordx2 s[4:5], s[0:1], 72")
    g("s_load_dwordx2 s[6:7], s[0:1], 80")
    g("s_load_dwordx2 s[8:9], s[0:1], 96")
    g(f"s_lshl_b32 s{sT0}, s2, 6")
    g(f"v_add_u32 v{vE}, s{sT0}, v0")
    g(f"v_lshlrev_b32 v{vT}, 2, v{vE}")
    g("s_waitcnt lgkmcnt(0)")
    srd(g, sB2, 4, 1280)
    srd(g, sOut, 6, 2560)
    srd(g, sWS, 8, WS_SIZE)
    for j in range(48):
        g(f"s_mov_b32 s{sOff}, {WS_FP + j*5120}")
        g(f"buffer_load_dword v{vP+j}, v{vT}, s[{sWS}:{sWS+3}], s{sOff} offen")
    g(f"s_mov_b32 s{sOff}, {WS_HH}")
    g(f"buffer_load_dword v{vH}, v{vT}, s[{sWS}:{sWS+3}], s{sOff} offen")
    g(f"s_cmp_ge_u32 s2, 10")
    g(f"s_cselect_b32 s{sT0}, 640, 0")
    g(f"v_subrev_u32 v{vT}, s{sT0}, v{vE}")
    g(f"v_lshlrev_b32 v{vT}, 1, v{vT}")
    g(f"buffer_load_ushort v{vB}, v{vT}, s[{sB2}:{sB2+3}], 0 offen")
    g("s_waitcnt vmcnt(0)")
    for j in range(1, 48):
        g(f"v_add_f32 v{vP}, v{vP}, v{vP+j}")
    bf16r(g, vP, vP)
    g(f"v_lshlrev_b32 v{vB}, 16, v{vB}")
    g(f"v_add_f32 v{vP}, v{vP}, v{vB}")
    bf16r(g, vP, vP)
    g(f"v_add_f32 v{vP}, v{vP}, v{vH}")
    g(f"v_cvt_pk_bf16_f32 v{vP}, v{vP}, v{vP}")
    g(f"v_lshlrev_b32 v{vT}, 1, v{vE}")
    g(f"buffer_store_short v{vP}, v{vT}, s[{sOut}:{sOut+3}], 0 offen")
    stamp(g, 7)
    if STAMPS:
        g("s_cmp_eq_u32 s2, STAMP_WG".replace("STAMP_WG", str(STAMP_WG)))
        g("s_cbranch_scc0 fin_end")
    stamp_flush(g, 8, 100 if "fin_end" != "fin_end" else 60)
    g.label("fin_end", pad=False)
    g("s_endpgm")
    return L, nv, 40


def poll(g, name, issue, regs, vt):
    g.label(name)
    issue()
    g("s_waitcnt vmcnt(0)")
    rs = list(regs)
    g(f"v_max3_u32 v{vt}, v{rs[0]}, v{rs[1]}, v{rs[2]}")
    k = 3
    while k < len(rs):
        if k + 1 < len(rs):
            g(f"v_max3_u32 v{vt}, v{vt}, v{rs[k]}, v{rs[k+1]}")
            k += 2
        else:
            g(f"v_max_u32 v{vt}, v{vt}, v{rs[k]}")
            k += 1
    g(f"v_cmp_eq_u32 vcc, -1, v{vt}")
    g(f"s_cbranch_vccz {name}_done")
    g("s_sleep 2")
    g(f"s_branch {name}")
    g.label(name + "_done")


def light_poll(g, name, loads, vt, sleep=2):
    g.label(name)
    for vd, va, sr, so in loads:
        g(f"buffer_load_dword v{vd}, v{va}, s[{sr}:{sr+3}], {so} offen sc1")
    g("s_waitcnt vmcnt(0)")
    rs = [x[0] for x in loads]
    g(f"v_mov_b32 v{vt}, v{rs[0]}")
    for r in rs[1:]:
        g(f"v_max_u32 v{vt}, v{vt}, v{r}")
    g(f"v_cmp_eq_u32 vcc, -1, v{vt}")
    g(f"s_cbranch_vccz {name}_done")
    g(f"s_sleep {sleep}")
    g(f"s_branch {name}")
    g.label(name + "_done")


def half_reduce(g, v, t):
    op = "v_add_f32"
    g(f"{op}_dpp v{v}, v{v}, v{v} quad_perm:[1,0,3,2] row_mask:0xf bank_mask:0xf")
    g(f"{op}_dpp v{v}, v{v}, v{v} quad_perm:[2,3,0,1] row_mask:0xf bank_mask:0xf")
    g(f"{op}_dpp v{v}, v{v}, v{v} row_half_mirror row_mask:0xf bank_mask:0xf")
    g(f"{op}_dpp v{v}, v{v}, v{v} row_mirror row_mask:0xf bank_mask:0xf")
    g(f"v_mov_b32 v{t}, v{v}")
    g(f"v_permlane16_swap_b32 v{v}, v{t}")
    g(f"{op} v{v}, v{v}, v{t}")


def gemv_step(g, vW, vAcc, o0, o1, t2, t3):
    for c in range(4):
        r = vW + c
        g(f"v_lshlrev_b32 v{t2}, 16, v{r}")
        g(f"v_and_b32 v{t3}, 0xffff0000, v{r}")
        g(f"v_fmac_f32 v{vAcc+2*c}, v{t2}, v{o0}")
        g(f"v_fmac_f32 v{vAcc+2*c+1}, v{t3}, v{o0}")
        g(f"v_fmac_f32 v{vAcc+8+2*c}, v{t2}, v{o1}")
        g(f"v_fmac_f32 v{vAcc+8+2*c+1}, v{t3}, v{o1}")


def k_tail(g, LIGHT=0, WNT=0):
    WN = ' nt' if WNT else ''
    L = "tail_kernel"
    header(g, L)
    sWave, sT0, sT1, sOff = 36, 37, 38, 39
    vLane, vT, vT2, vT3 = 1, 2, 3, 4
    g("s_cmp_ge_u32 s2, 228")
    g("s_cbranch_scc1 tail_end")
    stamp(g, 0)
    g("s_load_dwordx2 s[14:15], s[0:1], 96")
    g(f"v_and_b32 v{vLane}, 63, v0")
    g(f"v_lshrrev_b32 v{vT}, 6, v0")
    g(f"v_readfirstlane_b32 s{sWave}, v{vT}")
    g("s_cmp_ge_u32 s2, 208")
    g("s_cbranch_scc1 tail_fin")
    g("s_cmp_ge_u32 s2, 160")
    g("s_cbranch_scc1 tail_ffn")

    sWO, sWS = 16, 20
    sRb, sCb = 24, 25
    OC, RED, RED2 = 0, 8192, 32768
    vWoOff, vOo, vMo, vB = 5, 6, 7, 40
    vAcc = 8
    vML = 24
    vM, vF, vDen, vR = 32, 33, 34, 35
    vN = 36
    vO = 44
    vW = 60
    vOv = 92
    g("s_load_dwordx2 s[4:5], s[0:1], 32")
    g(f"s_mul_i32 s{sRb}, s2, 3277")
    g(f"s_lshr_b32 s{sRb}, s{sRb}, 16")
    g(f"s_mul_i32 s{sT0}, s{sRb}, 20")
    g(f"s_sub_u32 s{sCb}, s2, s{sT0}")
    g(f"v_lshrrev_b32 v{vT}, 2, v{vLane}")
    g(f"v_mul_u32_u24 v{vWoOff}, 1280, v{vT}")
    g(f"v_and_b32 v{vT2}, 3, v{vLane}")
    g(f"v_lshlrev_b32 v{vT2}, 4, v{vT2}")
    g(f"v_add_u32 v{vWoOff}, v{vWoOff}, v{vT2}")
    g(f"v_cmp_le_u32 vcc, 192, v0")
    g(f"v_cndmask_b32 v{vB}, 0, 1, vcc")
    g(f"v_mul_u32_u24 v{vT}, 192, v{vB}")
    g(f"v_sub_u32 v{vT}, v0, v{vT}")
    g(f"v_mul_u32_u24 v{vT2}, 1366, v{vT}")
    g(f"v_lshrrev_b32 v{vT2}, 16, v{vT2}")
    g(f"v_mul_u32_u24 v{vT3}, 48, v{vT2}")
    g(f"v_sub_u32 v{vT3}, v{vT}, v{vT3}")
    g(f"v_lshlrev_b32 v{vB}, 5, v{vB}")
    g(f"v_add_u32 v{vT2}, v{vT2}, v{vB}")
    g(f"v_lshlrev_b32 v{vMo}, 5, v{vT2}")
    g(f"v_mul_u32_u24 v{vOo}, 3072, v{vT2}")
    g(f"v_lshlrev_b32 v{vT3}, 4, v{vT3}")
    g(f"v_add_u32 v{vOo}, v{vOo}, v{vT3}")
    g("s_waitcnt lgkmcnt(0)")
    srd(g, sWS, 14, WS_SIZE)
    srd(g, sWO, 4, 7864320)
    g(f"s_mul_i32 s{sT0}, s{sRb}, {4*3072}")
    for sp in range(4):
        g(f"buffer_load_dwordx4 v[{vO+4*sp}:{vO+4*sp+3}], v{vOo}, s[{sWS}:{sWS+3}], s{sT0} offen offset:{WS_PART + sp*768}")
    g(f"s_lshl_b32 s{sT0}, s{sRb}, 7")
    g(f"s_add_u32 s{sT0}, s{sT0}, {WS_ML}")
    for q in range(2):
        g(f"buffer_load_dwordx4 v[{vML+4*q}:{vML+4*q+3}], v{vMo}, s[{sWS}:{sWS+3}], s{sT0} offen offset:{q*16}")
    g("s_barrier")
    g(f"s_mul_i32 s{sT0}, s{sRb}, {768*1280}")
    g(f"s_mul_i32 s{sT1}, s{sWave}, {128*1280}")
    g(f"s_add_u32 s{sT0}, s{sT0}, s{sT1}")
    g(f"s_lshl_b32 s{sT1}, s{sCb}, 6")
    g(f"s_add_u32 s{sT0}, s{sT0}, s{sT1}")
    for i in range(8):
        g(f"s_add_u32 s{sOff}, s{sT0}, {i*16*1280}")
        g(f"buffer_load_dwordx4 v[{vW+4*i}:{vW+4*i+3}], v{vWoOff}, s[{sWO}:{sWO+3}], s{sOff} offen{WN}")
    for c in range(16):
        g(f"v_mov_b32 v{vAcc+c}, 0")
    stamp(g, 1)
    g("s_waitcnt vmcnt(8)")
    stamp(g, 2)
    g(f"v_max_f32 v{vM}, v{vML}, v{vML+2}")
    g(f"v_max3_f32 v{vM}, v{vM}, v{vML+4}, v{vML+6}")
    for sp in range(4):
        g(f"v_sub_f32 v{vF}, v{vML+2*sp}, v{vM}")
        g(f"v_mul_f32 v{vF}, {LOG2E:#x}, v{vF}")
        g(f"v_exp_f32 v{vF}, v{vF}")
        if sp == 0:
            g(f"v_mul_f32 v{vDen}, v{vF}, v{vML+1}")
            for c in range(4):
                g(f"v_mul_f32 v{vN+c}, v{vF}, v{vO+c}")
        else:
            g(f"v_fmac_f32 v{vDen}, v{vF}, v{vML+2*sp+1}")
            for c in range(4):
                g(f"v_fmac_f32 v{vN+c}, v{vF}, v{vO+4*sp+c}")
    g(f"v_rcp_f32 v{vR}, v{vDen}")
    for c in range(4):
        g(f"v_mul_f32 v{vO+c}, v{vN+c}, v{vR}")
        g(f"v_fma_f32 v{vN+c}, -v{vO+c}, v{vDen}, v{vN+c}")
        g(f"v_fma_f32 v{vO+c}, v{vN+c}, v{vR}, v{vO+c}")
    bf16r2(g, vO, vO + 1, vT)
    bf16r2(g, vO + 2, vO + 3, vT)
    g(f"v_lshlrev_b32 v{vT}, 4, v0")
    g(f"ds_write_b128 v{vT}, v[{vO}:{vO+3}] offset:{OC}")
    g(f"v_lshrrev_b32 v{vT}, 2, v{vLane}")
    g(f"s_lshl_b32 s{sT0}, s{sWave}, 7")
    g(f"v_add_u32 v{vT}, s{sT0}, v{vT}")
    g(f"v_lshlrev_b32 v{vT}, 2, v{vT}")
    g("s_waitcnt lgkmcnt(0)")
    stamp(g, 6)
    g("s_barrier")
    stamp(g, 3)
    for i in range(8):
        g(f"ds_read_b32 v{vOv+2*i}, v{vT} offset:{OC + i*64}")
        g(f"ds_read_b32 v{vOv+2*i+1}, v{vT} offset:{OC + 3072 + i*64}")
    g("s_waitcnt lgkmcnt(0)")
    for i in range(8):
        g(f"s_waitcnt vmcnt({7-i})")
        gemv_step(g, vW + 4 * i, vAcc, vOv + 2 * i, vOv + 2 * i + 1, vT2, vT3)
    stamp(g, 4)
    wave_reduce_64(g, vAcc, vLane, sWave, RED, RED2, vT, vT2, vT3, vW, sT0)
    g("s_barrier")
    if STAMPS == 2:
        stamp(g, 5)
        g(f"s_cmp_eq_u32 s2, {STAMP_WG}")
        g("s_cbranch_scc0 wo_nostamp")
        g("s_load_dwordx2 s[60:61], s[0:1], 88")
        g("s_waitcnt lgkmcnt(0)")
        srd(g, 64, 60, 256)
        g(f"s_lshl_b32 s62, s{sWave}, 5")
        for i in range(8):
            g(f"v_mov_b32 v100, s{70+2*i}")
            g(f"v_mov_b32 v101, {i*4}")
            g(f"buffer_store_dword v100, v101, s[64:67], s62 offen")
        g("s_waitcnt vmcnt(0)")
        g.label("wo_nostamp")
    g(f"s_cmp_eq_u32 s{sWave}, 0")
    g("s_cbranch_scc0 tail_end")
    g(f"v_lshlrev_b32 v{vT}, 2, v{vLane}")
    for w in range(6):
        g(f"ds_read_b32 v{vW+w}, v{vT} offset:{RED2 + w*256}")
    g(f"v_lshrrev_b32 v{vT}, 5, v{vLane}")
    g(f"v_mul_u32_u24 v{vT}, 2560, v{vT}")
    g(f"v_and_b32 v{vT2}, 31, v{vLane}")
    g(f"v_lshlrev_b32 v{vT2}, 2, v{vT2}")
    g(f"v_add_u32 v{vT}, v{vT}, v{vT2}")
    g(f"s_mul_i32 s{sT0}, s{sRb}, 5120")
    g(f"s_lshl_b32 s{sT1}, s{sCb}, 7")
    g(f"s_add_u32 s{sT0}, s{sT0}, s{sT1}")
    g(f"s_add_u32 s{sT0}, s{sT0}, {WS_HP}")
    g("s_waitcnt lgkmcnt(0)")
    g(f"v_add_f32 v{vW}, v{vW}, v{vW+1}")
    g(f"v_add_f32 v{vW+2}, v{vW+2}, v{vW+3}")
    g(f"v_add_f32 v{vW+4}, v{vW+4}, v{vW+5}")
    g(f"v_add_f32 v{vW}, v{vW}, v{vW+2}")
    g(f"v_add_f32 v{vW}, v{vW}, v{vW+4}")
    g(f"buffer_store_dword v{vW}, v{vT}, s[{sWS}:{sWS+3}], s{sT0} offen sc1")
    stamp(g, 7)
    if STAMPS == 1:
        g(f"s_cmp_eq_u32 s2, {STAMP_WG}")
        g("s_cbranch_scc0 tail_end")
        stamp_flush(g, 8, 100, 0)
    g("s_endpgm")

    g.label("tail_ffn")
    g(f"s_cmp_eq_u32 s{sWave}, 5")
    g("s_cbranch_scc1 tail_end")
    sX, sW1, sB1, sW2, sWS = 16, 20, 24, 28, 32
    sFb = 40
    sMk = 42
    SUM, SUM2, HN, RED, RED2, H1, R3 = 0, 64, 5120, 10240, 30720, 32000, 32768
    vAcc = 8
    vW1 = 24
    vW2 = 56
    vHP = 88
    vX = 120
    vB1 = 122
    vH = 124
    vRG, vCC = 5, 6
    vHa = 7
    vS = 128
    vMb, vSd = 136, 137
    g("s_load_dwordx2 s[4:5], s[0:1], 0")
    g("s_load_dwordx4 s[8:11], s[0:1], 48")
    g("s_load_dwordx2 s[12:13], s[0:1], 64")
    g(f"s_sub_u32 s{sFb}, s2, 160")
    g(f"v_lshlrev_b32 v{vHa}, 4, v0")
    g("s_waitcnt lgkmcnt(0)")
    srd(g, sX, 4, 2560)
    srd(g, sW1, 8, 1966080)
    srd(g, sB1, 10, 3072)
    srd(g, sW2, 12, 1966080)
    srd(g, sWS, 14, WS_SIZE)
    g(f"v_lshlrev_b32 v{vT2}, 3, v0")
    g(f"buffer_load_dwordx2 v[{vX}:{vX+1}], v{vT2}, s[{sX}:{sX+3}], 0 offen")
    g(f"v_and_b32 v{vT2}, 31, v{vLane}")
    g(f"v_lshlrev_b32 v{vT2}, 1, v{vT2}")
    g(f"s_lshl_b32 s{sT0}, s{sFb}, 6")
    g(f"buffer_load_ushort v{vB1}, v{vT2}, s[{sB1}:{sB1+3}], s{sT0} offen")
    g(f"v_lshrrev_b32 v{vT}, 2, v{vLane}")
    g(f"v_mul_u32_u24 v{vT}, 3072, v{vT}")
    g(f"v_and_b32 v{vT2}, 3, v{vLane}")
    g(f"v_lshlrev_b32 v{vT2}, 4, v{vT2}")
    g(f"v_add_u32 v{vT}, v{vT}, v{vT2}")
    g(f"s_mul_i32 s{sT1}, s{sWave}, {128*3072}")
    g(f"s_add_u32 s{sT1}, s{sT1}, s{sT0}")
    for i in range(8):
        g(f"s_add_u32 s{sOff}, s{sT1}, {i*16*3072}")
        g(f"buffer_load_dwordx4 v[{vW1+4*i}:{vW1+4*i+3}], v{vT}, s[{sW1}:{sW1+3}], s{sOff} offen{WN}")
    g(f"v_mul_u32_u24 v{vRG}, 52429, v0")
    g(f"v_lshrrev_b32 v{vRG}, 22, v{vRG}")
    g(f"v_mul_u32_u24 v{vT}, 80, v{vRG}")
    g(f"v_sub_u32 v{vCC}, v0, v{vT}")
    g(f"v_mul_u32_u24 v{vT}, {8*1280}, v{vRG}")
    g(f"v_lshlrev_b32 v{vT2}, 4, v{vCC}")
    g(f"v_add_u32 v{vT}, v{vT}, v{vT2}")
    g(f"s_mul_i32 s{sT1}, s{sFb}, {32*1280}")
    for i in range(8):
        g(f"s_add_u32 s{sOff}, s{sT1}, {i*1280}")
        g(f"buffer_load_dwordx4 v[{vW2+4*i}:{vW2+4*i+3}], v{vT}, s[{sW2}:{sW2+3}], s{sOff} offen{WN}")
    g(f"v_cmp_le_u32 vcc, 160, v0")
    g(f"s_mov_b64 s[{sMk}:{sMk+1}], vcc")
    vBt, vSw, vSr, vHNa = 138, 139, 140, 141
    g(f"v_cndmask_b32 v{vBt}, 0, 1, s[{sMk}:{sMk+1}]")
    g(f"v_lshrrev_b32 v{vT}, 5, v0")
    g(f"v_mul_u32_u24 v{vT2}, 3, v{vBt}")
    g(f"v_add_u32 v{vT}, v{vT}, v{vT2}")
    g(f"v_lshlrev_b32 v{vSw}, 2, v{vT}")
    g(f"v_lshlrev_b32 v{vSr}, 5, v{vBt}")
    g(f"v_mul_u32_u24 v{vT3}, 160, v{vBt}")
    g(f"v_sub_u32 v{vT3}, v0, v{vT3}")
    g(f"v_lshlrev_b32 v{vT3}, 5, v{vT3}")
    g(f"v_lshlrev_b32 v{vT2}, 2, v{vBt}")
    g(f"v_add_u32 v{vHNa}, v{vT3}, v{vT2}")
    stamp(g, 1)
    if LIGHT:
        g(f"s_cmp_eq_u32 s{sWave}, 0")
        g("s_cbranch_scc0 ffn_nolight")
        la = [vS + 3, vS + 4, vS + 5]
        for k in range(3):
            g(f"v_add_u32 v{vT}, {k*64}, v{vLane}")
            g(f"v_min_u32 v{vT}, 159, v{vT}")
            g(f"v_mul_u32_u24 v{vT2}, 3277, v{vT}")
            g(f"v_lshrrev_b32 v{vT2}, 16, v{vT2}")
            g(f"v_mul_u32_u24 v{vT3}, 20, v{vT2}")
            g(f"v_sub_u32 v{vT3}, v{vT}, v{vT3}")
            g(f"v_mul_u32_u24 v{vT2}, 5120, v{vT2}")
            g(f"v_lshlrev_b32 v{vT3}, 7, v{vT3}")
            g(f"v_add_u32 v{la[k]}, v{vT2}, v{vT3}")
        g(f"s_mov_b32 s{sT1}, {WS_HP}")
        light_poll(g, "ffn_light", [(vS + k, la[k], sWS, f"s{sT1}") for k in range(3)], vT)
        g.label("ffn_nolight")
        g("s_barrier")

    def issue_hp():
        for rb in range(8):
            g(f"s_mov_b32 s{sOff}, {WS_HP + rb*5120}")
            g(f"buffer_load_dwordx4 v[{vHP+4*rb}:{vHP+4*rb+3}], v{vHa}, s[{sWS}:{sWS+3}], s{sOff} offen sc1")
    poll(g, "ffn_poll", issue_hp, range(vHP, vHP + 32), vT)
    stamp(g, 2)
    for c in range(4):
        g(f"v_add_f32 v{vH+c}, v{vHP+c}, v{vHP+4+c}")
        g(f"v_add_f32 v{vT}, v{vHP+8+c}, v{vHP+12+c}")
        g(f"v_add_f32 v{vT2}, v{vHP+16+c}, v{vHP+20+c}")
        g(f"v_add_f32 v{vT3}, v{vHP+24+c}, v{vHP+28+c}")
        g(f"v_add_f32 v{vH+c}, v{vH+c}, v{vT}")
        g(f"v_add_f32 v{vT2}, v{vT2}, v{vT3}")
        g(f"v_add_f32 v{vH+c}, v{vH+c}, v{vT2}")
    bf16r2(g, vH, vH + 1, vT)
    bf16r2(g, vH + 2, vH + 3, vT)
    g(f"v_lshlrev_b32 v{vT}, 16, v{vX}")
    g(f"v_add_f32 v{vH}, v{vH}, v{vT}")
    g(f"v_and_b32 v{vT}, 0xffff0000, v{vX}")
    g(f"v_add_f32 v{vH+1}, v{vH+1}, v{vT}")
    g(f"v_lshlrev_b32 v{vT}, 16, v{vX+1}")
    g(f"v_add_f32 v{vH+2}, v{vH+2}, v{vT}")
    g(f"v_and_b32 v{vT}, 0xffff0000, v{vX+1}")
    g(f"v_add_f32 v{vH+3}, v{vH+3}, v{vT}")
    bf16r2(g, vH, vH + 1, vT)
    bf16r2(g, vH + 2, vH + 3, vT)
    g(f"s_cmp_eq_u32 s{sFb}, 0")
    g("s_cbranch_scc0 ffn_nohh")
    g(f"s_mov_b32 s{sOff}, {WS_HH}")
    g(f"buffer_store_dwordx4 v[{vH}:{vH+3}], v{vHa}, s[{sWS}:{sWS+3}], s{sOff} offen sc1")
    g.label("ffn_nohh")
    g(f"v_add_f32 v{vT}, v{vH}, v{vH+1}")
    g(f"v_add_f32 v{vT2}, v{vH+2}, v{vH+3}")
    g(f"v_add_f32 v{vT}, v{vT}, v{vT2}")
    half_reduce(g, vT, vT2)
    g(f"ds_write_b32 v{vSw}, v{vT} offset:{SUM}")
    g("s_waitcnt lgkmcnt(0)")
    g("s_barrier")
    g(f"ds_read_b128 v[{vS}:{vS+3}], v{vSr} offset:{SUM}")
    g(f"ds_read_b32 v{vS+4}, v{vSr} offset:{SUM+16}")
    g("s_waitcnt lgkmcnt(0)")
    g(f"v_add_f32 v{vS}, v{vS}, v{vS+1}")
    g(f"v_add_f32 v{vS+2}, v{vS+2}, v{vS+3}")
    g(f"v_add_f32 v{vS}, v{vS}, v{vS+4}")
    g(f"v_add_f32 v{vS}, v{vS}, v{vS+2}")
    g(f"v_mul_f32 v{vS+5}, {INV640:#x}, v{vS}")
    g(f"v_sub_f32 v{vT2}, v{vH}, v{vS+5}")
    g(f"v_mul_f32 v{vT}, v{vT2}, v{vT2}")
    for c in range(1, 4):
        g(f"v_sub_f32 v{vT2}, v{vH+c}, v{vS+5}")
        g(f"v_fmac_f32 v{vT}, v{vT2}, v{vT2}")
    half_reduce(g, vT, vT2)
    g(f"ds_write_b32 v{vSw}, v{vT} offset:{SUM2}")
    bf16r(g, vMb, vS + 5)
    g("s_waitcnt lgkmcnt(0)")
    g("s_barrier")
    g(f"ds_read_b128 v[{vS}:{vS+3}], v{vSr} offset:{SUM2}")
    g(f"ds_read_b32 v{vS+4}, v{vSr} offset:{SUM2+16}")
    for c in range(4):
        g(f"v_sub_f32 v{vH+c}, v{vH+c}, v{vMb}")
    bf16r2(g, vH, vH + 1, vT)
    bf16r2(g, vH + 2, vH + 3, vT)
    g("s_waitcnt lgkmcnt(0)")
    g(f"v_add_f32 v{vS}, v{vS}, v{vS+1}")
    g(f"v_add_f32 v{vS+2}, v{vS+2}, v{vS+3}")
    g(f"v_add_f32 v{vS}, v{vS}, v{vS+4}")
    g(f"v_add_f32 v{vS}, v{vS}, v{vS+2}")
    g(f"v_mul_f32 v{vS}, {INV640:#x}, v{vS}")
    bf16r(g, vS, vS)
    g(f"v_add_f32 v{vS}, {EPS:#x}, v{vS}")
    bf16r(g, vS, vS)
    g(f"v_sqrt_f32 v{vS}, v{vS}")
    bf16r(g, vSd, vS)
    g(f"v_rcp_f32 v{vS+1}, v{vSd}")
    for c in range(4):
        g(f"v_mul_f32 v{vS+2}, v{vH+c}, v{vS+1}")
        g(f"v_fma_f32 v{vH+c}, -v{vS+2}, v{vSd}, v{vH+c}")
        g(f"v_fma_f32 v{vH+c}, v{vH+c}, v{vS+1}, v{vS+2}")
    bf16r2(g, vH, vH + 1, vT)
    bf16r2(g, vH + 2, vH + 3, vT)
    for c in range(4):
        g(f"ds_write_b32 v{vHNa}, v{vH+c} offset:{HN + c*8}")
    g(f"v_lshrrev_b32 v{vT}, 2, v{vLane}")
    g(f"s_lshl_b32 s{sT0}, s{sWave}, 7")
    g(f"v_add_u32 v{vT}, s{sT0}, v{vT}")
    g(f"v_lshlrev_b32 v{vT}, 3, v{vT}")
    for c in range(16):
        g(f"v_mov_b32 v{vAcc+c}, 0")
    g("s_waitcnt lgkmcnt(0)")
    g("s_barrier")
    stamp(g, 3)
    vOv = vHP
    for i in range(8):
        g(f"ds_read_b64 v[{vOv+2*i}:{vOv+2*i+1}], v{vT} offset:{HN + i*128}")
    for i in range(8):
        g(f"s_waitcnt lgkmcnt({7-i})")
        gemv_step(g, vW1 + 4 * i, vAcc, vOv + 2 * i, vOv + 2 * i + 1, vT2, vT3)
    stamp(g, 4)
    wave_reduce_64(g, vAcc, vLane, sWave, RED, RED2, vT, vT2, vT3, vW1, sT0)
    g("s_barrier")
    g(f"s_cmp_eq_u32 s{sWave}, 0")
    g("s_cbranch_scc0 ffn_h1_skip")
    g(f"v_lshlrev_b32 v{vT}, 2, v{vLane}")
    for w in range(5):
        g(f"ds_read_b32 v{vW1+w}, v{vT} offset:{RED2 + w*256}")
    g(f"v_lshlrev_b32 v{vB1}, 16, v{vB1}")
    g(f"v_and_b32 v{vT}, 31, v{vLane}")
    g(f"v_lshlrev_b32 v{vT}, 3, v{vT}")
    g(f"v_lshrrev_b32 v{vT2}, 5, v{vLane}")
    g(f"v_lshlrev_b32 v{vT2}, 2, v{vT2}")
    g(f"v_add_u32 v{vT}, v{vT}, v{vT2}")
    g("s_waitcnt lgkmcnt(0)")
    g(f"v_add_f32 v{vW1}, v{vW1}, v{vW1+1}")
    g(f"v_add_f32 v{vW1+2}, v{vW1+2}, v{vW1+3}")
    g(f"v_add_f32 v{vW1}, v{vW1}, v{vW1+4}")
    g(f"v_add_f32 v{vW1}, v{vW1}, v{vW1+2}")
    bf16r(g, vW1, vW1)
    g(f"v_add_f32 v{vW1}, v{vW1}, v{vB1}")
    bf16r(g, vW1, vW1)
    g(f"v_max_f32 v{vW1}, 0, v{vW1}")
    g(f"v_mul_f32 v{vW1}, v{vW1}, v{vW1}")
    bf16r(g, vW1, vW1)
    g(f"ds_write_b32 v{vT}, v{vW1} offset:{H1}")
    g("s_waitcnt lgkmcnt(0)")
    g.label("ffn_h1_skip")
    g(f"v_lshlrev_b32 v{vT}, 6, v{vRG}")
    for c in range(16):
        g(f"v_mov_b32 v{vAcc+c}, 0")
    g("s_barrier")
    stamp(g, 5)
    for i in range(0, 8, 2):
        g(f"ds_read_b128 v[{vOv+2*i}:{vOv+2*i+3}], v{vT} offset:{H1 + i*8}")
    g("s_waitcnt lgkmcnt(0)")
    for i in range(8):
        gemv_step(g, vW2 + 4 * i, vAcc, vOv + 2 * i, vOv + 2 * i + 1, vT2, vT3)
    stamp(g, 6)
    g(f"v_mul_u32_u24 v{vT}, 5120, v{vRG}")
    g(f"v_lshlrev_b32 v{vT2}, 5, v{vCC}")
    g(f"v_add_u32 v{vT}, v{vT}, v{vT2}")
    for b in range(2):
        for q in range(2):
            r = vAcc + 8 * b + 4 * q
            g(f"ds_write_b128 v{vT}, v[{r}:{r+3}] offset:{R3 + b*2560 + q*16}")
    g("s_waitcnt lgkmcnt(0)")
    g("s_barrier")
    for rg in range(4):
        g(f"ds_read_b128 v[{vW1+4*rg}:{vW1+4*rg+3}], v{vHa} offset:{R3 + rg*5120}")
    g(f"s_mul_i32 s{sT0}, s{sFb}, 5120")
    g(f"s_add_u32 s{sT0}, s{sT0}, {WS_FP}")
    g("s_waitcnt lgkmcnt(0)")
    for c in range(4):
        g(f"v_add_f32 v{vW1+c}, v{vW1+c}, v{vW1+4+c}")
        g(f"v_add_f32 v{vW1+8+c}, v{vW1+8+c}, v{vW1+12+c}")
        g(f"v_add_f32 v{vW1+c}, v{vW1+c}, v{vW1+8+c}")
    g(f"buffer_store_dwordx4 v[{vW1}:{vW1+3}], v{vHa}, s[{sWS}:{sWS+3}], s{sT0} offen sc1")
    stamp(g, 7)
    if STAMPS == 1:
        g(f"s_cmp_eq_u32 s2, 160")
        g("s_cbranch_scc0 tail_end")
        g(f"s_cmp_eq_u32 s{sWave}, 0")
        g("s_cbranch_scc0 tail_end")
        stamp_flush(g, 8, 100, 32)
    g("s_endpgm")

    g.label("tail_fin")
    sB2, sOut, sWS = 16, 20, 24
    sFi = 28
    FL = 0
    vE, vHh, vB2 = 5, 6, 7
    vP = 8
    g("s_load_dwordx2 s[4:5], s[0:1], 72")
    g("s_load_dwordx2 s[6:7], s[0:1], 80")
    g(f"s_sub_u32 s{sFi}, s2, 208")
    g(f"s_lshl_b32 s{sT0}, s{sFi}, 6")
    g(f"v_add_u32 v{vE}, s{sT0}, v{vLane}")
    g(f"v_lshlrev_b32 v{vT3}, 2, v{vE}")
    g("s_waitcnt lgkmcnt(0)")
    srd(g, sB2, 4, 1280)
    srd(g, sOut, 6, 2560)
    srd(g, sWS, 14, WS_SIZE)
    g(f"s_cmp_ge_u32 s{sFi}, 10")
    g(f"s_cselect_b32 s{sT0}, 640, 0")
    g(f"v_subrev_u32 v{vT}, s{sT0}, v{vE}")
    g(f"v_lshlrev_b32 v{vT}, 1, v{vT}")
    g(f"buffer_load_ushort v{vB2}, v{vT}, s[{sB2}:{sB2+3}], 0 offen")
    if LIGHT:
        g(f"s_cmp_eq_u32 s{sWave}, 0")
        g("s_cbranch_scc0 fin_nolight")
        g(f"v_min_u32 v{vT}, 47, v{vLane}")
        g(f"v_mul_u32_u24 v{vT2}, 5120, v{vT}")
        g(f"s_lshl_b32 s{sT1}, s{sFi}, 8")
        g(f"s_add_u32 s{sT1}, s{sT1}, {WS_FP}")
        light_poll(g, "fin_light", [(20, vT2, sWS, f"s{sT1}")], vT)
        g.label("fin_nolight")
        g("s_barrier")
    g(f"s_mul_i32 s{sT1}, s{sWave}, {8*5120}")
    g(f"s_add_u32 s{sT1}, s{sT1}, {WS_FP}")

    def issue_fp():
        for j in range(8):
            g(f"s_add_u32 s{sOff}, s{sT1}, {j*5120}")
            g(f"buffer_load_dword v{vP+j}, v{vT3}, s[{sWS}:{sWS+3}], s{sOff} offen sc1")
        g(f"s_mov_b32 s{sOff}, {WS_HH}")
        g(f"buffer_load_dword v{vP+8}, v{vT3}, s[{sWS}:{sWS+3}], s{sOff} offen sc1")
    poll(g, "fin_poll", issue_fp, range(vP, vP + 9), vT)
    stamp(g, 2)
    g(f"v_add_f32 v{vP}, v{vP}, v{vP+1}")
    g(f"v_add_f32 v{vP+2}, v{vP+2}, v{vP+3}")
    g(f"v_add_f32 v{vP+4}, v{vP+4}, v{vP+5}")
    g(f"v_add_f32 v{vP+6}, v{vP+6}, v{vP+7}")
    g(f"v_add_f32 v{vP}, v{vP}, v{vP+2}")
    g(f"v_add_f32 v{vP+4}, v{vP+4}, v{vP+6}")
    g(f"v_add_f32 v{vP}, v{vP}, v{vP+4}")
    g(f"v_lshlrev_b32 v{vT}, 2, v0")
    g(f"ds_write_b32 v{vT}, v{vP} offset:{FL}")
    g("s_waitcnt lgkmcnt(0)")
    g("s_barrier")
    g(f"s_cmp_eq_u32 s{sWave}, 0")
    g("s_cbranch_scc0 tail_end")
    for w in range(1, 6):
        g(f"ds_read_b32 v{vP+w}, v{vT} offset:{FL + w*256}")
    g(f"v_lshlrev_b32 v{vB2}, 16, v{vB2}")
    g("s_waitcnt lgkmcnt(0)")
    g(f"v_add_f32 v{vP}, v{vP}, v{vP+1}")
    g(f"v_add_f32 v{vP+2}, v{vP+2}, v{vP+3}")
    g(f"v_add_f32 v{vP+4}, v{vP+4}, v{vP+5}")
    g(f"v_add_f32 v{vP}, v{vP}, v{vP+2}")
    g(f"v_add_f32 v{vP}, v{vP}, v{vP+4}")
    bf16r(g, vP, vP)
    g(f"v_add_f32 v{vP}, v{vP}, v{vB2}")
    bf16r(g, vP, vP)
    g(f"v_add_f32 v{vP}, v{vP}, v{vP+8}")
    g(f"v_cvt_pk_bf16_f32 v{vP}, v{vP}, v{vP}")
    g(f"v_lshlrev_b32 v{vT}, 1, v{vE}")
    g(f"buffer_store_short v{vP}, v{vT}, s[{sOut}:{sOut+3}], 0 offen")
    stamp(g, 7)
    if STAMPS == 1:
        g(f"s_cmp_eq_u32 s2, 208")
        g("s_cbranch_scc0 tail_end")
        stamp_flush(g, 8, 100, 64)
    g.label("tail_end", pad=False)
    g("s_endpgm")
    return L, 144, 48


def build(NBUF=16, nt=True, PRIO=0, PREF=0, LIGHT=0, CK=64, WNT=0, NW=16):
    g = Gen()
    head = open(f"cdna_kernels/{NAME}.s.ref").read().split("; Override launch")[0]
    g.raw(head.rstrip("\n"))
    g.raw(f"; @launch kernel=attn_kernel grid=(256,1,1) block=({NW*64},1,1) lds=98304")
    g.raw("; @launch kernel=tail_kernel grid=(228,1,1) block=(384,1,1) lds=53248")
    g.raw('.amdgcn_target "amdgcn-amd-amdhsa--gfx950"')
    g.raw(".text")
    descs = []
    for fn, kw in ((k_attn, dict(NBUF=NBUF, nt=nt, PRIO=PRIO, PREF=PREF, CK=CK, NW=NW)), (k_tail, dict(LIGHT=LIGHT, WNT=WNT))):
        g.wr = {}
        g.store_data = {}
        descs.append(fn(g, **kw))
    g.raw('.section .rodata,"a"')
    for L, nv, ns in descs:
        g.raw(".p2align 6")
        g.raw(descriptor(L, nv, ns).rstrip("\n"))
    return g.text()


if __name__ == "__main__":
    import struct
    import numpy as np
    assert struct.unpack("<I", struct.pack("<f", 192 ** -0.5))[0] == SCALE, hex(struct.unpack("<I", struct.pack("<f", 192 ** -0.5))[0])
    assert struct.unpack("<I", struct.pack("<f", 1 / 640))[0] == INV640
    assert struct.unpack("<I", struct.pack("<f", 1e-5))[0] == EPS
    for r in range(768):
        assert (r * 43691) >> 23 == r // 192
    for t in range(320):
        assert (t * 52429) >> 22 == t // 80
    for r in range(192):
        assert (r * 1366) >> 16 == r // 48
    for w in range(160):
        assert (w * 3277) >> 16 == w // 20
    out = sys.argv[1] if len(sys.argv) > 1 else f"cdna_kernels/{NAME}.s"
    kw = {}
    for a in sys.argv[2:]:
        k, v = a.split("=")
        if k == "STAMPS":
            STAMPS = int(v)
        elif k == "STAMP_WG":
            STAMP_WG = int(v)
        else:
            kw[k] = int(v)
    open(out, "w").write(build(**kw))
    print("wrote", out)
```

```python
import sys
from asmgen import Gen

NAME = "sequential_preLN__mha_block_cached__dense_activation_squared_relu__decode"

WS_PART = 0
WS_ML = 0x30000
WS_HP = 0x40000
WS_FP = 0x4A000
WS_HH = 0x86000
WS_SENT_N = 18240
WS_SIZE = 0x100000

LOG2E = 0x3FB8AA3B
SCALE = 0x3D93CD3A
INV640 = 0x3ACCCCCD
EPS = 0x3727C5AC


def srd(g, d, base, size):
    g(f"s_mov_b32 s{d}, s{base}")
    g(f"s_and_b32 s{d+1}, s{base+1}, 0xffff")
    g(f"s_mov_b32 s{d+2}, {size}")
    g(f"s_mov_b32 s{d+3}, 0x00020000")


def allreduce(g, op, v, t):
    g(f"{op}_dpp v{v}, v{v}, v{v} quad_perm:[1,0,3,2] row_mask:0xf bank_mask:0xf")
    g(f"{op}_dpp v{v}, v{v}, v{v} quad_perm:[2,3,0,1] row_mask:0xf bank_mask:0xf")
    g(f"{op}_dpp v{v}, v{v}, v{v} row_half_mirror row_mask:0xf bank_mask:0xf")
    g(f"{op}_dpp v{v}, v{v}, v{v} row_mirror row_mask:0xf bank_mask:0xf")
    g(f"v_mov_b32 v{t}, v{v}")
    g(f"v_permlane16_swap_b32 v{v}, v{t}")
    g(f"{op} v{v}, v{v}, v{t}")
    g(f"v_mov_b32 v{t}, v{v}")
    g(f"v_permlane32_swap_b32 v{v}, v{t}")
    g(f"{op} v{v}, v{v}, v{t}")


def bf16r(g, dst, src):
    g(f"v_cvt_pk_bf16_f32 v{dst}, v{src}, v{src}")
    g(f"v_lshlrev_b32 v{dst}, 16, v{dst}")


def bf16r2(g, a, b, t):
    g(f"v_cvt_pk_bf16_f32 v{t}, v{a}, v{b}")
    g(f"v_lshlrev_b32 v{a}, 16, v{t}")
    g(f"v_and_b32 v{b}, 0xffff0000, v{t}")


def divide(g, dst, num, den, r, e):
    g(f"v_rcp_f32 v{r}, v{den}")
    g(f"v_mul_f32 v{dst}, v{num}, v{r}")
    g(f"v_fma_f32 v{e}, -v{dst}, v{den}, v{num}")
    g(f"v_fma_f32 v{dst}, v{e}, v{r}, v{dst}")


def ln_stats(g, xe, n, mb, sd, t0, t1, t2):
    g(f"v_add_f32 v{t0}, v{xe[0]}, v{xe[1]}")
    for r in xe[2:]:
        g(f"v_add_f32 v{t0}, v{t0}, v{r}")
    allreduce(g, "v_add_f32", t0, t1)
    g(f"v_mul_f32 v{t0}, {INV640:#x}, v{t0}")
    g(f"v_sub_f32 v{t1}, v{xe[0]}, v{t0}")
    g(f"v_mul_f32 v{t2}, v{t1}, v{t1}")
    for r in xe[1:]:
        g(f"v_sub_f32 v{t1}, v{r}, v{t0}")
        g(f"v_fmac_f32 v{t2}, v{t1}, v{t1}")
    allreduce(g, "v_add_f32", t2, t1)
    g(f"v_mul_f32 v{t2}, {INV640:#x}, v{t2}")
    bf16r(g, mb, t0)
    bf16r(g, t2, t2)
    g(f"v_add_f32 v{t2}, {EPS:#x}, v{t2}")
    bf16r(g, t2, t2)
    g(f"v_sqrt_f32 v{t2}, v{t2}")
    bf16r(g, sd, t2)


def ln_apply(g, x, mb, sd, r, e):
    g(f"v_sub_f32 v{x}, v{x}, v{mb}")
    bf16r(g, x, x)
    g(f"v_mov_b32 v{e}, v{x}")
    g(f"v_rcp_f32 v{r}, v{sd}")
    g(f"v_mul_f32 v{x}, v{e}, v{r}")
    g(f"v_fma_f32 v{e}, -v{x}, v{sd}, v{e}")
    g(f"v_fma_f32 v{x}, v{e}, v{r}, v{x}")
    bf16r(g, x, x)


STAMPS = False
STAMP_WG = 0


def stamp(g, idx):
    if not STAMPS:
        return
    g(f"s_memrealtime s[{70+2*idx}:{71+2*idx}]")
    g("s_waitcnt lgkmcnt(0)")


def stamp_flush(g, n, vt=0, base=0):
    if not STAMPS:
        return
    g("s_load_dwordx2 s[60:61], s[0:1], 88")
    g("s_waitcnt lgkmcnt(0)")
    srd(g, 64, 60, 256)
    g(f"s_mov_b32 s62, 0")
    for i in range(n):
        g(f"v_mov_b32 v{vt}, s{70+2*i}")
        g(f"v_mov_b32 v{vt+1}, {base + i*4}")
        g(f"buffer_store_dword v{vt}, v{vt+1}, s[64:67], 0 offen")
    g("s_waitcnt vmcnt(0)")


def header(g, label):
    g.raw(".p2align 8")
    g.raw(f".type {label},@function")
    g.raw(f"{label}:")


def descriptor(label, nvgpr, nsgpr):
    acc = (nvgpr + 3) // 4 * 4
    if STAMPS:
        nsgpr = 100
    return f""".amdhsa_kernel {label}
  .amdhsa_next_free_vgpr {nvgpr}
  .amdhsa_next_free_sgpr {nsgpr}
  .amdhsa_accum_offset {acc}
  .amdhsa_group_segment_fixed_size 0
  .amdhsa_kernarg_size 104
  .amdhsa_user_sgpr_count 2
  .amdhsa_user_sgpr_kernarg_segment_ptr 1
  .amdhsa_system_sgpr_workgroup_id_x 1
  .amdhsa_float_denorm_mode_32 3
.end_amdhsa_kernel
"""


def k_attn(g, NBUF=16, nt=True, PRIO=0, PREF=0, CK=64, NW=16):
    NQ = 320 // NW
    L = "attn_kernel"
    header(g, L)
    NT = {0: "", 1: " nt", 2: " sc1 nt", 3: " sc0 sc1 nt", 4: " sc0 nt", 5: " sc1"}[int(nt)]
    assert 64 % NBUF == 0
    sX, sK, sV, sWQ, sWS = 16, 20, 24, 28, 32
    sWave, sH, sB, sS, sT0, sT1, sKV, sOff, sSelLo, sSelHi = 36, 37, 38, 39, 40, 41, 42, 43, 44, 45
    sM1, sM0, sWqb, sRec = 46, 48, 50, 51
    sCur, sNext, sNextIdx = 52, 53, 54
    sEx = 56
    XN, QB, ML, CNT, PW, QP = 0, 2560, 3072, 3328, 4096, 8192
    vLane, vL32, vHalf, vKV, vT = 1, 2, 3, 4, 5
    vQ = 6
    vPA = 9
    vAcc = 10
    vS = 16
    vMr, vLr = 18, 19
    vP = 20
    vLA, vLB, vLC, vLD = 22, 24, 26, 28
    vT2, vT3 = 30, 31
    vPm = 32
    vPw, vPr = 34, 35
    vPPa, vPPb = 36, 40
    vRing = 44
    NPOOL = max(NBUF, NQ)
    nv = vRing + 4 * NPOOL
    XR = 16 if NQ <= 20 else nv
    if NQ > 20:
        nv += NQ
    assert nv <= (128 if NW == 16 else 256), nv

    g("s_cmp_ge_u32 s2, 256")
    g("s_cbranch_scc1 attn_end")
    if PRIO == 1:
        g("s_setprio 3")
    stamp(g, 0)
    g("s_load_dwordx2 s[4:5], s[0:1], 0")
    g("s_load_dwordx4 s[8:11], s[0:1], 8")
    g("s_load_dwordx2 s[12:13], s[0:1], 24")
    g("s_load_dwordx2 s[14:15], s[0:1], 96")
    g(f"v_and_b32 v{vLane}, 63, v0")
    g(f"v_and_b32 v{vL32}, 31, v0")
    g(f"v_bfe_u32 v{vHalf}, v0, 5, 1")
    g(f"v_lshrrev_b32 v{vT}, 6, v0")
    g(f"v_readfirstlane_b32 s{sWave}, v{vT}")
    g(f"s_and_b32 s{sT0}, s2, 7")
    g(f"s_lshr_b32 s{sT1}, s2, 3")
    g(f"s_lshl_b32 s{sH}, s{sT0}, 2")
    g(f"s_and_b32 s{sT0}, s{sT1}, 3")
    g(f"s_add_u32 s{sH}, s{sH}, s{sT0}")
    g(f"s_lshr_b32 s{sT1}, s{sT1}, 2")
    g(f"s_lshr_b32 s{sB}, s{sT1}, 2")
    g(f"s_and_b32 s{sS}, s{sT1}, 3")
    g(f"s_lshl_b32 s{sRec}, s{sB}, 5")
    g(f"s_add_u32 s{sRec}, s{sRec}, s{sH}")
    g(f"s_lshl_b32 s{sRec}, s{sRec}, 2")
    g(f"s_add_u32 s{sRec}, s{sRec}, s{sS}")
    g(f"s_mul_i32 s{sKV}, s{sRec}, 786432")
    g(f"s_mov_b32 s{sSelLo}, 0x05040100")
    g(f"s_mov_b32 s{sSelHi}, 0x07060302")
    g(f"s_mov_b32 s{sM1}, 0xcccccccc")
    g(f"s_mov_b32 s{sM1+1}, 0xcccccccc")
    g(f"s_mov_b32 s{sM0}, 0xaaaaaaaa")
    g(f"s_mov_b32 s{sM0+1}, 0xaaaaaaaa")
    g(f"s_mul_i32 s{sWqb}, s{sWave}, {2*NQ*12288}")
    g(f"s_mul_i32 s{sT0}, s{sH}, 384")
    g(f"s_add_u32 s{sWqb}, s{sWqb}, s{sT0}")
    g(f"s_mul_i32 s{sCur}, s{sWave}, {CK*384}")
    g(f"s_add_u32 s{sCur}, s{sCur}, s{sKV}")
    g(f"v_mul_u32_u24 v{vT2}, 12, v{vL32}")
    g(f"v_mul_u32_u24 v{vKV}, 384, v{vHalf}")
    g(f"v_add_u32 v{vKV}, v{vKV}, v{vT2}")
    vWo = 42
    g(f"v_mul_u32_u24 v{vWo}, {NQ*12288}, v{vHalf}")
    g(f"v_add_u32 v{vWo}, v{vWo}, v{vT2}")
    g(f"v_lshlrev_b32 v{vT}, 2, v{vLane}")
    g(f"v_mov_b32 v{vT2}, {NW}")
    g(f"v_mov_b32 v{vT3}, 0")
    g(f"ds_write_b32 v{vT3}, v{vT2} offset:{CNT}")
    if PRIO == 3:
        g(f"ds_write_b32 v{vT3}, v{vT3} offset:{CNT+4}")
        g(f"ds_write_b32 v{vT3}, v{vT3} offset:{CNT+8}")
    g("s_waitcnt lgkmcnt(0)")
    if PRIO == 3:
        g("s_barrier")
    srd(g, sX, 4, 2560)
    srd(g, sWQ, 12, 7864320)
    srd(g, sWS, 14, WS_SIZE)
    g(f"s_cmp_lt_u32 s{sWave}, 2")
    g("s_cbranch_scc0 attn_nosent")
    g(f"s_mul_i32 s{sT0}, s2, 72")
    g(f"v_add_u32 v{vT2}, s{sT0}, v0")
    g(f"v_cmp_gt_u32 vcc, 72, v0")
    g(f"s_mov_b64 s[{sEx}:{sEx+1}], vcc")
    g(f"v_cmp_gt_u32 vcc, {WS_SENT_N}, v{vT2}")
    g(f"s_and_b64 s[{sEx}:{sEx+1}], s[{sEx}:{sEx+1}], vcc")
    g(f"v_lshlrev_b32 v{vT2}, 4, v{vT2}")
    for c in range(4):
        g(f"v_mov_b32 v{vAcc+c}, -1")
    g(f"s_mov_b64 s[{sEx+2}:{sEx+3}], exec")
    g(f"s_mov_b64 exec, s[{sEx}:{sEx+1}]")
    g("s_cbranch_execz attn_sent_done")
    g(f"s_mov_b32 s{sT0}, {WS_HP}")
    g(f"buffer_store_dwordx4 v[{vAcc}:{vAcc+3}], v{vT2}, s[{sWS}:{sWS+3}], s{sT0} offen")
    g.label("attn_sent_done")
    g(f"s_mov_b64 exec, s[{sEx+2}:{sEx+3}]")
    g.label("attn_nosent")
    g(f"s_mul_i32 s{sT0}, s{sB}, 1280")
    vXd = 36
    for j in range(5):
        g(f"buffer_load_dword v{vXd+j}, v{vT}, s[{sX}:{sX+3}], s{sT0} offen offset:{j*256}")
    for j in range(NQ):
        g(f"s_add_u32 s{sOff}, s{sWqb}, {j*12288}")
        r = vRing + 4 * j
        g(f"buffer_load_dwordx3 v[{r}:{r+2}], v{vWo}, s[{sWQ}:{sWQ+3}], s{sOff} offen")
    srd(g, sK, 8, 201326592)
    srd(g, sV, 10, 201326592)

    def kv_load(t, base):
        s = sK if t < 32 else sV
        i = t % 32
        r = vRing + 4 * (t % NBUF)
        g(f"s_add_u32 s{sOff}, s{base}, {i*768}")
        g(f"buffer_load_dwordx3 v[{r}:{r+2}], v{vKV}, s[{s}:{s+3}], s{sOff} offen{NT}")

    stamp(g, 2)
    g(f"s_waitcnt vmcnt({NQ})")
    stamp(g, 4)
    xe = list(range(16, 26))
    for j in range(5):
        g(f"v_lshlrev_b32 v{xe[2*j]}, 16, v{vXd+j}")
        g(f"v_and_b32 v{xe[2*j+1]}, 0xffff0000, v{vXd+j}")
    vMb, vSd = 26, 27
    ln_stats(g, xe, 640, vMb, vSd, 28, 29, 31)
    for r in xe:
        ln_apply(g, r, vMb, vSd, 28, 29)
    g(f"v_lshlrev_b32 v{vT}, 3, v{vLane}")
    for j in range(5):
        g(f"ds_write_b64 v{vT}, v[{xe[2*j]}:{xe[2*j+1]}] offset:{XN + j*512}")
    g(f"v_lshrrev_b32 v{vT}, 5, v0")
    g(f"v_mul_u32_u24 v{vT}, {NQ*4}, v{vT}")
    g("s_waitcnt lgkmcnt(0)")
    xr = XR
    for j in range(NQ // 4):
        g(f"ds_read_b128 v[{xr+4*j}:{xr+4*j+3}], v{vT} offset:{XN + j*16}")
    for c in range(6):
        g(f"v_mov_b32 v{vAcc+c}, 0")
    g("s_waitcnt lgkmcnt(0)")
    stamp(g, 5)
    for j in range(NQ):
        if PRIO:
            g(f"s_waitcnt vmcnt({NQ - 1 - j})")
        else:
            g(f"s_waitcnt vmcnt({min(63, NQ - 1 - j + min(j, NBUF))})")
        r = vRing + 4 * j
        for c in range(3):
            g(f"v_lshlrev_b32 v{36}, 16, v{r+c}")
            g(f"v_and_b32 v{37}, 0xffff0000, v{r+c}")
            g(f"v_fmac_f32 v{vAcc+2*c}, v{36}, v{xr+j}")
            g(f"v_fmac_f32 v{vAcc+2*c+1}, v{37}, v{xr+j}")
        if j < NBUF and not PRIO:
            kv_load(j, sCur)
    if PRIO == 1:
        g("s_setprio 0")
        for j in range(NBUF):
            kv_load(j, sCur)
    stamp(g, 6)
    g(f"v_lshrrev_b32 v{vT3}, 5, v0")
    g(f"v_mul_u32_u24 v{vT}, 768, v{vT3}")
    g(f"v_mul_u32_u24 v{vT2}, 24, v{vL32}")
    g(f"v_add_u32 v{vPA}, v{vT}, v{vT2}")
    for c in range(3):
        g(f"ds_write_b64 v{vPA}, v[{vAcc+2*c}:{vAcc+2*c+1}] offset:{QP + c*8}")
    g("s_waitcnt lgkmcnt(0)")

    def lds_inc(off):
        g(f"s_mov_b64 s[{sEx}:{sEx+1}], exec")
        g("s_mov_b64 exec, 1")
        g(f"v_mov_b32 v{vT2}, 1")
        g(f"v_mov_b32 v{vT3}, 0")
        g(f"ds_add_u32 v{vT3}, v{vT2} offset:{off}")
        g(f"s_mov_b64 exec, s[{sEx}:{sEx+1}]")

    def lds_spin(name, off, n):
        g(f"v_mov_b32 v{vT3}, 0")
        g.label(name)
        g(f"ds_read_b32 v{vT2}, v{vT3} offset:{off}")
        g("s_waitcnt lgkmcnt(0)")
        g(f"v_readfirstlane_b32 s{sT0}, v{vT2}")
        g(f"s_cmp_ge_u32 s{sT0}, {n}")
        g(f"s_cbranch_scc1 {name}_done")
        g("s_sleep 1")
        g(f"s_branch {name}")
        g.label(name + "_done")

    if PRIO == 3:
        lds_inc(CNT + 4)
    else:
        g("s_barrier")
    if PRIO == 2:
        for j in range(NBUF):
            kv_load(j, sCur)
    g(f"s_cmp_lt_u32 s{sWave}, 3")
    g("s_cbranch_scc0 attn_q2_skip")
    if PRIO == 3:
        lds_spin("attn_spin1", CNT + 4, NW)
    g(f"v_lshlrev_b32 v{vT}, 2, v0")
    rr = 10
    for r in range(2 * NW):
        g(f"ds_read_b32 v{rr+r}, v{vT} offset:{QP + r*768}")
    g("s_waitcnt lgkmcnt(0)")
    for st in (1, 2, 4, 8, 16):
        if st >= 2 * NW:
            break
        for r in range(0, 2 * NW, 2 * st):
            g(f"v_add_f32 v{rr+r}, v{rr+r}, v{rr+r+st}")
    g(f"v_cvt_pk_bf16_f32 v{rr}, v{rr}, v{rr}")
    g(f"v_lshlrev_b32 v{vT}, 1, v0")
    g(f"ds_write_b16 v{vT}, v{rr} offset:{QB}")
    g("s_waitcnt lgkmcnt(0)")
    if PRIO == 3:
        lds_inc(CNT + 8)
    g.label("attn_q2_skip")
    if PRIO == 3:
        for j in range(NBUF):
            kv_load(j, sCur)
        lds_spin("attn_spin2", CNT + 8, 3)
    else:
        g("s_barrier")
    g(f"v_mul_u32_u24 v{vT}, 12, v{vL32}")
    for c in range(3):
        g(f"ds_read_b32 v{vQ+c}, v{vT} offset:{QB + 4*c}")
    g(f"v_bfrev_b32 v{vT2}, v{vL32}")
    g(f"v_lshrrev_b32 v{vT2}, 26, v{vT2}")
    if CK == 32:
        g(f"v_and_b32 v{vT2}, 30, v{vT2}")
    g(f"v_lshlrev_b32 v{vT3}, 6, v{vHalf}")
    g(f"s_lshl_b32 s{sT0}, s{sWave}, 7")
    g(f"v_add_u32 v{vPr}, s{sT0}, v{vT3}")
    g(f"v_add_u32 v{vPw}, v{vPr}, v{vT2}")
    for c in range(6):
        g(f"v_mov_b32 v{vAcc+c}, 0")
    g(f"v_mov_b32 v{vMr}, 0xff800000")
    g(f"v_mov_b32 v{vLr}, 0")
    g("s_waitcnt lgkmcnt(0)")
    stamp(g, 1)

    if CK == 32:
        assert NBUF == 16
        g.label("attn_loop")
        g(f"s_mov_b64 s[{sEx}:{sEx+1}], exec")
        g("s_mov_b64 exec, 1")
        g(f"v_mov_b32 v{vT2}, 1")
        g(f"v_mov_b32 v{vT3}, 0")
        g(f"ds_add_rtn_u32 v{vS+1}, v{vT3}, v{vT2} offset:{CNT}")
        g(f"s_mov_b64 exec, s[{sEx}:{sEx+1}]")

        def ld(t, base):
            sr = sK if t < 16 else sV
            i = t % 16
            r = vRing + 4 * (t % NBUF)
            g(f"s_add_u32 s{sOff}, s{base}, {i*768}")
            g(f"buffer_load_dwordx3 v[{r}:{r+2}], v{vKV}, s[{sr}:{sr+3}], s{sOff} offen{NT}")
        for t in range(16):
            r = vRing + 4 * t
            P = vP + (t & 1)
            g(f"s_waitcnt vmcnt({NBUF-1})")
            g(f"v_dot2_f32_bf16 v{P}, v{r}, v{vQ}, 0")
            g(f"v_dot2_f32_bf16 v{P}, v{r+1}, v{vQ+1}, v{P}")
            g(f"v_dot2_f32_bf16 v{P}, v{r+2}, v{vQ+2}, v{P}")
            ld(t + 16, sCur)
            if t & 1:
                g(f"v_permlane16_swap_b32 v{vP}, v{vP+1}")
                g(f"v_add_f32 v{vLA+((t>>1)&1)}, v{vP}, v{vP+1}")
            if (t & 3) == 3:
                d = vLB + ((t >> 2) & 1)
                g(f"v_add_f32_dpp v{d}, v{vLA}, v{vLA} row_ror:8 row_mask:0xf bank_mask:0x3")
                g(f"v_add_f32_dpp v{d}, v{vLA+1}, v{vLA+1} row_ror:8 row_mask:0xf bank_mask:0xc")
            if (t & 7) == 7:
                d = vLC + ((t >> 3) & 1)
                g(f"v_add_f32_dpp v{d}, v{vLB}, v{vLB} row_shl:4 row_mask:0xf bank_mask:0x5")
                g(f"v_add_f32_dpp v{d}, v{vLB+1}, v{vLB+1} row_shr:4 row_mask:0xf bank_mask:0xa")
            if t == 15:
                g(f"v_add_f32_dpp v{vT2}, v{vLC}, v{vLC} quad_perm:[2,3,0,1] row_mask:0xf bank_mask:0xf")
                g(f"v_add_f32_dpp v{vT3}, v{vLC+1}, v{vLC+1} quad_perm:[2,3,0,1] row_mask:0xf bank_mask:0xf")
                g(f"v_cndmask_b32 v{vLD}, v{vT2}, v{vT3}, s[{sM1}:{sM1+1}]")
                g(f"v_add_f32_dpp v{vS}, v{vLD}, v{vLD} quad_perm:[1,0,3,2] row_mask:0xf bank_mask:0xf")
        bf16r(g, vS, vS)
        g(f"v_mul_f32 v{vS}, {SCALE:#x}, v{vS}")
        bf16r(g, vS, vS)
        vCm, vAl = vLA, vLA + 1
        g(f"v_mov_b32 v{vCm}, v{vS}")
        allreduce(g, "v_max_f32", vCm, vT2)
        g(f"v_max_f32 v{vCm}, v{vCm}, v{vMr}")
        g(f"v_sub_f32 v{vAl}, v{vMr}, v{vCm}")
        g(f"v_mul_f32 v{vAl}, {LOG2E:#x}, v{vAl}")
        g(f"v_exp_f32 v{vAl}, v{vAl}")
        g(f"v_sub_f32 v{vS}, v{vS}, v{vCm}")
        g(f"v_mul_f32 v{vS}, {LOG2E:#x}, v{vS}")
        g(f"v_exp_f32 v{vS}, v{vS}")
        g(f"v_mov_b32 v{vMr}, v{vCm}")
        g(f"v_fma_f32 v{vLr}, v{vLr}, v{vAl}, v{vS}")
        g(f"v_cvt_pk_bf16_f32 v{vT}, v{vS}, v{vS}")
        g(f"ds_write_b16 v{vPw}, v{vT} offset:{PW}")
        for c in range(6):
            g(f"v_mul_f32 v{vAcc+c}, v{vAcc+c}, v{vAl}")
        g("s_waitcnt lgkmcnt(0)")
        g(f"ds_read_b128 v[{vPPa}:{vPPa+3}], v{vPr} offset:{PW}")
        g(f"ds_read_b128 v[{vPPb}:{vPPb+3}], v{vPr} offset:{PW+16}")
        g(f"v_readfirstlane_b32 s{sNextIdx}, v{vS+1}")
        g(f"s_mul_i32 s{sNext}, s{sNextIdx}, 12288")
        g(f"s_add_u32 s{sNext}, s{sNext}, s{sKV}")
        g(f"s_cmp_lt_u32 s{sNextIdx}, 64")
        g(f"s_cselect_b32 s{sNext}, s{sNext}, 0x80000000")
        for j in range(8):
            t = 16 + 2 * j
            q4 = j // 4
            PP = (vPPa if q4 == 0 else vPPb) + (j % 4)
            if j % 4 == 0:
                g("s_waitcnt lgkmcnt(1)" if q4 == 0 else "s_waitcnt lgkmcnt(0)")
            ra = vRing + 4 * (t % NBUF)
            rb = vRing + 4 * ((t + 1) % NBUF)
            g(f"s_waitcnt vmcnt({NBUF-2})")
            for c in range(3):
                g(f"v_perm_b32 v{vPm}, v{rb+c}, v{ra+c}, s{sSelLo}")
                g(f"v_perm_b32 v{vPm+1}, v{rb+c}, v{ra+c}, s{sSelHi}")
                g(f"v_dot2_f32_bf16 v{vAcc+2*c}, v{vPm}, v{PP}, v{vAcc+2*c}")
                g(f"v_dot2_f32_bf16 v{vAcc+2*c+1}, v{vPm+1}, v{PP}, v{vAcc+2*c+1}")
            ld(t - 16, sNext)
            ld(t + 1 - 16, sNext)
        g(f"s_mov_b32 s{sCur}, s{sNext}")
        g(f"s_cmp_lt_u32 s{sNextIdx}, 64")
        g("s_cbranch_scc1 attn_loop")
        g(f"v_mul_f32 v{vLr}, 0.5, v{vLr}")
        stamp(g, 3)
    else:
        g.label("attn_loop")
        g(f"s_mov_b64 s[{sEx}:{sEx+1}], exec")
        g("s_mov_b64 exec, 1")
        g(f"v_mov_b32 v{vT2}, 1")
        g(f"v_mov_b32 v{vT3}, 0")
        g(f"ds_add_rtn_u32 v{vS+1}, v{vT3}, v{vT2} offset:{CNT}")
        g(f"s_mov_b64 exec, s[{sEx}:{sEx+1}]")
        for t in range(32):
            i5 = t
            r = vRing + 4 * (t % NBUF)
            P = vP + (t & 1)
            g(f"s_waitcnt vmcnt({NBUF-1})")
            g(f"v_dot2_f32_bf16 v{P}, v{r}, v{vQ}, 0")
            g(f"v_dot2_f32_bf16 v{P}, v{r+1}, v{vQ+1}, v{P}")
            g(f"v_dot2_f32_bf16 v{P}, v{r+2}, v{vQ+2}, v{P}")
            kv_load(t + NBUF, sCur)
            if i5 & 1:
                g(f"v_permlane16_swap_b32 v{vP}, v{vP+1}")
                g(f"v_add_f32 v{vLA+((i5>>1)&1)}, v{vP}, v{vP+1}")
            if (i5 & 3) == 3:
                d = vLB + ((i5 >> 2) & 1)
                g(f"v_add_f32_dpp v{d}, v{vLA}, v{vLA} row_ror:8 row_mask:0xf bank_mask:0x3")
                g(f"v_add_f32_dpp v{d}, v{vLA+1}, v{vLA+1} row_ror:8 row_mask:0xf bank_mask:0xc")
            if (i5 & 7) == 7:
                d = vLC + ((i5 >> 3) & 1)
                g(f"v_add_f32_dpp v{d}, v{vLB}, v{vLB} row_shl:4 row_mask:0xf bank_mask:0x5")
                g(f"v_add_f32_dpp v{d}, v{vLB+1}, v{vLB+1} row_shr:4 row_mask:0xf bank_mask:0xa")
            if (i5 & 15) == 15:
                d = vLD + ((i5 >> 4) & 1)
                g(f"v_add_f32_dpp v{vT2}, v{vLC}, v{vLC} quad_perm:[2,3,0,1] row_mask:0xf bank_mask:0xf")
                g(f"v_add_f32_dpp v{vT3}, v{vLC+1}, v{vLC+1} quad_perm:[2,3,0,1] row_mask:0xf bank_mask:0xf")
                g(f"v_cndmask_b32 v{d}, v{vT2}, v{vT3}, s[{sM1}:{sM1+1}]")
            if i5 == 31:
                g(f"v_add_f32_dpp v{vT2}, v{vLD}, v{vLD} quad_perm:[1,0,3,2] row_mask:0xf bank_mask:0xf")
                g(f"v_add_f32_dpp v{vT3}, v{vLD+1}, v{vLD+1} quad_perm:[1,0,3,2] row_mask:0xf bank_mask:0xf")
                g(f"v_cndmask_b32 v{vS}, v{vT2}, v{vT3}, s[{sM0}:{sM0+1}]")
        bf16r(g, vS, vS)
        g(f"v_mul_f32 v{vS}, {SCALE:#x}, v{vS}")
        bf16r(g, vS, vS)
        vCm, vAl = vLA, vLA + 1
        g(f"v_mov_b32 v{vCm}, v{vS}")
        allreduce(g, "v_max_f32", vCm, vT2)
        g(f"v_max_f32 v{vCm}, v{vCm}, v{vMr}")
        g(f"v_sub_f32 v{vAl}, v{vMr}, v{vCm}")
        g(f"v_mul_f32 v{vAl}, {LOG2E:#x}, v{vAl}")
        g(f"v_exp_f32 v{vAl}, v{vAl}")
        g(f"v_sub_f32 v{vS}, v{vS}, v{vCm}")
        g(f"v_mul_f32 v{vS}, {LOG2E:#x}, v{vS}")
        g(f"v_exp_f32 v{vS}, v{vS}")
        g(f"v_mov_b32 v{vMr}, v{vCm}")
        g(f"v_fma_f32 v{vLr}, v{vLr}, v{vAl}, v{vS}")
        g(f"v_cvt_pk_bf16_f32 v{vT}, v{vS}, v{vS}")
        g(f"ds_write_b16 v{vPw}, v{vT} offset:{PW}")
        for c in range(6):
            g(f"v_mul_f32 v{vAcc+c}, v{vAcc+c}, v{vAl}")
        g("s_waitcnt lgkmcnt(0)")
        g(f"ds_read_b128 v[{vPPa}:{vPPa+3}], v{vPr} offset:{PW}")
        g(f"ds_read_b128 v[{vPPb}:{vPPb+3}], v{vPr} offset:{PW+16}")
        g(f"v_readfirstlane_b32 s{sNextIdx}, v{vS+1}")
        g(f"s_mul_i32 s{sNext}, s{sNextIdx}, 24576")
        g(f"s_add_u32 s{sNext}, s{sNext}, s{sKV}")
        g(f"s_cmp_lt_u32 s{sNextIdx}, 32")
        g(f"s_cselect_b32 s{sNext}, s{sNext}, 0x80000000")
        for j in range(16):
            t = 32 + 2 * j
            q4 = j // 4
            PP = (vPPa if (q4 & 1) == 0 else vPPb) + (j % 4)
            if j % 4 == 0:
                if q4 + 1 < 4:
                    g("s_waitcnt lgkmcnt(1)")
                else:
                    g("s_waitcnt lgkmcnt(0)")
            ra = vRing + 4 * (t % NBUF)
            rb = vRing + 4 * ((t + 1) % NBUF)
            g(f"s_waitcnt vmcnt({NBUF-2})")
            for c in range(3):
                g(f"v_perm_b32 v{vPm}, v{rb+c}, v{ra+c}, s{sSelLo}")
                g(f"v_perm_b32 v{vPm+1}, v{rb+c}, v{ra+c}, s{sSelHi}")
                g(f"v_dot2_f32_bf16 v{vAcc+2*c}, v{vPm}, v{PP}, v{vAcc+2*c}")
                g(f"v_dot2_f32_bf16 v{vAcc+2*c+1}, v{vPm+1}, v{PP}, v{vAcc+2*c+1}")
            for tt in (t + NBUF, t + 1 + NBUF):
                if tt < 64:
                    kv_load(tt, sCur)
                else:
                    kv_load(tt - 64, sNext)
            if j % 4 == 3 and q4 + 2 < 4:
                d = vPPa if (q4 & 1) == 0 else vPPb
                g(f"ds_read_b128 v[{d}:{d+3}], v{vPr} offset:{PW + (q4+2)*16}")
        g(f"s_mov_b32 s{sCur}, s{sNext}")
        g(f"s_cmp_lt_u32 s{sNextIdx}, 32")
        g("s_cbranch_scc1 attn_loop")
        stamp(g, 3)
    allreduce(g, "v_add_f32", vLr, vT2)
    for c in range(3):
        g(f"ds_write_b64 v{vPA}, v[{vAcc+2*c}:{vAcc+2*c+1}] offset:{QP + c*8}")
    g(f"s_lshl_b32 s{sT0}, s{sWave}, 3")
    g(f"v_mov_b32 v{vT}, s{sT0}")
    g(f"ds_write_b64 v{vT}, v[{vMr}:{vMr+1}] offset:{ML}")
    g("s_waitcnt vmcnt(0) lgkmcnt(0)")
    g("s_barrier")
    g(f"s_cmp_lt_u32 s{sWave}, 3")
    g("s_cbranch_scc0 attn_pref" if PREF else "s_cbranch_scc0 attn_end")
    rm = vRing
    ro = vRing + 32
    g(f"v_mov_b32 v{vT}, 0")
    for w in range(0, NW, 2):
        g(f"ds_read_b128 v[{rm+2*w}:{rm+2*w+3}], v{vT} offset:{ML + 8*w}")
    g(f"v_lshlrev_b32 v{vT}, 2, v0")
    for r in range(2 * NW):
        g(f"ds_read_b32 v{ro+r}, v{vT} offset:{QP + r*768}")
    g("s_waitcnt lgkmcnt(0)")
    vMM, vLL, vO, vF = 16, 17, 18, 19
    g(f"v_max_f32 v{vMM}, v{rm}, v{rm+2}")
    for w in range(2, NW):
        g(f"v_max_f32 v{vMM}, v{vMM}, v{rm+2*w}")
    g(f"v_mov_b32 v{vLL}, 0")
    g(f"v_mov_b32 v{vO}, 0")
    for w in range(NW):
        g(f"v_sub_f32 v{vF}, v{rm+2*w}, v{vMM}")
        g(f"v_mul_f32 v{vF}, {LOG2E:#x}, v{vF}")
        g(f"v_exp_f32 v{vF}, v{vF}")
        g(f"v_add_f32 v{vT2}, v{ro+2*w}, v{ro+2*w+1}")
        g(f"v_fmac_f32 v{vLL}, v{vF}, v{rm+2*w+1}")
        g(f"v_fmac_f32 v{vO}, v{vF}, v{vT2}")
    g(f"s_mul_i32 s{sT0}, s{sRec}, 768")
    g(f"buffer_store_dword v{vO}, v{vT}, s[{sWS}:{sWS+3}], s{sT0} offen offset:{WS_PART}")
    g(f"v_mov_b32 v{vT}, 0")
    g(f"s_lshl_b32 s{sT0}, s{sRec}, 3")
    g(f"s_add_u32 s{sT0}, s{sT0}, {WS_ML}")
    g(f"buffer_store_dwordx2 v[{vMM}:{vMM+1}], v{vT}, s[{sWS}:{sWS+3}], s{sT0} offen")
    stamp(g, 7)
    if STAMPS:
        g("v_mov_b32 v100, s70")
        g("v_mov_b32 v101, s84")
        g("s_lshl_b32 s62, s2, 3")
        g("s_add_u32 s62, s62, 0xA0000")
        g("v_mov_b32 v102, 0")
        g(f"buffer_store_dwordx2 v[100:101], v102, s[{sWS}:{sWS+3}], s62 offen")
        g("s_cmp_eq_u32 s2, STAMP_WG".replace("STAMP_WG", str(STAMP_WG)))
        g("s_cbranch_scc0 attn_end")
        g(f"s_cmp_eq_u32 s{sWave}, 0")
        g("s_cbranch_scc0 attn_end")
    stamp_flush(g, 8, 100)
    if PREF:
        g("s_endpgm")
        g.label("attn_pref")
        g("s_load_dwordx2 s[4:5], s[0:1], 32")
        g("s_load_dwordx2 s[6:7], s[0:1], 48")
        g("s_load_dwordx2 s[8:9], s[0:1], 64")
        g(f"s_sub_u32 s{sT0}, s{sWave}, 3")
        g(f"v_lshlrev_b32 v{vT}, 4, v{vLane}")
        g("s_waitcnt lgkmcnt(0)")
        srd(g, 16, 4, 7864320)
        srd(g, 20, 6, 1966080)
        srd(g, 24, 8, 1966080)
        g(f"s_cmp_lt_u32 s{sT0}, 10")
        g("s_cbranch_scc0 attn_pref2")
        g(f"s_mul_i32 s{sT1}, s2, 30720")
        g(f"s_mul_i32 s{sOff}, s{sT0}, 3072")
        g(f"s_add_u32 s{sT1}, s{sT1}, s{sOff}")
        for i in range(3):
            g(f"buffer_load_dwordx4 v[{vRing+4*i}:{vRing+4*i+3}], v{vT}, s[16:19], s{sT1} offen offset:{i*1024}")
        g("s_endpgm")
        g.label("attn_pref2")
        g(f"s_mul_i32 s{sT1}, s2, 7680")
        g(f"s_cmp_eq_u32 s{sT0}, 10")
        g("s_cbranch_scc0 attn_pref3")
        for i in range(8):
            g(f"s_add_u32 s{sOff}, s{sT1}, {i*1024}")
            g(f"buffer_load_dwordx4 v[{vRing+4*i}:{vRing+4*i+3}], v{vT}, s[20:23], s{sOff} offen")
        g("s_endpgm")
        g.label("attn_pref3")
        g(f"s_cmp_eq_u32 s{sT0}, 11")
        g("s_cbranch_scc0 attn_end")
        for i in range(8):
            g(f"s_add_u32 s{sOff}, s{sT1}, {i*1024}")
            g(f"buffer_load_dwordx4 v[{vRing+4*i}:{vRing+4*i+3}], v{vT}, s[24:27], s{sOff} offen")
    g.label("attn_end", pad=False)
    g("s_endpgm")
    return L, nv, 60


def k_wo(g):
    L = "wo_kernel"
    header(g, L)
    sWO, sWS = 16, 20
    sRb, sCb, sWave, sT0, sT1, sOff = 24, 25, 26, 27, 28, 29
    OC, RED, RED2 = 0, 8192, 24576
    vLane, vT, vT2, vT3 = 1, 2, 3, 4
    vWoOff = 5
    vAcc = 8
    vW = 24
    vC = 72
    vOo, vMo = 144, 150
    nv = 160
    g("s_cmp_ge_u32 s2, 160")
    g("s_cbranch_scc1 wo_end")
    stamp(g, 0)
    g("s_load_dwordx2 s[4:5], s[0:1], 32")
    g("s_load_dwordx2 s[6:7], s[0:1], 96")
    g(f"v_and_b32 v{vLane}, 63, v0")
    g(f"v_lshrrev_b32 v{vT}, 6, v0")
    g(f"v_readfirstlane_b32 s{sWave}, v{vT}")
    g(f"s_mul_i32 s{sRb}, s2, 3277")
    g(f"s_lshr_b32 s{sRb}, s{sRb}, 16")
    g(f"s_mul_i32 s{sT0}, s{sRb}, 20")
    g(f"s_sub_u32 s{sCb}, s2, s{sT0}")
    g(f"v_lshrrev_b32 v{vT}, 2, v{vLane}")
    g(f"v_mul_u32_u24 v{vWoOff}, 1280, v{vT}")
    g(f"v_and_b32 v{vT2}, 3, v{vLane}")
    g(f"v_lshlrev_b32 v{vT2}, 4, v{vT2}")
    g(f"v_add_u32 v{vWoOff}, v{vWoOff}, v{vT2}")
    for k in range(3):
        g(f"v_add_u32 v{vT}, {k*256}, v0")
        g(f"v_mul_u32_u24 v{vT2}, 43691, v{vT}")
        g(f"v_lshrrev_b32 v{vT2}, 23, v{vT2}")
        g(f"v_mul_u32_u24 v{vT3}, 192, v{vT2}")
        g(f"v_sub_u32 v{vT3}, v{vT}, v{vT3}")
        g(f"v_lshlrev_b32 v{vMo+k}, 12, v{vT2}")
        g(f"v_lshlrev_b32 v{vT3}, 2, v{vT3}")
        g(f"v_add_u32 v{vOo+k}, v{vMo+k}, v{vT3}")
    g("s_waitcnt lgkmcnt(0)")
    srd(g, sWO, 4, 7864320)
    srd(g, sWS, 6, WS_SIZE)
    for b in range(2):
        g(f"s_lshl_b32 s{sT0}, s{sRb}, 14")
        if b:
            g(f"s_add_u32 s{sT0}, s{sT0}, {32*4096}")
        for k in range(3):
            base = vC + (b * 3 + k) * 12
            for s in range(4):
                g(f"buffer_load_dword v{base+s}, v{vOo+k}, s[{sWS}:{sWS+3}], s{sT0} offen offset:{s*1024}")
            for s in range(4):
                g(f"buffer_load_dwordx2 v[{base+4+2*s}:{base+5+2*s}], v{vMo+k}, s[{sWS}:{sWS+3}], s{sT0} offen offset:{s*1024+768}")
    g(f"s_mul_i32 s{sT0}, s{sRb}, {768*1280}")
    g(f"s_mul_i32 s{sT1}, s{sWave}, {192*1280}")
    g(f"s_add_u32 s{sT0}, s{sT0}, s{sT1}")
    g(f"s_lshl_b32 s{sT1}, s{sCb}, 6")
    g(f"s_add_u32 s{sT0}, s{sT0}, s{sT1}")
    for i in range(12):
        g(f"s_add_u32 s{sOff}, s{sT0}, {i*16*1280}")
        g(f"buffer_load_dwordx4 v[{vW+4*i}:{vW+4*i+3}], v{vWoOff}, s[{sWO}:{sWO+3}], s{sOff} offen")
    stamp(g, 1)
    g("s_waitcnt vmcnt(12)")
    stamp(g, 2)
    vM, vF, vNum, vDen, vR, vE = 6, 7, 152, 153, 154, 155
    for b in range(2):
        for k in range(3):
            base = vC + (b * 3 + k) * 12
            m = [base + 4 + 2 * s for s in range(4)]
            l = [base + 5 + 2 * s for s in range(4)]
            g(f"v_max_f32 v{vM}, v{m[0]}, v{m[1]}")
            g(f"v_max3_f32 v{vM}, v{vM}, v{m[2]}, v{m[3]}")
            for s in range(4):
                g(f"v_sub_f32 v{vF}, v{m[s]}, v{vM}")
                g(f"v_mul_f32 v{vF}, {LOG2E:#x}, v{vF}")
                g(f"v_exp_f32 v{vF}, v{vF}")
                if s == 0:
                    g(f"v_mul_f32 v{vNum}, v{vF}, v{base+s}")
                    g(f"v_mul_f32 v{vDen}, v{vF}, v{l[s]}")
                else:
                    g(f"v_fmac_f32 v{vNum}, v{vF}, v{base+s}")
                    g(f"v_fmac_f32 v{vDen}, v{vF}, v{l[s]}")
            divide(g, vF, vNum, vDen, vR, vE)
            bf16r(g, vF, vF)
            g(f"v_lshlrev_b32 v{vT}, 3, v0")
            g(f"ds_write_b32 v{vT}, v{vF} offset:{OC + k*2048 + b*4}")
    g("s_waitcnt lgkmcnt(0)")
    g("s_barrier")
    stamp(g, 3)
    g(f"v_lshrrev_b32 v{vT}, 2, v{vLane}")
    g(f"s_mul_i32 s{sT0}, s{sWave}, 192")
    g(f"v_add_u32 v{vT}, s{sT0}, v{vT}")
    g(f"v_lshlrev_b32 v{vT}, 3, v{vT}")
    vOv = vC
    for i in range(12):
        g(f"ds_read_b64 v[{vOv+2*i}:{vOv+2*i+1}], v{vT} offset:{OC + i*128}")
    for c in range(16):
        g(f"v_mov_b32 v{vAcc+c}, 0")
    g("s_waitcnt lgkmcnt(0)")
    for i in range(12):
        g(f"s_waitcnt vmcnt({11-i})")
        for c in range(4):
            r = vW + 4 * i + c
            g(f"v_lshlrev_b32 v{vT2}, 16, v{r}")
            g(f"v_and_b32 v{vT3}, 0xffff0000, v{r}")
            g(f"v_fmac_f32 v{vAcc+2*c}, v{vT2}, v{vOv+2*i}")
            g(f"v_fmac_f32 v{vAcc+2*c+1}, v{vT3}, v{vOv+2*i}")
            g(f"v_fmac_f32 v{vAcc+8+2*c}, v{vT2}, v{vOv+2*i+1}")
            g(f"v_fmac_f32 v{vAcc+8+2*c+1}, v{vT3}, v{vOv+2*i+1}")
    stamp(g, 4)
    wave_reduce_64(g, vAcc, vLane, sWave, RED, RED2, vT, vT2, vT3, vW, sT0)
    g("s_barrier")
    g(f"s_cmp_eq_u32 s{sWave}, 0")
    g("s_cbranch_scc0 wo_end")
    g(f"v_lshlrev_b32 v{vT}, 2, v{vLane}")
    for w in range(4):
        g(f"ds_read_b32 v{vW+w}, v{vT} offset:{RED2 + w*256}")
    g("s_waitcnt lgkmcnt(0)")
    g(f"v_add_f32 v{vW}, v{vW}, v{vW+1}")
    g(f"v_add_f32 v{vW+2}, v{vW+2}, v{vW+3}")
    g(f"v_add_f32 v{vW}, v{vW}, v{vW+2}")
    g(f"v_lshrrev_b32 v{vT}, 5, v{vLane}")
    g(f"v_mul_u32_u24 v{vT}, 2560, v{vT}")
    g(f"v_and_b32 v{vT2}, 31, v{vLane}")
    g(f"v_lshlrev_b32 v{vT2}, 2, v{vT2}")
    g(f"v_add_u32 v{vT}, v{vT}, v{vT2}")
    g(f"s_mul_i32 s{sT0}, s{sRb}, 5120")
    g(f"s_lshl_b32 s{sT1}, s{sCb}, 7")
    g(f"s_add_u32 s{sT0}, s{sT0}, s{sT1}")
    g(f"s_add_u32 s{sT0}, s{sT0}, {WS_HP}")
    g(f"buffer_store_dword v{vW}, v{vT}, s[{sWS}:{sWS+3}], s{sT0} offen")
    stamp(g, 7)
    if STAMPS:
        g("s_cmp_eq_u32 s2, STAMP_WG".replace("STAMP_WG", str(STAMP_WG)))
        g("s_cbranch_scc0 wo_end")
    if STAMPS:
        g(f"s_cmp_eq_u32 s{sWave}, 0")
        g("s_cbranch_scc0 wo_end")
    stamp_flush(g, 8, 100 if "wo_end" != "fin_end" else 60)
    g.label("wo_end", pad=False)
    g("s_endpgm")
    return L, nv, 40


def wave_reduce_64(g, vAcc, vLane, sWave, RED, RED2, vT, vT2, vT3, vTmp, sT0):
    g(f"v_lshlrev_b32 v{vT}, 6, v0")
    for q in range(4):
        g(f"ds_write_b128 v{vT}, v[{vAcc+4*q}:{vAcc+4*q+3}] offset:{RED + 16*q}")
    g(f"v_bfe_u32 v{vT2}, v{vLane}, 3, 2")
    g(f"v_lshlrev_b32 v{vT2}, 6, v{vT2}")
    g(f"v_lshrrev_b32 v{vT3}, 5, v{vLane}")
    g(f"v_lshlrev_b32 v{vT3}, 5, v{vT3}")
    g(f"v_add_u32 v{vT2}, v{vT2}, v{vT3}")
    g(f"v_and_b32 v{vT3}, 7, v{vLane}")
    g(f"v_lshlrev_b32 v{vT3}, 2, v{vT3}")
    g(f"v_add_u32 v{vT2}, v{vT2}, v{vT3}")
    g(f"s_lshl_b32 s{sT0}, s{sWave}, 12")
    g(f"v_add_u32 v{vT2}, s{sT0}, v{vT2}")
    g("s_waitcnt lgkmcnt(0)")
    for r in range(16):
        g(f"ds_read_b32 v{vTmp+r}, v{vT2} offset:{RED + r*256}")
    g("s_waitcnt lgkmcnt(0)")
    for r in range(1, 16):
        g(f"v_add_f32 v{vTmp}, v{vTmp}, v{vTmp+r}")
    g(f"v_lshlrev_b32 v{vT}, 2, v0")
    g(f"ds_write_b32 v{vT}, v{vTmp} offset:{RED2}")
    g("s_waitcnt lgkmcnt(0)")


def k_ffn(g):
    L = "ffn_kernel"
    header(g, L)
    sX, sW1, sB1, sW2, sWS = 16, 20, 24, 28, 32
    sWave, sT0, sT1, sOff = 36, 37, 38, 39
    sMk = 40
    H, HN, RED, RED2, H1, R3 = 0, 5120, 10240, 30720, 32000, 32768
    vLane, vT, vT2, vT3 = 1, 2, 3, 4
    vAcc = 8
    vW1 = 24
    vW2 = 56
    vHP = 88
    vX = 120
    vH = 124
    vB1 = 122
    vS = 128
    nv = 160
    g("s_cmp_ge_u32 s2, 48")
    g("s_cbranch_scc1 ffn_end")
    stamp(g, 0)
    g("s_load_dwordx2 s[4:5], s[0:1], 0")
    g("s_load_dwordx4 s[8:11], s[0:1], 48")
    g("s_load_dwordx2 s[12:13], s[0:1], 64")
    g("s_load_dwordx2 s[14:15], s[0:1], 96")
    g(f"v_and_b32 v{vLane}, 63, v0")
    g(f"v_lshrrev_b32 v{vT}, 6, v0")
    g(f"v_readfirstlane_b32 s{sWave}, v{vT}")
    g("s_waitcnt lgkmcnt(0)")
    srd(g, sX, 4, 2560)
    srd(g, sW1, 8, 1966080)
    srd(g, sB1, 10, 3072)
    srd(g, sW2, 12, 1966080)
    srd(g, sWS, 14, WS_SIZE)
    g(f"v_lshlrev_b32 v{vT}, 4, v0")
    for rb in range(8):
        g(f"s_mov_b32 s{sOff}, {WS_HP + rb*5120}")
        g(f"buffer_load_dwordx4 v[{vHP+4*rb}:{vHP+4*rb+3}], v{vT}, s[{sWS}:{sWS+3}], s{sOff} offen")
    g(f"v_lshlrev_b32 v{vT2}, 3, v0")
    g(f"buffer_load_dwordx2 v[{vX}:{vX+1}], v{vT2}, s[{sX}:{sX+3}], 0 offen")
    g(f"v_and_b32 v{vT2}, 31, v{vLane}")
    g(f"v_lshlrev_b32 v{vT2}, 1, v{vT2}")
    g(f"s_lshl_b32 s{sT0}, s2, 6")
    g(f"buffer_load_ushort v{vB1}, v{vT2}, s[{sB1}:{sB1+3}], s{sT0} offen")
    g(f"v_lshrrev_b32 v{vT}, 2, v{vLane}")
    g(f"v_mul_u32_u24 v{vT}, 3072, v{vT}")
    g(f"v_and_b32 v{vT2}, 3, v{vLane}")
    g(f"v_lshlrev_b32 v{vT2}, 4, v{vT2}")
    g(f"v_add_u32 v{vT}, v{vT}, v{vT2}")
    g(f"s_mul_i32 s{sT1}, s{sWave}, {128*3072}")
    g(f"s_add_u32 s{sT1}, s{sT1}, s{sT0}")
    for i in range(8):
        g(f"s_add_u32 s{sOff}, s{sT1}, {i*16*3072}")
        g(f"buffer_load_dwordx4 v[{vW1+4*i}:{vW1+4*i+3}], v{vT}, s[{sW1}:{sW1+3}], s{sOff} offen")
    vRG, vCC = 5, 6
    g(f"v_mul_u32_u24 v{vRG}, 52429, v0")
    g(f"v_lshrrev_b32 v{vRG}, 22, v{vRG}")
    g(f"v_mul_u32_u24 v{vT}, 80, v{vRG}")
    g(f"v_sub_u32 v{vCC}, v0, v{vT}")
    g(f"v_mul_u32_u24 v{vT}, {8*1280}, v{vRG}")
    g(f"v_lshlrev_b32 v{vT2}, 4, v{vCC}")
    g(f"v_add_u32 v{vT}, v{vT}, v{vT2}")
    g(f"s_mul_i32 s{sT1}, s2, {32*1280}")
    for i in range(8):
        g(f"s_add_u32 s{sOff}, s{sT1}, {i*1280}")
        g(f"buffer_load_dwordx4 v[{vW2+4*i}:{vW2+4*i+3}], v{vT}, s[{sW2}:{sW2+3}], s{sOff} offen")
    stamp(g, 1)
    g("s_waitcnt vmcnt(17)")
    stamp(g, 2)
    for c in range(4):
        g(f"v_add_f32 v{vH+c}, v{vHP+c}, v{vHP+4+c}")
        for rb in range(2, 8):
            g(f"v_add_f32 v{vH+c}, v{vH+c}, v{vHP+4*rb+c}")
    bf16r2(g, vH, vH + 1, vT)
    bf16r2(g, vH + 2, vH + 3, vT)
    g(f"v_lshlrev_b32 v{vT}, 16, v{vX}")
    g(f"v_add_f32 v{vH}, v{vH}, v{vT}")
    g(f"v_and_b32 v{vT}, 0xffff0000, v{vX}")
    g(f"v_add_f32 v{vH+1}, v{vH+1}, v{vT}")
    g(f"v_lshlrev_b32 v{vT}, 16, v{vX+1}")
    g(f"v_add_f32 v{vH+2}, v{vH+2}, v{vT}")
    g(f"v_and_b32 v{vT}, 0xffff0000, v{vX+1}")
    g(f"v_add_f32 v{vH+3}, v{vH+3}, v{vT}")
    bf16r2(g, vH, vH + 1, vT)
    bf16r2(g, vH + 2, vH + 3, vT)
    g(f"v_lshlrev_b32 v{vT}, 4, v0")
    g(f"ds_write_b128 v{vT}, v[{vH}:{vH+3}] offset:{H}")
    g("s_cmp_eq_u32 s2, 0")
    g("s_cbranch_scc0 ffn_nohh")
    g(f"s_mov_b32 s{sOff}, {WS_HH}")
    g(f"buffer_store_dwordx4 v[{vH}:{vH+3}], v{vT}, s[{sWS}:{sWS+3}], s{sOff} offen")
    g.label("ffn_nohh")
    g("s_waitcnt lgkmcnt(0)")
    g("s_barrier")
    g(f"v_lshlrev_b32 v{vT}, 2, v{vLane}")
    for b in range(2):
        for j in range(10):
            g(f"ds_read_b32 v{vS+10*b+j}, v{vT} offset:{H + b*2560 + j*256}")
    g("s_waitcnt lgkmcnt(0)")
    vMb0, vSd0, vMb1, vSd1 = 148, 149, 150, 151
    ln_stats(g, list(range(vS, vS + 10)), 640, vMb0, vSd0, 152, 153, 154)
    ln_stats(g, list(range(vS + 10, vS + 20)), 640, vMb1, vSd1, 152, 153, 154)
    g(f"v_cmp_le_u32 vcc, 160, v0")
    g(f"s_mov_b64 s[{sMk}:{sMk+1}], vcc")
    g(f"v_cndmask_b32 v{vMb0}, v{vMb0}, v{vMb1}, s[{sMk}:{sMk+1}]")
    g(f"v_cndmask_b32 v{vSd0}, v{vSd0}, v{vSd1}, s[{sMk}:{sMk+1}]")
    for c in range(4):
        ln_apply(g, vH + c, vMb0, vSd0, 152, 153)
    g(f"v_cndmask_b32 v{vT2}, 0, 1, s[{sMk}:{sMk+1}]")
    g(f"v_mul_u32_u24 v{vT3}, 160, v{vT2}")
    g(f"v_sub_u32 v{vT3}, v0, v{vT3}")
    g(f"v_lshlrev_b32 v{vT3}, 5, v{vT3}")
    g(f"v_lshlrev_b32 v{vT2}, 2, v{vT2}")
    g(f"v_add_u32 v{vT3}, v{vT3}, v{vT2}")
    for c in range(4):
        g(f"ds_write_b32 v{vT3}, v{vH+c} offset:{HN + c*8}")
    g("s_waitcnt lgkmcnt(0)")
    g("s_barrier")
    stamp(g, 3)
    g(f"v_lshrrev_b32 v{vT}, 2, v{vLane}")
    g(f"s_lshl_b32 s{sT0}, s{sWave}, 7")
    g(f"v_add_u32 v{vT}, s{sT0}, v{vT}")
    g(f"v_lshlrev_b32 v{vT}, 3, v{vT}")
    vOv = vHP
    for i in range(8):
        g(f"ds_read_b64 v[{vOv+2*i}:{vOv+2*i+1}], v{vT} offset:{HN + i*128}")
    for c in range(16):
        g(f"v_mov_b32 v{vAcc+c}, 0")
    g("s_waitcnt lgkmcnt(0)")
    g("s_waitcnt vmcnt(8)")
    for i in range(8):
        for c in range(4):
            r = vW1 + 4 * i + c
            g(f"v_lshlrev_b32 v{vT2}, 16, v{r}")
            g(f"v_and_b32 v{vT3}, 0xffff0000, v{r}")
            g(f"v_fmac_f32 v{vAcc+2*c}, v{vT2}, v{vOv+2*i}")
            g(f"v_fmac_f32 v{vAcc+2*c+1}, v{vT3}, v{vOv+2*i}")
            g(f"v_fmac_f32 v{vAcc+8+2*c}, v{vT2}, v{vOv+2*i+1}")
            g(f"v_fmac_f32 v{vAcc+8+2*c+1}, v{vT3}, v{vOv+2*i+1}")
    stamp(g, 4)
    wave_reduce_64(g, vAcc, vLane, sWave, RED, RED2, vT, vT2, vT3, vW1, sT0)
    g("s_barrier")
    g(f"s_cmp_eq_u32 s{sWave}, 0")
    g("s_cbranch_scc0 ffn_h1_skip")
    g(f"v_lshlrev_b32 v{vT}, 2, v{vLane}")
    for w in range(5):
        g(f"ds_read_b32 v{vW1+w}, v{vT} offset:{RED2 + w*256}")
    g("s_waitcnt lgkmcnt(0)")
    for w in range(1, 5):
        g(f"v_add_f32 v{vW1}, v{vW1}, v{vW1+w}")
    bf16r(g, vW1, vW1)
    g(f"v_lshlrev_b32 v{vB1}, 16, v{vB1}")
    g(f"v_add_f32 v{vW1}, v{vW1}, v{vB1}")
    bf16r(g, vW1, vW1)
    g(f"v_max_f32 v{vW1}, 0, v{vW1}")
    g(f"v_mul_f32 v{vW1}, v{vW1}, v{vW1}")
    bf16r(g, vW1, vW1)
    g(f"v_and_b32 v{vT}, 31, v{vLane}")
    g(f"v_lshlrev_b32 v{vT}, 3, v{vT}")
    g(f"v_lshrrev_b32 v{vT2}, 5, v{vLane}")
    g(f"v_lshlrev_b32 v{vT2}, 2, v{vT2}")
    g(f"v_add_u32 v{vT}, v{vT}, v{vT2}")
    g(f"ds_write_b32 v{vT}, v{vW1} offset:{H1}")
    g("s_waitcnt lgkmcnt(0)")
    g.label("ffn_h1_skip")
    g("s_barrier")
    stamp(g, 5)
    g(f"v_lshlrev_b32 v{vT}, 6, v{vRG}")
    for i in range(8):
        g(f"ds_read_b64 v[{vOv+2*i}:{vOv+2*i+1}], v{vT} offset:{H1 + i*8}")
    for c in range(16):
        g(f"v_mov_b32 v{vAcc+c}, 0")
    g("s_waitcnt lgkmcnt(0)")
    g("s_waitcnt vmcnt(0)")
    for i in range(8):
        for c in range(4):
            r = vW2 + 4 * i + c
            g(f"v_lshlrev_b32 v{vT2}, 16, v{r}")
            g(f"v_and_b32 v{vT3}, 0xffff0000, v{r}")
            g(f"v_fmac_f32 v{vAcc+2*c}, v{vT2}, v{vOv+2*i}")
            g(f"v_fmac_f32 v{vAcc+2*c+1}, v{vT3}, v{vOv+2*i}")
            g(f"v_fmac_f32 v{vAcc+8+2*c}, v{vT2}, v{vOv+2*i+1}")
            g(f"v_fmac_f32 v{vAcc+8+2*c+1}, v{vT3}, v{vOv+2*i+1}")
    stamp(g, 6)
    g(f"v_mul_u32_u24 v{vT}, 5120, v{vRG}")
    g(f"v_lshlrev_b32 v{vT2}, 5, v{vCC}")
    g(f"v_add_u32 v{vT}, v{vT}, v{vT2}")
    for b in range(2):
        for q in range(2):
            r = vAcc + 8 * b + 4 * q
            g(f"ds_write_b128 v{vT}, v[{r}:{r+3}] offset:{R3 + b*2560 + q*16}")
    g("s_waitcnt lgkmcnt(0)")
    g("s_barrier")
    g(f"v_lshlrev_b32 v{vT}, 4, v0")
    for rg in range(4):
        g(f"ds_read_b128 v[{vW1+4*rg}:{vW1+4*rg+3}], v{vT} offset:{R3 + rg*5120}")
    g("s_waitcnt lgkmcnt(0)")
    for c in range(4):
        g(f"v_add_f32 v{vW1+c}, v{vW1+c}, v{vW1+4+c}")
        g(f"v_add_f32 v{vW1+8+c}, v{vW1+8+c}, v{vW1+12+c}")
        g(f"v_add_f32 v{vW1+c}, v{vW1+c}, v{vW1+8+c}")
    g(f"s_mul_i32 s{sT0}, s2, 5120")
    g(f"s_add_u32 s{sT0}, s{sT0}, {WS_FP}")
    g(f"buffer_store_dwordx4 v[{vW1}:{vW1+3}], v{vT}, s[{sWS}:{sWS+3}], s{sT0} offen")
    stamp(g, 7)
    if STAMPS:
        g("s_cmp_eq_u32 s2, STAMP_WG".replace("STAMP_WG", str(STAMP_WG)))
        g("s_cbranch_scc0 ffn_end")
    if STAMPS:
        g(f"s_cmp_eq_u32 s{sWave}, 0")
        g("s_cbranch_scc0 ffn_end")
    stamp_flush(g, 8, 100 if "ffn_end" != "fin_end" else 60)
    g.label("ffn_end", pad=False)
    g("s_endpgm")
    return L, nv, 48


def k_fin(g):
    L = "fin_kernel"
    header(g, L)
    sB2, sOut, sWS = 16, 20, 24
    sT0, sOff = 28, 29
    vE, vT, vH, vB = 1, 2, 3, 4
    vP = 8
    nv = 64
    g("s_cmp_ge_u32 s2, 20")
    g("s_cbranch_scc1 fin_end")
    stamp(g, 0)
    g("s_load_dwordx2 s[4:5], s[0:1], 72")
    g("s_load_dwordx2 s[6:7], s[0:1], 80")
    g("s_load_dwordx2 s[8:9], s[0:1], 96")
    g(f"s_lshl_b32 s{sT0}, s2, 6")
    g(f"v_add_u32 v{vE}, s{sT0}, v0")
    g(f"v_lshlrev_b32 v{vT}, 2, v{vE}")
    g("s_waitcnt lgkmcnt(0)")
    srd(g, sB2, 4, 1280)
    srd(g, sOut, 6, 2560)
    srd(g, sWS, 8, WS_SIZE)
    for j in range(48):
        g(f"s_mov_b32 s{sOff}, {WS_FP + j*5120}")
        g(f"buffer_load_dword v{vP+j}, v{vT}, s[{sWS}:{sWS+3}], s{sOff} offen")
    g(f"s_mov_b32 s{sOff}, {WS_HH}")
    g(f"buffer_load_dword v{vH}, v{vT}, s[{sWS}:{sWS+3}], s{sOff} offen")
    g(f"s_cmp_ge_u32 s2, 10")
    g(f"s_cselect_b32 s{sT0}, 640, 0")
    g(f"v_subrev_u32 v{vT}, s{sT0}, v{vE}")
    g(f"v_lshlrev_b32 v{vT}, 1, v{vT}")
    g(f"buffer_load_ushort v{vB}, v{vT}, s[{sB2}:{sB2+3}], 0 offen")
    g("s_waitcnt vmcnt(0)")
    for j in range(1, 48):
        g(f"v_add_f32 v{vP}, v{vP}, v{vP+j}")
    bf16r(g, vP, vP)
    g(f"v_lshlrev_b32 v{vB}, 16, v{vB}")
    g(f"v_add_f32 v{vP}, v{vP}, v{vB}")
    bf16r(g, vP, vP)
    g(f"v_add_f32 v{vP}, v{vP}, v{vH}")
    g(f"v_cvt_pk_bf16_f32 v{vP}, v{vP}, v{vP}")
    g(f"v_lshlrev_b32 v{vT}, 1, v{vE}")
    g(f"buffer_store_short v{vP}, v{vT}, s[{sOut}:{sOut+3}], 0 offen")
    stamp(g, 7)
    if STAMPS:
        g("s_cmp_eq_u32 s2, STAMP_WG".replace("STAMP_WG", str(STAMP_WG)))
        g("s_cbranch_scc0 fin_end")
    stamp_flush(g, 8, 100 if "fin_end" != "fin_end" else 60)
    g.label("fin_end", pad=False)
    g("s_endpgm")
    return L, nv, 40


def poll(g, name, issue, regs, vt):
    g.label(name)
    issue()
    g("s_waitcnt vmcnt(0)")
    rs = list(regs)
    g(f"v_max3_u32 v{vt}, v{rs[0]}, v{rs[1]}, v{rs[2]}")
    k = 3
    while k < len(rs):
        if k + 1 < len(rs):
            g(f"v_max3_u32 v{vt}, v{vt}, v{rs[k]}, v{rs[k+1]}")
            k += 2
        else:
            g(f"v_max_u32 v{vt}, v{vt}, v{rs[k]}")
            k += 1
    g(f"v_cmp_eq_u32 vcc, -1, v{vt}")
    g(f"s_cbranch_vccz {name}_done")
    g("s_sleep 2")
    g(f"s_branch {name}")
    g.label(name + "_done")


def light_poll(g, name, loads, vt, sleep=2):
    g.label(name)
    for vd, va, sr, so in loads:
        g(f"buffer_load_dword v{vd}, v{va}, s[{sr}:{sr+3}], {so} offen sc1")
    g("s_waitcnt vmcnt(0)")
    rs = [x[0] for x in loads]
    g(f"v_mov_b32 v{vt}, v{rs[0]}")
    for r in rs[1:]:
        g(f"v_max_u32 v{vt}, v{vt}, v{r}")
    g(f"v_cmp_eq_u32 vcc, -1, v{vt}")
    g(f"s_cbranch_vccz {name}_done")
    g(f"s_sleep {sleep}")
    g(f"s_branch {name}")
    g.label(name + "_done")


def half_reduce(g, v, t):
    op = "v_add_f32"
    g(f"{op}_dpp v{v}, v{v}, v{v} quad_perm:[1,0,3,2] row_mask:0xf bank_mask:0xf")
    g(f"{op}_dpp v{v}, v{v}, v{v} quad_perm:[2,3,0,1] row_mask:0xf bank_mask:0xf")
    g(f"{op}_dpp v{v}, v{v}, v{v} row_half_mirror row_mask:0xf bank_mask:0xf")
    g(f"{op}_dpp v{v}, v{v}, v{v} row_mirror row_mask:0xf bank_mask:0xf")
    g(f"v_mov_b32 v{t}, v{v}")
    g(f"v_permlane16_swap_b32 v{v}, v{t}")
    g(f"{op} v{v}, v{v}, v{t}")


def gemv_step(g, vW, vAcc, o0, o1, t2, t3):
    for c in range(4):
        r = vW + c
        g(f"v_lshlrev_b32 v{t2}, 16, v{r}")
        g(f"v_and_b32 v{t3}, 0xffff0000, v{r}")
        g(f"v_fmac_f32 v{vAcc+2*c}, v{t2}, v{o0}")
        g(f"v_fmac_f32 v{vAcc+2*c+1}, v{t3}, v{o0}")
        g(f"v_fmac_f32 v{vAcc+8+2*c}, v{t2}, v{o1}")
        g(f"v_fmac_f32 v{vAcc+8+2*c+1}, v{t3}, v{o1}")


def k_tail(g, LIGHT=0, WNT=0, BACKOFF=0):
    WN = ' nt' if WNT else ''
    L = "tail_kernel"
    header(g, L)
    sWave, sT0, sT1, sOff = 36, 37, 38, 39
    vLane, vT, vT2, vT3 = 1, 2, 3, 4
    g("s_cmp_ge_u32 s2, 228")
    g("s_cbranch_scc1 tail_end")
    stamp(g, 0)
    g("s_load_dwordx2 s[14:15], s[0:1], 96")
    g(f"v_and_b32 v{vLane}, 63, v0")
    g(f"v_lshrrev_b32 v{vT}, 6, v0")
    g(f"v_readfirstlane_b32 s{sWave}, v{vT}")
    g("s_cmp_ge_u32 s2, 208")
    g("s_cbranch_scc1 tail_fin")
    g("s_cmp_ge_u32 s2, 160")
    g("s_cbranch_scc1 tail_ffn")

    sWO, sWS = 16, 20
    sRb, sCb = 24, 25
    OC, RED, RED2 = 0, 8192, 32768
    vWoOff, vOo, vMo, vB = 5, 6, 7, 40
    vAcc = 8
    vML = 24
    vM, vF, vDen, vR = 32, 33, 34, 35
    vN = 36
    vO = 44
    vW = 60
    vOv = 92
    g("s_load_dwordx2 s[4:5], s[0:1], 32")
    g(f"s_mul_i32 s{sRb}, s2, 3277")
    g(f"s_lshr_b32 s{sRb}, s{sRb}, 16")
    g(f"s_mul_i32 s{sT0}, s{sRb}, 20")
    g(f"s_sub_u32 s{sCb}, s2, s{sT0}")
    g(f"v_lshrrev_b32 v{vT}, 2, v{vLane}")
    g(f"v_mul_u32_u24 v{vWoOff}, 1280, v{vT}")
    g(f"v_and_b32 v{vT2}, 3, v{vLane}")
    g(f"v_lshlrev_b32 v{vT2}, 4, v{vT2}")
    g(f"v_add_u32 v{vWoOff}, v{vWoOff}, v{vT2}")
    g(f"v_cmp_le_u32 vcc, 192, v0")
    g(f"v_cndmask_b32 v{vB}, 0, 1, vcc")
    g(f"v_mul_u32_u24 v{vT}, 192, v{vB}")
    g(f"v_sub_u32 v{vT}, v0, v{vT}")
    g(f"v_mul_u32_u24 v{vT2}, 1366, v{vT}")
    g(f"v_lshrrev_b32 v{vT2}, 16, v{vT2}")
    g(f"v_mul_u32_u24 v{vT3}, 48, v{vT2}")
    g(f"v_sub_u32 v{vT3}, v{vT}, v{vT3}")
    g(f"v_lshlrev_b32 v{vB}, 5, v{vB}")
    g(f"v_add_u32 v{vT2}, v{vT2}, v{vB}")
    g(f"v_lshlrev_b32 v{vMo}, 5, v{vT2}")
    g(f"v_mul_u32_u24 v{vOo}, 3072, v{vT2}")
    g(f"v_lshlrev_b32 v{vT3}, 4, v{vT3}")
    g(f"v_add_u32 v{vOo}, v{vOo}, v{vT3}")
    g("s_waitcnt lgkmcnt(0)")
    srd(g, sWS, 14, WS_SIZE)
    srd(g, sWO, 4, 7864320)
    g(f"s_mul_i32 s{sT0}, s{sRb}, {4*3072}")
    for sp in range(4):
        g(f"buffer_load_dwordx4 v[{vO+4*sp}:{vO+4*sp+3}], v{vOo}, s[{sWS}:{sWS+3}], s{sT0} offen offset:{WS_PART + sp*768}")
    g(f"s_lshl_b32 s{sT0}, s{sRb}, 7")
    g(f"s_add_u32 s{sT0}, s{sT0}, {WS_ML}")
    for q in range(2):
        g(f"buffer_load_dwordx4 v[{vML+4*q}:{vML+4*q+3}], v{vMo}, s[{sWS}:{sWS+3}], s{sT0} offen offset:{q*16}")
    g("s_barrier")
    g(f"s_mul_i32 s{sT0}, s{sRb}, {768*1280}")
    g(f"s_mul_i32 s{sT1}, s{sWave}, {128*1280}")
    g(f"s_add_u32 s{sT0}, s{sT0}, s{sT1}")
    g(f"s_lshl_b32 s{sT1}, s{sCb}, 6")
    g(f"s_add_u32 s{sT0}, s{sT0}, s{sT1}")
    for i in range(8):
        g(f"s_add_u32 s{sOff}, s{sT0}, {i*16*1280}")
        g(f"buffer_load_dwordx4 v[{vW+4*i}:{vW+4*i+3}], v{vWoOff}, s[{sWO}:{sWO+3}], s{sOff} offen{WN}")
    for c in range(16):
        g(f"v_mov_b32 v{vAcc+c}, 0")
    stamp(g, 1)
    g("s_waitcnt vmcnt(8)")
    stamp(g, 2)
    g(f"v_max_f32 v{vM}, v{vML}, v{vML+2}")
    g(f"v_max3_f32 v{vM}, v{vM}, v{vML+4}, v{vML+6}")
    for sp in range(4):
        g(f"v_sub_f32 v{vF}, v{vML+2*sp}, v{vM}")
        g(f"v_mul_f32 v{vF}, {LOG2E:#x}, v{vF}")
        g(f"v_exp_f32 v{vF}, v{vF}")
        if sp == 0:
            g(f"v_mul_f32 v{vDen}, v{vF}, v{vML+1}")
            for c in range(4):
                g(f"v_mul_f32 v{vN+c}, v{vF}, v{vO+c}")
        else:
            g(f"v_fmac_f32 v{vDen}, v{vF}, v{vML+2*sp+1}")
            for c in range(4):
                g(f"v_fmac_f32 v{vN+c}, v{vF}, v{vO+4*sp+c}")
    g(f"v_rcp_f32 v{vR}, v{vDen}")
    for c in range(4):
        g(f"v_mul_f32 v{vO+c}, v{vN+c}, v{vR}")
        g(f"v_fma_f32 v{vN+c}, -v{vO+c}, v{vDen}, v{vN+c}")
        g(f"v_fma_f32 v{vO+c}, v{vN+c}, v{vR}, v{vO+c}")
    bf16r2(g, vO, vO + 1, vT)
    bf16r2(g, vO + 2, vO + 3, vT)
    g(f"v_lshlrev_b32 v{vT}, 4, v0")
    g(f"ds_write_b128 v{vT}, v[{vO}:{vO+3}] offset:{OC}")
    g(f"v_lshrrev_b32 v{vT}, 2, v{vLane}")
    g(f"s_lshl_b32 s{sT0}, s{sWave}, 7")
    g(f"v_add_u32 v{vT}, s{sT0}, v{vT}")
    g(f"v_lshlrev_b32 v{vT}, 2, v{vT}")
    g("s_waitcnt lgkmcnt(0)")
    stamp(g, 6)
    g("s_barrier")
    stamp(g, 3)
    for i in range(8):
        g(f"ds_read_b32 v{vOv+2*i}, v{vT} offset:{OC + i*64}")
        g(f"ds_read_b32 v{vOv+2*i+1}, v{vT} offset:{OC + 3072 + i*64}")
    g("s_waitcnt lgkmcnt(0)")
    for i in range(8):
        g(f"s_waitcnt vmcnt({7-i})")
        gemv_step(g, vW + 4 * i, vAcc, vOv + 2 * i, vOv + 2 * i + 1, vT2, vT3)
    stamp(g, 4)
    wave_reduce_64(g, vAcc, vLane, sWave, RED, RED2, vT, vT2, vT3, vW, sT0)
    g("s_barrier")
    if STAMPS == 2:
        stamp(g, 5)
        g(f"s_cmp_eq_u32 s2, {STAMP_WG}")
        g("s_cbranch_scc0 wo_nostamp")
        g("s_load_dwordx2 s[60:61], s[0:1], 88")
        g("s_waitcnt lgkmcnt(0)")
        srd(g, 64, 60, 256)
        g(f"s_lshl_b32 s62, s{sWave}, 5")
        for i in range(8):
            g(f"v_mov_b32 v100, s{70+2*i}")
            g(f"v_mov_b32 v101, {i*4}")
            g(f"buffer_store_dword v100, v101, s[64:67], s62 offen")
        g("s_waitcnt vmcnt(0)")
        g.label("wo_nostamp")
    g(f"s_cmp_eq_u32 s{sWave}, 0")
    g("s_cbranch_scc0 tail_end")
    g(f"v_lshlrev_b32 v{vT}, 2, v{vLane}")
    for w in range(6):
        g(f"ds_read_b32 v{vW+w}, v{vT} offset:{RED2 + w*256}")
    g(f"v_lshrrev_b32 v{vT}, 5, v{vLane}")
    g(f"v_mul_u32_u24 v{vT}, 2560, v{vT}")
    g(f"v_and_b32 v{vT2}, 31, v{vLane}")
    g(f"v_lshlrev_b32 v{vT2}, 2, v{vT2}")
    g(f"v_add_u32 v{vT}, v{vT}, v{vT2}")
    g(f"s_mul_i32 s{sT0}, s{sRb}, 5120")
    g(f"s_lshl_b32 s{sT1}, s{sCb}, 7")
    g(f"s_add_u32 s{sT0}, s{sT0}, s{sT1}")
    g(f"s_add_u32 s{sT0}, s{sT0}, {WS_HP}")
    g("s_waitcnt lgkmcnt(0)")
    g(f"v_add_f32 v{vW}, v{vW}, v{vW+1}")
    g(f"v_add_f32 v{vW+2}, v{vW+2}, v{vW+3}")
    g(f"v_add_f32 v{vW+4}, v{vW+4}, v{vW+5}")
    g(f"v_add_f32 v{vW}, v{vW}, v{vW+2}")
    g(f"v_add_f32 v{vW}, v{vW}, v{vW+4}")
    g(f"buffer_store_dword v{vW}, v{vT}, s[{sWS}:{sWS+3}], s{sT0} offen sc1")
    stamp(g, 7)
    if STAMPS == 1:
        g(f"s_cmp_eq_u32 s2, {STAMP_WG}")
        g("s_cbranch_scc0 tail_end")
        stamp_flush(g, 8, 100, 0)
    g("s_endpgm")

    g.label("tail_ffn")
    g(f"s_cmp_eq_u32 s{sWave}, 5")
    g("s_cbranch_scc1 tail_end")
    sX, sW1, sB1, sW2, sWS = 16, 20, 24, 28, 32
    sFb = 40
    sMk = 42
    SUM, SUM2, HN, RED, RED2, H1, R3 = 0, 64, 5120, 10240, 30720, 32000, 32768
    vAcc = 8
    vW1 = 24
    vW2 = 56
    vHP = 88
    vX = 120
    vB1 = 122
    vH = 124
    vRG, vCC = 5, 6
    vHa = 7
    vS = 128
    vMb, vSd = 136, 137
    g("s_load_dwordx2 s[4:5], s[0:1], 0")
    g("s_load_dwordx4 s[8:11], s[0:1], 48")
    g("s_load_dwordx2 s[12:13], s[0:1], 64")
    g(f"s_sub_u32 s{sFb}, s2, 160")
    g(f"v_lshlrev_b32 v{vHa}, 4, v0")
    g("s_waitcnt lgkmcnt(0)")
    srd(g, sX, 4, 2560)
    srd(g, sW1, 8, 1966080)
    srd(g, sB1, 10, 3072)
    srd(g, sW2, 12, 1966080)
    srd(g, sWS, 14, WS_SIZE)
    g(f"v_lshlrev_b32 v{vT2}, 3, v0")
    g(f"buffer_load_dwordx2 v[{vX}:{vX+1}], v{vT2}, s[{sX}:{sX+3}], 0 offen")
    g(f"v_and_b32 v{vT2}, 31, v{vLane}")
    g(f"v_lshlrev_b32 v{vT2}, 1, v{vT2}")
    g(f"s_lshl_b32 s{sT0}, s{sFb}, 6")
    g(f"buffer_load_ushort v{vB1}, v{vT2}, s[{sB1}:{sB1+3}], s{sT0} offen")
    g(f"v_lshrrev_b32 v{vT}, 2, v{vLane}")
    g(f"v_mul_u32_u24 v{vT}, 3072, v{vT}")
    g(f"v_and_b32 v{vT2}, 3, v{vLane}")
    g(f"v_lshlrev_b32 v{vT2}, 4, v{vT2}")
    g(f"v_add_u32 v{vT}, v{vT}, v{vT2}")
    g(f"s_mul_i32 s{sT1}, s{sWave}, {128*3072}")
    g(f"s_add_u32 s{sT1}, s{sT1}, s{sT0}")
    for i in range(8):
        g(f"s_add_u32 s{sOff}, s{sT1}, {i*16*3072}")
        g(f"buffer_load_dwordx4 v[{vW1+4*i}:{vW1+4*i+3}], v{vT}, s[{sW1}:{sW1+3}], s{sOff} offen{WN}")
    g(f"v_mul_u32_u24 v{vRG}, 52429, v0")
    g(f"v_lshrrev_b32 v{vRG}, 22, v{vRG}")
    g(f"v_mul_u32_u24 v{vT}, 80, v{vRG}")
    g(f"v_sub_u32 v{vCC}, v0, v{vT}")
    g(f"v_mul_u32_u24 v{vT}, {8*1280}, v{vRG}")
    g(f"v_lshlrev_b32 v{vT2}, 4, v{vCC}")
    g(f"v_add_u32 v{vT}, v{vT}, v{vT2}")
    g(f"s_mul_i32 s{sT1}, s{sFb}, {32*1280}")
    for i in range(8):
        g(f"s_add_u32 s{sOff}, s{sT1}, {i*1280}")
        g(f"buffer_load_dwordx4 v[{vW2+4*i}:{vW2+4*i+3}], v{vT}, s[{sW2}:{sW2+3}], s{sOff} offen{WN}")
    g(f"v_cmp_le_u32 vcc, 160, v0")
    g(f"s_mov_b64 s[{sMk}:{sMk+1}], vcc")
    vBt, vSw, vSr, vHNa = 138, 139, 140, 141
    g(f"v_cndmask_b32 v{vBt}, 0, 1, s[{sMk}:{sMk+1}]")
    g(f"v_lshrrev_b32 v{vT}, 5, v0")
    g(f"v_mul_u32_u24 v{vT2}, 3, v{vBt}")
    g(f"v_add_u32 v{vT}, v{vT}, v{vT2}")
    g(f"v_lshlrev_b32 v{vSw}, 2, v{vT}")
    g(f"v_lshlrev_b32 v{vSr}, 5, v{vBt}")
    g(f"v_mul_u32_u24 v{vT3}, 160, v{vBt}")
    g(f"v_sub_u32 v{vT3}, v0, v{vT3}")
    g(f"v_lshlrev_b32 v{vT3}, 5, v{vT3}")
    g(f"v_lshlrev_b32 v{vT2}, 2, v{vBt}")
    g(f"v_add_u32 v{vHNa}, v{vT3}, v{vT2}")
    stamp(g, 1)
    if LIGHT:
        g(f"s_cmp_eq_u32 s{sWave}, 0")
        g("s_cbranch_scc0 ffn_nolight")
        la = [vS + 3, vS + 4, vS + 5]
        for k in range(3):
            g(f"v_add_u32 v{vT}, {k*64}, v{vLane}")
            g(f"v_min_u32 v{vT}, 159, v{vT}")
            g(f"v_mul_u32_u24 v{vT2}, 3277, v{vT}")
            g(f"v_lshrrev_b32 v{vT2}, 16, v{vT2}")
            g(f"v_mul_u32_u24 v{vT3}, 20, v{vT2}")
            g(f"v_sub_u32 v{vT3}, v{vT}, v{vT3}")
            g(f"v_mul_u32_u24 v{vT2}, 5120, v{vT2}")
            g(f"v_lshlrev_b32 v{vT3}, 7, v{vT3}")
            g(f"v_add_u32 v{la[k]}, v{vT2}, v{vT3}")
        g(f"s_mov_b32 s{sT1}, {WS_HP}")
        light_poll(g, "ffn_light", [(vS + k, la[k], sWS, f"s{sT1}") for k in range(3)], vT)
        g.label("ffn_nolight")
        g("s_barrier")

    def issue_hp():
        for rb in range(8):
            g(f"s_mov_b32 s{sOff}, {WS_HP + rb*5120}")
            g(f"buffer_load_dwordx4 v[{vHP+4*rb}:{vHP+4*rb+3}], v{vHa}, s[{sWS}:{sWS+3}], s{sOff} offen sc1")
    if BACKOFF:
        g(f"s_sleep {BACKOFF}")
    poll(g, "ffn_poll", issue_hp, range(vHP, vHP + 32), vT)
    stamp(g, 2)
    for c in range(4):
        g(f"v_add_f32 v{vH+c}, v{vHP+c}, v{vHP+4+c}")
        g(f"v_add_f32 v{vT}, v{vHP+8+c}, v{vHP+12+c}")
        g(f"v_add_f32 v{vT2}, v{vHP+16+c}, v{vHP+20+c}")
        g(f"v_add_f32 v{vT3}, v{vHP+24+c}, v{vHP+28+c}")
        g(f"v_add_f32 v{vH+c}, v{vH+c}, v{vT}")
        g(f"v_add_f32 v{vT2}, v{vT2}, v{vT3}")
        g(f"v_add_f32 v{vH+c}, v{vH+c}, v{vT2}")
    bf16r2(g, vH, vH + 1, vT)
    bf16r2(g, vH + 2, vH + 3, vT)
    g(f"v_lshlrev_b32 v{vT}, 16, v{vX}")
    g(f"v_add_f32 v{vH}, v{vH}, v{vT}")
    g(f"v_and_b32 v{vT}, 0xffff0000, v{vX}")
    g(f"v_add_f32 v{vH+1}, v{vH+1}, v{vT}")
    g(f"v_lshlrev_b32 v{vT}, 16, v{vX+1}")
    g(f"v_add_f32 v{vH+2}, v{vH+2}, v{vT}")
    g(f"v_and_b32 v{vT}, 0xffff0000, v{vX+1}")
    g(f"v_add_f32 v{vH+3}, v{vH+3}, v{vT}")
    bf16r2(g, vH, vH + 1, vT)
    bf16r2(g, vH + 2, vH + 3, vT)
    g(f"s_cmp_eq_u32 s{sFb}, 0")
    g("s_cbranch_scc0 ffn_nohh")
    g(f"s_mov_b32 s{sOff}, {WS_HH}")
    g(f"buffer_store_dwordx4 v[{vH}:{vH+3}], v{vHa}, s[{sWS}:{sWS+3}], s{sOff} offen sc1")
    g.label("ffn_nohh")
    g(f"v_add_f32 v{vT}, v{vH}, v{vH+1}")
    g(f"v_add_f32 v{vT2}, v{vH+2}, v{vH+3}")
    g(f"v_add_f32 v{vT}, v{vT}, v{vT2}")
    half_reduce(g, vT, vT2)
    g(f"ds_write_b32 v{vSw}, v{vT} offset:{SUM}")
    g("s_waitcnt lgkmcnt(0)")
    g("s_barrier")
    g(f"ds_read_b128 v[{vS}:{vS+3}], v{vSr} offset:{SUM}")
    g(f"ds_read_b32 v{vS+4}, v{vSr} offset:{SUM+16}")
    g("s_waitcnt lgkmcnt(0)")
    g(f"v_add_f32 v{vS}, v{vS}, v{vS+1}")
    g(f"v_add_f32 v{vS+2}, v{vS+2}, v{vS+3}")
    g(f"v_add_f32 v{vS}, v{vS}, v{vS+4}")
    g(f"v_add_f32 v{vS}, v{vS}, v{vS+2}")
    g(f"v_mul_f32 v{vS+5}, {INV640:#x}, v{vS}")
    g(f"v_sub_f32 v{vT2}, v{vH}, v{vS+5}")
    g(f"v_mul_f32 v{vT}, v{vT2}, v{vT2}")
    for c in range(1, 4):
        g(f"v_sub_f32 v{vT2}, v{vH+c}, v{vS+5}")
        g(f"v_fmac_f32 v{vT}, v{vT2}, v{vT2}")
    half_reduce(g, vT, vT2)
    g(f"ds_write_b32 v{vSw}, v{vT} offset:{SUM2}")
    bf16r(g, vMb, vS + 5)
    g("s_waitcnt lgkmcnt(0)")
    g("s_barrier")
    g(f"ds_read_b128 v[{vS}:{vS+3}], v{vSr} offset:{SUM2}")
    g(f"ds_read_b32 v{vS+4}, v{vSr} offset:{SUM2+16}")
    for c in range(4):
        g(f"v_sub_f32 v{vH+c}, v{vH+c}, v{vMb}")
    bf16r2(g, vH, vH + 1, vT)
    bf16r2(g, vH + 2, vH + 3, vT)
    g("s_waitcnt lgkmcnt(0)")
    g(f"v_add_f32 v{vS}, v{vS}, v{vS+1}")
    g(f"v_add_f32 v{vS+2}, v{vS+2}, v{vS+3}")
    g(f"v_add_f32 v{vS}, v{vS}, v{vS+4}")
    g(f"v_add_f32 v{vS}, v{vS}, v{vS+2}")
    g(f"v_mul_f32 v{vS}, {INV640:#x}, v{vS}")
    bf16r(g, vS, vS)
    g(f"v_add_f32 v{vS}, {EPS:#x}, v{vS}")
    bf16r(g, vS, vS)
    g(f"v_sqrt_f32 v{vS}, v{vS}")
    bf16r(g, vSd, vS)
    g(f"v_rcp_f32 v{vS+1}, v{vSd}")
    for c in range(4):
        g(f"v_mul_f32 v{vS+2}, v{vH+c}, v{vS+1}")
        g(f"v_fma_f32 v{vH+c}, -v{vS+2}, v{vSd}, v{vH+c}")
        g(f"v_fma_f32 v{vH+c}, v{vH+c}, v{vS+1}, v{vS+2}")
    bf16r2(g, vH, vH + 1, vT)
    bf16r2(g, vH + 2, vH + 3, vT)
    for c in range(4):
        g(f"ds_write_b32 v{vHNa}, v{vH+c} offset:{HN + c*8}")
    g(f"v_lshrrev_b32 v{vT}, 2, v{vLane}")
    g(f"s_lshl_b32 s{sT0}, s{sWave}, 7")
    g(f"v_add_u32 v{vT}, s{sT0}, v{vT}")
    g(f"v_lshlrev_b32 v{vT}, 3, v{vT}")
    for c in range(16):
        g(f"v_mov_b32 v{vAcc+c}, 0")
    g("s_waitcnt lgkmcnt(0)")
    g("s_barrier")
    stamp(g, 3)
    vOv = vHP
    for i in range(8):
        g(f"ds_read_b64 v[{vOv+2*i}:{vOv+2*i+1}], v{vT} offset:{HN + i*128}")
    for i in range(8):
        g(f"s_waitcnt lgkmcnt({7-i})")
        gemv_step(g, vW1 + 4 * i, vAcc, vOv + 2 * i, vOv + 2 * i + 1, vT2, vT3)
    stamp(g, 4)
    wave_reduce_64(g, vAcc, vLane, sWave, RED, RED2, vT, vT2, vT3, vW1, sT0)
    g("s_barrier")
    g(f"s_cmp_eq_u32 s{sWave}, 0")
    g("s_cbranch_scc0 ffn_h1_skip")
    g(f"v_lshlrev_b32 v{vT}, 2, v{vLane}")
    for w in range(5):
        g(f"ds_read_b32 v{vW1+w}, v{vT} offset:{RED2 + w*256}")
    g(f"v_lshlrev_b32 v{vB1}, 16, v{vB1}")
    g(f"v_and_b32 v{vT}, 31, v{vLane}")
    g(f"v_lshlrev_b32 v{vT}, 3, v{vT}")
    g(f"v_lshrrev_b32 v{vT2}, 5, v{vLane}")
    g(f"v_lshlrev_b32 v{vT2}, 2, v{vT2}")
    g(f"v_add_u32 v{vT}, v{vT}, v{vT2}")
    g("s_waitcnt lgkmcnt(0)")
    g(f"v_add_f32 v{vW1}, v{vW1}, v{vW1+1}")
    g(f"v_add_f32 v{vW1+2}, v{vW1+2}, v{vW1+3}")
    g(f"v_add_f32 v{vW1}, v{vW1}, v{vW1+4}")
    g(f"v_add_f32 v{vW1}, v{vW1}, v{vW1+2}")
    bf16r(g, vW1, vW1)
    g(f"v_add_f32 v{vW1}, v{vW1}, v{vB1}")
    bf16r(g, vW1, vW1)
    g(f"v_max_f32 v{vW1}, 0, v{vW1}")
    g(f"v_mul_f32 v{vW1}, v{vW1}, v{vW1}")
    bf16r(g, vW1, vW1)
    g(f"ds_write_b32 v{vT}, v{vW1} offset:{H1}")
    g("s_waitcnt lgkmcnt(0)")
    g.label("ffn_h1_skip")
    g(f"v_lshlrev_b32 v{vT}, 6, v{vRG}")
    for c in range(16):
        g(f"v_mov_b32 v{vAcc+c}, 0")
    g("s_barrier")
    stamp(g, 5)
    for i in range(0, 8, 2):
        g(f"ds_read_b128 v[{vOv+2*i}:{vOv+2*i+3}], v{vT} offset:{H1 + i*8}")
    g("s_waitcnt lgkmcnt(0)")
    for i in range(8):
        gemv_step(g, vW2 + 4 * i, vAcc, vOv + 2 * i, vOv + 2 * i + 1, vT2, vT3)
    stamp(g, 6)
    g(f"v_mul_u32_u24 v{vT}, 5120, v{vRG}")
    g(f"v_lshlrev_b32 v{vT2}, 5, v{vCC}")
    g(f"v_add_u32 v{vT}, v{vT}, v{vT2}")
    for b in range(2):
        for q in range(2):
            r = vAcc + 8 * b + 4 * q
            g(f"ds_write_b128 v{vT}, v[{r}:{r+3}] offset:{R3 + b*2560 + q*16}")
    g("s_waitcnt lgkmcnt(0)")
    g("s_barrier")
    for rg in range(4):
        g(f"ds_read_b128 v[{vW1+4*rg}:{vW1+4*rg+3}], v{vHa} offset:{R3 + rg*5120}")
    g(f"s_mul_i32 s{sT0}, s{sFb}, 5120")
    g(f"s_add_u32 s{sT0}, s{sT0}, {WS_FP}")
    g("s_waitcnt lgkmcnt(0)")
    for c in range(4):
        g(f"v_add_f32 v{vW1+c}, v{vW1+c}, v{vW1+4+c}")
        g(f"v_add_f32 v{vW1+8+c}, v{vW1+8+c}, v{vW1+12+c}")
        g(f"v_add_f32 v{vW1+c}, v{vW1+c}, v{vW1+8+c}")
    g(f"buffer_store_dwordx4 v[{vW1}:{vW1+3}], v{vHa}, s[{sWS}:{sWS+3}], s{sT0} offen sc1")
    stamp(g, 7)
    if STAMPS == 1:
        g(f"s_cmp_eq_u32 s2, 160")
        g("s_cbranch_scc0 tail_end")
        g(f"s_cmp_eq_u32 s{sWave}, 0")
        g("s_cbranch_scc0 tail_end")
        stamp_flush(g, 8, 100, 32)
    g("s_endpgm")

    g.label("tail_fin")
    sB2, sOut, sWS = 16, 20, 24
    sFi = 28
    FL = 0
    vE, vHh, vB2 = 5, 6, 7
    vP = 8
    g("s_load_dwordx2 s[4:5], s[0:1], 72")
    g("s_load_dwordx2 s[6:7], s[0:1], 80")
    g(f"s_sub_u32 s{sFi}, s2, 208")
    g(f"s_lshl_b32 s{sT0}, s{sFi}, 6")
    g(f"v_add_u32 v{vE}, s{sT0}, v{vLane}")
    g(f"v_lshlrev_b32 v{vT3}, 2, v{vE}")
    g("s_waitcnt lgkmcnt(0)")
    srd(g, sB2, 4, 1280)
    srd(g, sOut, 6, 2560)
    srd(g, sWS, 14, WS_SIZE)
    g(f"s_cmp_ge_u32 s{sFi}, 10")
    g(f"s_cselect_b32 s{sT0}, 640, 0")
    g(f"v_subrev_u32 v{vT}, s{sT0}, v{vE}")
    g(f"v_lshlrev_b32 v{vT}, 1, v{vT}")
    g(f"buffer_load_ushort v{vB2}, v{vT}, s[{sB2}:{sB2+3}], 0 offen")
    if LIGHT:
        g(f"s_cmp_eq_u32 s{sWave}, 0")
        g("s_cbranch_scc0 fin_nolight")
        g(f"v_min_u32 v{vT}, 47, v{vLane}")
        g(f"v_mul_u32_u24 v{vT2}, 5120, v{vT}")
        g(f"s_lshl_b32 s{sT1}, s{sFi}, 8")
        g(f"s_add_u32 s{sT1}, s{sT1}, {WS_FP}")
        light_poll(g, "fin_light", [(20, vT2, sWS, f"s{sT1}")], vT)
        g.label("fin_nolight")
        g("s_barrier")
    g(f"s_mul_i32 s{sT1}, s{sWave}, {8*5120}")
    g(f"s_add_u32 s{sT1}, s{sT1}, {WS_FP}")

    def issue_fp():
        for j in range(8):
            g(f"s_add_u32 s{sOff}, s{sT1}, {j*5120}")
            g(f"buffer_load_dword v{vP+j}, v{vT3}, s[{sWS}:{sWS+3}], s{sOff} offen sc1")
        g(f"s_mov_b32 s{sOff}, {WS_HH}")
        g(f"buffer_load_dword v{vP+8}, v{vT3}, s[{sWS}:{sWS+3}], s{sOff} offen sc1")
    if BACKOFF:
        g("s_sleep 127")
    poll(g, "fin_poll", issue_fp, range(vP, vP + 9), vT)
    stamp(g, 2)
    g(f"v_add_f32 v{vP}, v{vP}, v{vP+1}")
    g(f"v_add_f32 v{vP+2}, v{vP+2}, v{vP+3}")
    g(f"v_add_f32 v{vP+4}, v{vP+4}, v{vP+5}")
    g(f"v_add_f32 v{vP+6}, v{vP+6}, v{vP+7}")
    g(f"v_add_f32 v{vP}, v{vP}, v{vP+2}")
    g(f"v_add_f32 v{vP+4}, v{vP+4}, v{vP+6}")
    g(f"v_add_f32 v{vP}, v{vP}, v{vP+4}")
    g(f"v_lshlrev_b32 v{vT}, 2, v0")
    g(f"ds_write_b32 v{vT}, v{vP} offset:{FL}")
    g("s_waitcnt lgkmcnt(0)")
    g("s_barrier")
    g(f"s_cmp_eq_u32 s{sWave}, 0")
    g("s_cbranch_scc0 tail_end")
    for w in range(1, 6):
        g(f"ds_read_b32 v{vP+w}, v{vT} offset:{FL + w*256}")
    g(f"v_lshlrev_b32 v{vB2}, 16, v{vB2}")
    g("s_waitcnt lgkmcnt(0)")
    g(f"v_add_f32 v{vP}, v{vP}, v{vP+1}")
    g(f"v_add_f32 v{vP+2}, v{vP+2}, v{vP+3}")
    g(f"v_add_f32 v{vP+4}, v{vP+4}, v{vP+5}")
    g(f"v_add_f32 v{vP}, v{vP}, v{vP+2}")
    g(f"v_add_f32 v{vP}, v{vP}, v{vP+4}")
    bf16r(g, vP, vP)
    g(f"v_add_f32 v{vP}, v{vP}, v{vB2}")
    bf16r(g, vP, vP)
    g(f"v_add_f32 v{vP}, v{vP}, v{vP+8}")
    g(f"v_cvt_pk_bf16_f32 v{vP}, v{vP}, v{vP}")
    g(f"v_lshlrev_b32 v{vT}, 1, v{vE}")
    g(f"buffer_store_short v{vP}, v{vT}, s[{sOut}:{sOut+3}], 0 offen")
    stamp(g, 7)
    if STAMPS == 1:
        g(f"s_cmp_eq_u32 s2, 208")
        g("s_cbranch_scc0 tail_end")
        stamp_flush(g, 8, 100, 64)
    g.label("tail_end", pad=False)
    g("s_endpgm")
    return L, 144, 48


def build(NBUF=16, nt=True, PRIO=0, PREF=0, LIGHT=0, CK=64, WNT=0, NW=16, BACKOFF=0):
    g = Gen()
    head = open(f"cdna_kernels/{NAME}.s.ref").read().split("; Override launch")[0]
    g.raw(head.rstrip("\n"))
    g.raw(f"; @launch kernel=attn_kernel grid=(256,1,1) block=({NW*64},1,1) lds=98304")
    g.raw("; @launch kernel=tail_kernel grid=(228,1,1) block=(384,1,1) lds=53248")
    g.raw('.amdgcn_target "amdgcn-amd-amdhsa--gfx950"')
    g.raw(".text")
    descs = []
    for fn, kw in ((k_attn, dict(NBUF=NBUF, nt=nt, PRIO=PRIO, PREF=PREF, CK=CK, NW=NW)), (k_tail, dict(LIGHT=LIGHT, WNT=WNT, BACKOFF=BACKOFF))):
        g.wr = {}
        g.store_data = {}
        descs.append(fn(g, **kw))
    g.raw('.section .rodata,"a"')
    for L, nv, ns in descs:
        g.raw(".p2align 6")
        g.raw(descriptor(L, nv, ns).rstrip("\n"))
    return g.text()


if __name__ == "__main__":
    import struct
    import numpy as np
    assert struct.unpack("<I", struct.pack("<f", 192 ** -0.5))[0] == SCALE, hex(struct.unpack("<I", struct.pack("<f", 192 ** -0.5))[0])
    assert struct.unpack("<I", struct.pack("<f", 1 / 640))[0] == INV640
    assert struct.unpack("<I", struct.pack("<f", 1e-5))[0] == EPS
    for r in range(768):
        assert (r * 43691) >> 23 == r // 192
    for t in range(320):
        assert (t * 52429) >> 22 == t // 80
    for r in range(192):
        assert (r * 1366) >> 16 == r // 48
    for w in range(160):
        assert (w * 3277) >> 16 == w // 20
    out = sys.argv[1] if len(sys.argv) > 1 else f"cdna_kernels/{NAME}.s"
    kw = {}
    for a in sys.argv[2:]:
        k, v = a.split("=")
        if k == "STAMPS":
            STAMPS = int(v)
        elif k == "STAMP_WG":
            STAMP_WG = int(v)
        else:
            kw[k] = int(v)
    open(out, "w").write(build(**kw))
    print("wrote", out)
```
